```python
import torch

def _softmax(x, axis=-1):
    return torch.softmax(x, dim=axis)
def _gelu(x):
    return torch.nn.functional.gelu(x, approximate="tanh")
def _silu(x):
    return torch.nn.functional.silu(x)
def _sigmoid(x):
    return torch.sigmoid(x)
def _layernorm(x, axis=-1, eps=1e-5):
    m = x.mean(dim=axis, keepdim=True)
    v = x.var(dim=axis, keepdim=True, unbiased=False)
    return (x - m) / torch.sqrt(v + eps)
def _scatter_add(tgt, idx, src, axis=0):
    return tgt.clone().index_add_(axis, idx, src)
def _segment_sum(src, seg, n):
    out = torch.zeros((n,) + src.shape[1:], dtype=src.dtype)
    return out.index_add_(0, seg, src)
def _pad(x, pw):
    flat = tuple(v for pair in reversed(pw) for v in pair)
    return torch.nn.functional.pad(x, flat)

kernel_name = 'parallel_sum__ssm_conv_s5__glu_gated_glu__prompt'

def setup_inputs():

    _w = (lambda a: (lambda t: t.to(torch.bfloat16) if t.is_floating_point() else t)(torch.as_tensor(a)))
    def _A_setup():
        B, S, D = 1, 2048, 512
        P = D
        Lambda_re = -0.5 * (lambda _x: torch.exp(torch.as_tensor(_x)))((lambda *s: torch.randn(*s, dtype=torch.bfloat16) * 0.8)(P))
        Lambda_im = (lambda *s: torch.randn(*s, dtype=torch.bfloat16) * 0.8)(P) * 1.0
        B_re = (lambda *s: torch.randn(*s, dtype=torch.bfloat16) * 0.8)(P, D) * (D ** -0.5)
        B_im = (lambda *s: torch.randn(*s, dtype=torch.bfloat16) * 0.8)(P, D) * (D ** -0.5)
        C_re = (lambda *s: torch.randn(*s, dtype=torch.bfloat16) * 0.8)(D, P) * (P ** -0.5)
        C_im = (lambda *s: torch.randn(*s, dtype=torch.bfloat16) * 0.8)(D, P) * (P ** -0.5)
        log_dt = (lambda *s: torch.randn(*s, dtype=torch.bfloat16) * 0.8)(P) * 0.3 - 2.0
        Dskip = (lambda *s: torch.randn(*s, dtype=torch.bfloat16) * 0.8)(D)
        return {
            "x": _w((lambda *s: torch.randn(*s, dtype=torch.bfloat16) * 0.05)(B, S, D)),
            "Lambda_re": _w(Lambda_re),
            "Lambda_im": _w(Lambda_im),
            "B_re": _w(B_re),
            "B_im": _w(B_im),
            "C_re": _w(C_re),
            "C_im": _w(C_im),
            "log_dt": _w(log_dt),
            "Dskip": _w(Dskip),
        }
    _A_in = _A_setup()

    def _B_setup():
        B, S, D, F = 1, 2048, 512, 1792
        return {
            "x": _w((lambda *s: torch.randn(*s, dtype=torch.bfloat16) * 0.05)(B, S, D)),
            "w_gate": _w((lambda *s: torch.randn(*s, dtype=torch.bfloat16) * 0.05)(D, F)),
            "w_up": _w((lambda *s: torch.randn(*s, dtype=torch.bfloat16) * 0.05)(D, F)),
            "w_down": _w((lambda *s: torch.randn(*s, dtype=torch.bfloat16) * 0.05)(F, D)),
        }
    _B_in = _B_setup()

    return {
        "A_x": _A_in["x"],
        "A_Lambda_re": _A_in["Lambda_re"],
        "A_Lambda_im": _A_in["Lambda_im"],
        "A_B_re": _A_in["B_re"],
        "A_B_im": _A_in["B_im"],
        "A_C_re": _A_in["C_re"],
        "A_C_im": _A_in["C_im"],
        "A_log_dt": _A_in["log_dt"],
        "A_Dskip": _A_in["Dskip"],
        "B_x": _B_in["x"],
        "B_w_gate": _B_in["w_gate"],
        "B_w_up": _B_in["w_up"],
        "B_w_down": _B_in["w_down"],
    }

def reference(A_x, A_Lambda_re, A_Lambda_im, A_B_re, A_B_im, A_C_re, A_C_im, A_log_dt, A_Dskip, B_x, B_w_gate, B_w_up, B_w_down):
    def _A_ref(x, Lambda_re, Lambda_im, B_re, B_im, C_re, C_im, log_dt, Dskip):
        Bsz, L, H = x.shape
        Lam = Lambda_re + 1j * Lambda_im
        Bmat = B_re + 1j * B_im
        Cmat = C_re + 1j * C_im
        dt = torch.exp(log_dt)
        Lam_bar = torch.exp(dt * Lam)
        B_bar = ((Lam_bar - 1.0) / Lam)[:, None] * Bmat
        Bu = torch.einsum("bld,pd->blp", x + 0j, B_bar)
        h = torch.zeros_like(Bu[:, 0, :])
        hs = []
        for t in range(L):
            h = Lam_bar[None, :] * h + Bu[:, t, :]
            hs.append(h)
        hseq = torch.stack(hs, 1)
        y = 2.0 * torch.einsum("blp,dp->bld", hseq, Cmat).real + x * Dskip[None, None, :]
        return y

    def _B_ref(x, w_gate, w_up, w_down):
        g = torch.einsum("bsd,df->bsf", x, w_gate)
        u = torch.einsum("bsd,df->bsf", x, w_up)
        h = _sigmoid(g) * u
        return torch.einsum("bsf,fd->bsd", h, w_down)

    x = A_x
    xn = _layernorm(x, axis=-1)
    return x + _A_ref(xn, A_Lambda_re, A_Lambda_im, A_B_re, A_B_im, A_C_re, A_C_im, A_log_dt, A_Dskip) + _B_ref(xn, B_w_gate, B_w_up, B_w_down)
```

```python
import re

REG_RE = re.compile(r"(?<![\w.])(-?)(?:abs\()?([vas])(?:\[(\d+):(\d+)\]|(\d+))(?![\w])")
TRANS = ("v_exp_f32", "v_log_f32", "v_rcp_f32", "v_rsq_f32", "v_sqrt_f32", "v_sin_f32", "v_cos_f32")


def regs_of(op):
    op = op.strip()
    out = []
    if op in ("vcc", "exec", "m0", "scc"):
        return [op]
    if op in ("vcc_lo", "vcc_hi"):
        return ["vcc"]
    if op in ("exec_lo", "exec_hi"):
        return ["exec"]
    m = REG_RE.fullmatch(op.rstrip(")")) or REG_RE.fullmatch(op)
    if m:
        k = m.group(2)
        if m.group(3) is not None:
            return [f"{k}{i}" for i in range(int(m.group(3)), int(m.group(4)) + 1)]
        return [f"{k}{m.group(5)}"]
    return out


class Ins:
    __slots__ = ("text", "mn", "kind", "rd", "wr", "tag", "cost", "srcc", "passes", "note", "ab")

    def __init__(self, text, tag=None):
        self.text = text
        self.tag = tag
        self.rd, self.wr = [], []
        self.srcc = []
        self.ab = []
        self.passes = 0
        self.cost = 1
        self.note = None
        t = text.split(";")[0].strip()
        if t.endswith(":") or t.startswith("."):
            self.mn, self.kind, self.cost = t, "label", 0
            return
        if t.startswith("@"):
            self.mn, self.kind, self.cost = t, "pseudo", 1
            return
        parts = t.split(None, 1)
        mn = parts[0]
        self.mn = mn
        base = re.sub(r"_(e32|e64|sdwa|dpp)$", "", mn)
        rest = parts[1] if len(parts) > 1 else ""
        ops = [o.strip() for o in rest.split(",")] if rest else []
        fixed = []
        depth = 0
        for o in ops:
            if depth > 0:
                fixed[-1] += "," + o
            else:
                fixed.append(o)
            depth += o.count("[") - o.count("]")
        ops = fixed
        mods = ""
        if ops:
            last = ops[-1].split(None, 1)
            ops[-1] = last[0]
            mods = last[1] if len(last) > 1 else ""
        R = lambda i: regs_of(ops[i]) if i < len(ops) else []
        allr = lambda a: [r for i in range(a, len(ops)) for r in R(i)]
        if base.startswith("v_mfma"):
            self.kind = "mfma"
            self.wr = R(0)
            self.ab = R(1) + R(2)
            self.srcc = R(3)
            self.rd = self.ab + self.srcc
            self.passes = 8 if "32x32x16" in base else 4
            self.cost = 2
        elif base.startswith("v_cmp"):
            self.kind = "valu"
            self.wr = R(0)
            self.rd = allr(1)
        elif base in ("v_readfirstlane_b32", "v_readlane_b32"):
            self.kind = "valu"
            self.wr = R(0)
            self.rd = allr(1)
        elif base.startswith("v_permlane"):
            self.kind = "valu"
            self.wr = R(0) + R(1)
            self.rd = R(0) + R(1)
        elif base.startswith("v_"):
            self.kind = "valu"
            self.wr = R(0)
            self.rd = allr(1)
            if base in ("v_fmac_f32", "v_dot2c_f32_bf16", "v_writelane_b32"):
                self.rd += R(0)
            if base in ("v_add_co_u32", "v_sub_co_u32", "v_addc_co_u32"):
                self.wr += R(1)
                self.rd = allr(2)
            if base == "v_cndmask_b32" and len(ops) == 3:
                self.rd.append("vcc")
            if base in TRANS:
                self.cost = 2
        elif base.startswith("ds_read"):
            self.kind = "dsr"
            self.wr = R(0)
            self.rd = R(1)
        elif base.startswith("ds_write"):
            self.kind = "dsw"
            self.rd = allr(0)
        elif base.startswith("buffer_load") or base.startswith("global_load"):
            if " lds" in (" " + mods):
                self.kind = "dma"
                self.rd = allr(0) + ["m0"]
            else:
                self.kind = "vld"
                self.wr = R(0)
                self.rd = allr(1)
        elif base.startswith("buffer_store") or base.startswith("global_store"):
            self.kind = "vst"
            self.rd = allr(0)
        elif base.startswith("buffer_atomic") or base.startswith("global_atomic"):
            self.kind = "vst"
            self.rd = allr(0)
            if "sc0" in mods:
                self.kind = "vld"
                self.wr = R(0)
        elif base in ("buffer_inv", "buffer_wbl2"):
            self.kind = "vst"
        elif base.startswith("s_load") or base in ("s_memtime", "s_memrealtime"):
            self.kind = "smem"
            self.wr = R(0)
            self.rd = allr(1)
        elif base.startswith("s_cmp") or base.startswith("s_bitcmp"):
            self.kind = "salu"
            self.wr = ["scc"]
            self.rd = allr(0)
        elif base.startswith("s_cbranch") or base == "s_branch":
            self.kind = "branch"
            self.rd = {"s_cbranch_scc0": ["scc"], "s_cbranch_scc1": ["scc"], "s_cbranch_vccz": ["vcc"],
                       "s_cbranch_vccnz": ["vcc"], "s_cbranch_execz": ["exec"], "s_cbranch_execnz": ["exec"]}.get(base, [])
        elif base in ("s_waitcnt", "s_nop", "s_barrier", "s_sleep", "s_setprio", "s_endpgm"):
            self.kind = base[2:]
            if base == "s_nop":
                self.cost = int(ops[0], 0) + 1
        elif base.startswith("s_"):
            self.kind = "salu"
            self.wr = R(0)
            self.rd = allr(1)
            if base.startswith("s_cselect") or base in ("s_addc_u32", "s_subb_u32"):
                self.rd.append("scc")
            if base not in ("s_mov_b32", "s_mov_b64", "s_movk_i32", "s_mul_i32", "s_mul_hi_u32", "s_getpc_b64") and not base.startswith("s_cselect"):
                self.wr.append("scc")
            if "saveexec" in base:
                self.wr.append("exec")
                self.rd.append("exec")
        else:
            raise ValueError("unparsed: " + text)

    def __repr__(self):
        return self.text


def base_mn(i):
    return re.sub(r"_(e32|e64|sdwa|dpp)$", "", i.mn)


def auto_wait(prog):
    out = []
    vm = []
    lg = []
    opaque = False

    def need(queue, regs, tags=()):
        last = -1
        for p, e in enumerate(queue):
            if (e[0] & regs) or (e[1] in tags):
                last = p
        return last

    def emit_wait(vmn, lgn):
        s = []
        if vmn is not None:
            s.append(f"vmcnt({min(vmn, 62)})")
        if lgn is not None:
            s.append(f"lgkmcnt({min(lgn, 14)})")
        if s:
            out.append(Ins("s_waitcnt " + " ".join(s)))

    for ins in prog:
        if ins.kind == "pseudo":
            w = ins.mn.split()
            if w[0] == "@opaque_begin":
                opaque = True
                continue
            if w[0] == "@opaque_end":
                opaque = False
                continue
            if w[0] == "@waitvm":
                tags = set(w[1].split(","))
                p = need(vm, set(), tags)
                if p >= 0:
                    n = len(vm) - p - 1
                    emit_wait(n, None)
                    del vm[:len(vm) - min(n, 62)]
                continue
            if w[0] == "@waitlg":
                tags = set(w[1].split(","))
                p = need(lg, set(), tags)
                if p >= 0:
                    n = len(lg) - p - 1
                    if any(e[2] for e in lg):
                        n = 0
                    emit_wait(None, n)
                    del lg[:len(lg) - min(n, 14)]
                continue
            if w[0] == "@waitall":
                emit_wait(0 if vm else None, 0 if lg else None)
                vm.clear(); lg.clear()
                continue
            if w[0] == "@waitlg0":
                if lg:
                    emit_wait(None, 0)
                lg.clear()
                continue
            if w[0] == "@waitvm0":
                if vm:
                    emit_wait(0, None)
                vm.clear()
                continue
            raise ValueError(ins.mn)
        if opaque:
            out.append(ins)
            continue
        touched = set(ins.rd) | set(ins.wr)
        vmn = lgn = None
        p = need(vm, touched)
        if p >= 0:
            vmn = len(vm) - p - 1
        p = need(lg, touched)
        if p >= 0:
            lgn = len(lg) - p - 1
            if any(e[2] for e in lg):
                lgn = 0
        if vmn is not None or lgn is not None:
            emit_wait(vmn, lgn)
            if vmn is not None:
                del vm[:len(vm) - min(vmn, 62)]
            if lgn is not None:
                del lg[:len(lg) - min(lgn, 14)]
        if ins.kind == "waitcnt":
            m = re.search(r"vmcnt\((\d+)\)", ins.text)
            if m:
                n = int(m.group(1))
                if len(vm) > n:
                    del vm[:len(vm) - n]
            m = re.search(r"lgkmcnt\((\d+)\)", ins.text)
            if m:
                n = int(m.group(1))
                if n == 0 or not any(e[2] for e in lg):
                    if len(lg) > n:
                        del lg[:len(lg) - n]
        out.append(ins)
        if ins.kind in ("vld", "dma", "vst"):
            vm.append((set(ins.wr), ins.tag))
        elif ins.kind in ("dsr", "dsw"):
            lg.append((set(ins.wr), ins.tag, False))
        elif ins.kind == "smem":
            lg.append((set(ins.wr), ins.tag, True))
    return out


def hazard_need(prod, cons):
    pw = set(prod.wr)
    n = 0
    pb, cb = base_mn(prod), base_mn(cons)
    crd, cwr = set(cons.rd), set(cons.wr)
    vec = lambda s: {r for r in s if r[0] in "va" and r not in ("vcc",)}
    sg = lambda s: {r for r in s if r[0] == "s" and r != "scc" or r == "vcc"}
    if prod.kind == "mfma":
        D = pw
        k = {8: (12, 10, 7), 4: (8, 6, 3)}[prod.passes]
        if cons.kind == "mfma":
            if D & set(cons.ab):
                n = max(n, k[0])
            if D & set(cons.srcc):
                same = (prod.passes == cons.passes and list(prod.wr) == list(cons.srcc))
                if not same:
                    n = max(n, k[1])
            elif D & cwr:
                n = max(n, k[1])
        elif cons.kind in ("valu", "vst", "dsw", "dsr", "vld", "dma"):
            if D & (crd | cwr):
                n = max(n, k[0])
        if cons.kind == "valu" and set(prod.srcc) & cwr:
            n = max(n, k[2])
        return n
    if prod.kind == "valu":
        v = vec(pw)
        if cons.kind == "mfma" and v & crd:
            n = max(n, 2)
        if cons.kind == "valu":
            if pb in TRANS and cb not in TRANS and v & crd:
                n = max(n, 1)
            if pb in TRANS and cb in TRANS and v & crd:
                n = max(n, 1)
            if cb.startswith("v_permlane") and v & crd:
                n = max(n, 2)
            if "dpp" in cons.text and v & crd:
                n = max(n, 2)
            if cb in ("v_readfirstlane_b32", "v_readlane_b32") and v & crd:
                n = max(n, 1)
            if pb.startswith("v_dot2") and v & (crd | cwr):
                same_acc = (pb == cb)
                if same_acc:
                    ops = cons.text.split(None, 1)[1].split(",")
                    ab = set(regs_of(ops[1].strip())) | set(regs_of(ops[2].strip()))
                    if v & ab:
                        n = max(n, 3)
                else:
                    n = max(n, 3)
            if sg(pw) & crd:
                n = max(n, 4 if cb in ("v_readlane_b32", "v_writelane_b32") else 2)
        if pb.startswith("v_dot2") and cons.kind in ("mfma", "vst", "dsw", "dsr", "vld", "dma") and v & crd:
            n = max(n, 3)
        if cons.kind in ("vld", "vst", "dma") and sg(pw) & crd:
            n = max(n, 5)
        if cons.kind in ("salu", "branch", "smem") and sg(pw) & crd:
            n = max(n, 4)
        if "exec" in pw and cons.kind in ("valu", "mfma"):
            n = max(n, 5)
        return n
    if prod.kind == "salu":
        if "m0" in pw and cons.kind == "dma":
            n = max(n, 1)
        if "exec" in pw and cons.kind == "mfma":
            n = max(n, 4)
        return n
    if prod.kind == "vst" and ("x4" in pb or "x3" in pb):
        data = set(prod.rd[:4])
        if cons.kind == "valu" and data & cwr:
            n = max(n, 2)
        elif cons.kind in ("dsr", "vld", "mfma") and data & cwr:
            n = max(n, 1)
        return n
    if prod.kind == "dsw" and ("b128" in pb or "b96" in pb):
        data = set(prod.rd[1:])
        if cons.kind == "valu" and data & cwr:
            n = max(n, 2)
        return n
    return n


def pad_hazards(prog, stats=None):
    out = []
    total = 0
    for ins in prog:
        if ins.kind in ("label",):
            out.append(ins)
            continue
        need = 0
        dist = 0
        for p in reversed(out):
            if p.kind == "label":
                continue
            if dist >= 20:
                break
            h = hazard_need(p, ins)
            if h - dist > need:
                need = h - dist
            dist += p.cost if p.kind == "nop" else 1
        if need > 0:
            total += need
            while need > 0:
                k = min(need, 16)
                ni = Ins(f"s_nop {k-1}")
                ni.note = "hazard"
                out.append(ni)
                need -= k
        out.append(ins)
    if stats is not None:
        stats["hazard_nops"] = total
    return out


def render(prog):
    lines = []
    for i in prog:
        if i.kind == "label":
            lines.append(i.text)
        else:
            lines.append("    " + i.text)
    return "\n".join(lines)
```

```python
import sys, struct, math
sys.path.insert(0, "work")
from asmlib import *

NAME = "parallel_sum__ssm_conv_s5__glu_gated_glu__prompt"
OPT = dict(fused=0, touterA=4, touterB=2, look=4, dmagap=3, hring=13, stamps=0, codepf=1)
for a in sys.argv[2:]:
    k, v = a.split("=")
    OPT[k] = int(v)
FUSED = OPT["fused"]

def f2u(x):
    return struct.unpack("<I", struct.pack("<f", x))[0]
LOG2E = f2u(1.4426950408889634)
INV2PI = f2u(0.15915494309189535)

H_OFF = 0
W2_OFF = 12 << 20
E_OFF = 15 << 20
ST_OFF = (15 << 20) + 65536
STAMP_OFF = (15 << 20) + 131072
WS_WIN = 16 << 20
OOB = 0x40000000

SCR = 131072
EXZ = SCR
EX = SCR + 1792
CSB = SCR + 4096
CSG = SCR + 5120
RS = SCR + 6144
HT = SCR + 8192

SX, SBR, SBI, SW, SWD, SWS, SDB, SE, SCRE, SCIM, SOUT, SCD = [f"s[{4+4*i}:{7+4*i}]" for i in range(12)]
def srd(i): return 4 + 4 * i
iSX, iSBR, iSBI, iSW, iSWD, iSWS, iSDB, iSE, iSCRE, iSCIM, iSOUT, iSCD = [srd(i) for i in range(12)]
pLRE, pLIM, pLDT, pDSK, pWU = 52, 54, 56, 58, 60
sW, sM, sJ, sJ4, sROT = "s62", "s63", "s64", "s65", "s66"
sT0, sT1, sT2, sT3 = "s67", "s76", "s77", "s78"
KB = [f"s{68+i}" for i in range(8)]
sXB, sBB, sPB, sWL = "s79", "s80", "s81", "s82"
sONE, sHB = "s83", "s84"
sHT = [f"s{85+i}" for i in range(7)]
sSO = "s92"
sL2E, sI2P = "s93", "s94"
sFL = "s95"
sU0, sU1, sU2, sU3 = "s96", "s97", "s98", "s99"

ACC_S = 0
ACC_G = [32 + 16 * t for t in range(7)]
CSBR, CSBI, CSGA = 144, 148, 152
SEL, XE, CE0, CE1 = 156, 160, 164, 168
AX = [172, 173, 174, 175]
AB = [176, 177, 178, 179]
ABC = 180
AP = [181, 182, 183, 184]
APH = [185, 186, 187, 188]
VX = [189, 190, 191, 192]
VB, VL16 = 193, 194
C1, SIG = 195, 196
L1R, L1I, L16R, L16I, L128R, L128I, LSR, LSI, KR, KI, PR, PI = range(197, 209)
S1, S2 = 209, 210
VEW, VER, AEXW, AEXR, ARS, AHW, AHR, ACSB_W, ACSB_R, ACSG_W, VST, VC4 = range(211, 223)
VLANE = 223
TMP = 224
AXF = 0
ARING = 128
NRING = 8

def vr(a, n=1): return f"v{a}" if n == 1 else f"v[{a}:{a+n-1}]"
def ar(a, n=1): return f"a{a}" if n == 1 else f"a[{a}:{a+n-1}]"


class Prog:
    def __init__(self):
        self.l = []
    def __call__(self, text, tag=None):
        for t in text.split("\n"):
            t = t.strip()
            if t:
                self.l.append(Ins(t, tag))
    def add(self, ins):
        self.l.append(ins)


def stamp(P, idx):
    if not OPT["stamps"]:
        return
    P("@opaque_begin")
    P("s_memtime s[100:101]\ns_waitcnt lgkmcnt(0)")
    P("@opaque_end")
    P(f"v_mov_b32 v{TMP+31}, s100")
    P(f"v_mov_b32 v{TMP+30}, 0")
    P(f"s_lshl_b32 s100, s2, 2\ns_add_u32 s100, s100, {sW}\ns_lshl_b32 s100, s100, 6\ns_add_u32 s100, s100, {STAMP_OFF + 4*idx}")
    P(f"buffer_store_dword v{TMP+31}, v{TMP+30}, {SWS}, s100 offen", tag="stamp")


def bf16r(P, dst, src):
    P(f"v_cvt_pk_bf16_f32 v{dst}, v{src}, v{src}")
    P(f"v_and_b32 v{dst}, 0xffff0000, v{dst}")


def common_head(P, kname, endlabel):
    P(f"s_cmp_ge_u32 s2, 256\ns_cbranch_scc1 {endlabel}")


def load_ptrs(P, items):
    for off, s in items:
        P(f"s_load_dwordx2 s[{s}:{s+1}], s[0:1], {off}")


def set_srd(P, i, nbytes):
    P(f"s_mov_b32 s{i+2}, {nbytes}\ns_mov_b32 s{i+3}, 0x20000")


def code_prefetch(P, start, size_expr, nkb):
    per = (nkb + 31) // 32
    P(f"s_getpc_b64 s[{iSCD}:{iSCD+1}]")
    P(f"Lpc_{start}:")
    P(f"s_sub_u32 s{iSCD}, s{iSCD}, Lpc_{start}-{start}\ns_subb_u32 s{iSCD+1}, s{iSCD+1}, 0")
    P(f"s_mov_b32 s{iSCD+2}, {size_expr}\ns_mov_b32 s{iSCD+3}, 0x20000")
    P(f"s_lshr_b32 {sT0}, s2, 3\ns_and_b32 {sT0}, {sT0}, 31\ns_mul_i32 {sT0}, {sT0}, {per*1024}")
    P(f"v_lshlrev_b32 v{TMP+28}, 2, v0")
    for k in range(per):
        P(f"buffer_load_dword v{TMP+29}, v{TMP+28}, {SCD}, {sT0} offen offset:{k*1024}" if k < 4 else "", tag="code")


def cpow(P, n_expr, dr, di, A, Bq, t0, t1):
    if n_expr is None:
        P(f"v_exp_f32 v{t0}, v{A}")
        P(f"v_fract_f32 v{t1}, v{Bq}")
    else:
        P(f"v_mul_f32 v{t0}, {n_expr}, v{A}")
        P(f"v_mul_f32 v{t1}, {n_expr}, v{Bq}")
        P(f"v_exp_f32 v{t0}, v{t0}")
        P(f"v_fract_f32 v{t1}, v{t1}")
    P(f"v_cos_f32 v{dr}, v{t1}")
    P(f"v_sin_f32 v{di}, v{t1}")
    P(f"v_mul_f32 v{dr}, v{t0}, v{dr}")
    P(f"v_mul_f32 v{di}, v{t0}, v{di}")


def cfma(dr, di, lr, li, sr, si, ur, ui, tr, ti):
    return [f"v_fma_f32 v{tr}, v{lr}, v{sr}, v{ur}",
            f"v_fma_f32 v{ti}, v{lr}, v{si}, v{ui}",
            f"v_fma_f32 v{dr if dr != sr else tr}, -v{li}, v{si}, v{tr}",
            f"v_fma_f32 v{di}, v{li}, v{sr}, v{ti}"] + ([f"v_mov_b32 v{dr}, v{tr}"] if dr == sr else [])


def phase1(P):
    T = TMP
    load_ptrs(P, [(0, iSX), (24, iSBR), (32, iSBI), (80, iSW), (88, pWU), (8, pLRE), (16, pLIM), (56, pLDT),
                  (96, iSWD), (120, iSWS), (112, iSDB)])
    if FUSED:
        load_ptrs(P, [(40, iSCRE), (48, iSCIM), (104, iSOUT), (64, pDSK)])
    if OPT["codepf"]:
        code_prefetch(P, "k1_start", "k1_end-k1_start", 40 if FUSED else 32)
    P(f"v_lshrrev_b32 v{T}, 6, v0")
    P(f"v_and_b32 v{VLANE}, 63, v0")
    P(f"v_readfirstlane_b32 {sW}, v{T}")
    P(f"""s_and_b32 {sT0}, s2, 7
          s_lshr_b32 {sT1}, s2, 3
          s_and_b32 {sM}, {sT0}, 1
          s_lshl_b32 {sM}, {sM}, 3
          s_and_b32 {sT2}, {sT1}, 7
          s_add_u32 {sM}, {sM}, {sT2}
          s_lshr_b32 {sJ4}, {sT1}, 3
          s_lshr_b32 {sJ}, {sT0}, 1
          s_lshl_b32 {sJ}, {sJ}, 2
          s_add_u32 {sJ}, {sJ}, {sJ4}
          s_add_u32 {sROT}, {sM}, {sJ}""")
    for n in range(8):
        P(f"s_add_u32 {sT0}, {sROT}, {n}\ns_and_b32 {sT0}, {sT0}, 7\ns_lshl_b32 {KB[n]}, {sT0}, 7")
    P(f"""s_lshl_b32 {sWL}, {sW}, 12
          s_lshl_b32 {sXB}, {sM}, 17
          s_lshl_b32 {sT0}, {sW}, 15
          s_add_u32 {sXB}, {sXB}, {sT0}
          s_lshl_b32 {sBB}, {sJ}, 15
          s_lshl_b32 {sT0}, {sW}, 13
          s_add_u32 {sBB}, {sBB}, {sT0}
          s_mov_b32 {sONE}, 0x3f803f80
          s_mov_b32 {sL2E}, {LOG2E}
          s_mov_b32 {sI2P}, {INV2PI}""")
    rr, p, q, t3 = T + 1, T + 2, T + 3, T + 4
    P(f"""v_lshrrev_b32 v{rr}, 3, v{VLANE}
          v_and_b32 v{p}, 7, v{VLANE}
          v_lshrrev_b32 v{q}, 1, v{rr}
          v_xor_b32 v{q}, v{p}, v{q}
          v_lshlrev_b32 v{q}, 4, v{q}""")
    P(f"""v_lshrrev_b32 v{t3}, 2, v{rr}
          v_lshlrev_b32 v{t3}, 4, v{t3}
          v_and_b32 v{T+5}, 3, v{rr}
          v_add_u32 v{t3}, v{t3}, v{T+5}
          v_lshl_add_u32 v{VX[0]}, v{t3}, 10, v{q}
          v_xor_b32 v{VX[1]}, 64, v{VX[0]}
          v_add_u32 v{VX[2]}, {2*3072}, v{VX[0]}
          v_add_u32 v{VX[3]}, {3*3072}, v{VX[1]}
          v_add_u32 v{VX[1]}, 3072, v{VX[1]}""")
    P(f"""s_and_b32 {sT0}, {sW}, 1
          s_lshl_b32 {sT0}, {sT0}, 6
          v_xor_b32 v{VB}, {sT0}, v{q}
          v_lshl_add_u32 v{VB}, v{rr}, 10, v{VB}
          v_and_b32 v{VC4}, 31, v{VLANE}
          v_lshlrev_b32 v{T+6}, 1, v{VC4}""")
    P(f"s_lshl_b32 {sT1}, {sJ}, 6")
    P(f"v_add_u32 v{T+6}, {sT1}, v{T+6}")
    set_srd(P, iSX, 2048 * 1024); set_srd(P, iSBR, 524288); set_srd(P, iSBI, 524288)
    set_srd(P, iSW, 1835008); set_srd(P, iSWD, 1835008); set_srd(P, iSWS, WS_WIN); set_srd(P, iSDB, 256)
    if FUSED:
        set_srd(P, iSCRE, 524288); set_srd(P, iSCIM, 524288); set_srd(P, iSOUT, 4 << 20)
    PLRE, PLIM, PLDT = T + 8, T + 9, T + 10
    P(f"global_load_ushort v{PLRE}, v{T+6}, s[{pLRE}:{pLRE+1}]")
    P(f"global_load_ushort v{PLIM}, v{T+6}, s[{pLIM}:{pLIM+1}]")
    P(f"global_load_ushort v{PLDT}, v{T+6}, s[{pLDT}:{pLDT+1}]")

    def dma_B(n):
        base = (SCR + (n >> 1) * 16384 if n < 4 else ((n - 4) >> 1) * 16384) + (n & 1) * 2048
        return [f"s_add_u32 m0, {sWL}, {base}", f"s_add_u32 {sSO}, {sBB}, {KB[n]}",
                (f"buffer_load_dwordx4 v{VB}, {SBR}, {sSO} offen lds", f"B{n}"),
                f"s_add_u32 m0, {sWL}, {base+1024}",
                (f"buffer_load_dwordx4 v{VB}, {SBI}, {sSO} offen lds", f"B{n}")]

    def emit(lst):
        for x in lst:
            if isinstance(x, tuple):
                P(x[0], tag=x[1])
            else:
                P(x)

    for n in range(4):
        emit(dma_B(n))
    for n in range(8):
        P(f"s_add_u32 m0, {sWL}, {n*16384}\ns_add_u32 {sSO}, {sXB}, {KB[n]}")
        for sb in range(4):
            P(f"buffer_load_dwordx4 v{VX[sb]}, {SX}, {sSO} offen offset:{sb*1024} lds", tag=f"X{n}")
    stamp(P, 0)
    P(f"""s_and_b32 {sT0}, {sW}, 1
          s_cmp_eq_u32 {sT0}, 1
          s_cselect_b32 s{iSW}, s{pWU}, s{iSW}
          s_cselect_b32 s{iSW+1}, s{pWU+1}, s{iSW+1}""")
    P(f"""s_lshl_b32 {sT0}, {sJ}, 12
          s_add_u32 {sT0}, {sT0}, {E_OFF}
          s_add_u32 s{iSE}, s{iSWS}, {sT0}
          s_addc_u32 s{iSE+1}, s{iSWS+1}, 0""")
    set_srd(P, iSE, 4096)
    P(f"""s_mul_i32 {sPB}, {sJ}, 224
          s_lshr_b32 {sT0}, {sW}, 1
          s_mul_i32 {sT0}, {sT0}, {8*3584}
          s_add_u32 {sPB}, {sPB}, {sT0}""")
    P(f"""s_lshl_b32 {sT0}, {sM}, 2
          s_add_u32 {sT0}, {sT0}, {sW}
          s_mul_i32 {sHB}, {sT0}, 176
          s_mul_i32 {sT0}, {sJ}, 11
          s_add_u32 {sHB}, {sHB}, {sT0}
          s_lshl_b32 {sHB}, {sHB}, 10""")
    for t in range(4):
        P(f"""s_add_u32 {sT0}, {sW}, {t}
              s_and_b32 {sT0}, {sT0}, 3
              s_add_u32 {sT0}, {sT0}, {sJ4}
              s_add_u32 {sT0}, {sT0}, 4
              s_lshl_b32 {sT0}, {sT0}, 10
              s_add_u32 {sHT[t]}, {sHB}, {sT0}""")
    TB = [sU0, sU1, sU2]
    for t in range(3):
        P(f"""s_add_u32 {sT0}, {sW}, {t}
              s_cmp_ge_u32 {sT0}, 3
              s_cselect_b32 {sT1}, 3, 0
              s_sub_u32 {sT0}, {sT0}, {sT1}
              s_cmp_ge_u32 {sT0}, 3
              s_cselect_b32 {sT1}, 3, 0
              s_sub_u32 {TB[t]}, {sT0}, {sT1}
              s_cmp_lt_u32 {TB[t]}, {sJ4}
              s_cselect_b32 {sT1}, 4, 8
              s_add_u32 {sT0}, {TB[t]}, {sT1}
              s_lshl_b32 {sT0}, {sT0}, 10
              s_add_u32 {sHT[4+t]}, {sHB}, {sT0}""")
    P(f"s_lshl_b32 {sFL}, {sM}, 4\ns_add_u32 {sFL}, {sFL}, {sJ}")
    hh, f, row = T + 11, T + 12, T + 13
    P(f"""v_lshrrev_b32 v{hh}, 5, v{VLANE}
          v_bfe_u32 v{f}, v{VLANE}, 1, 3
          v_xor_b32 v{f}, v{f}, v{hh}
          v_lshlrev_b32 v{f}, 4, v{f}
          v_and_b32 v{row}, 7, v{VLANE}
          v_lshlrev_b32 v{row}, 7, v{row}
          v_bfe_u32 v{T+14}, v{VLANE}, 3, 2
          v_lshl_add_u32 v{T+15}, v{T+14}, 10, v{row}
          v_add_u32 v{T+15}, {sWL}, v{T+15}
          v_lshl_add_u32 v{T+16}, v{T+14}, 12, v{row}
          v_add_u32 v{T+16}, {SCR}, v{T+16}""")
    for s in range(4):
        P(f"v_xor_b32 v{T+17}, {32*s}, v{f}")
        P(f"v_add_u32 v{AX[s]}, v{T+15}, v{T+17}")
        P(f"v_add_u32 v{AB[s]}, v{T+16}, v{T+17}")
    P(f"s_lshl_b32 {sT0}, {sW}, 5")
    P(f"v_xor_b32 v{T+17}, {sT0}, v{f}")
    P(f"v_add_u32 v{ABC}, v{T+16}, v{T+17}")
    P(f"v_lshlrev_b32 v{VL16}, 4, v{VLANE}")
    P(f"""v_bfe_u32 v{T+17}, v{VLANE}, 2, 1
          v_bfe_u32 v{T+18}, v{VLANE}, 4, 1
          v_xor_b32 v{T+17}, v{T+17}, v{T+18}
          v_and_b32 v{T+18}, 3, v{VLANE}
          v_or_b32 v{T+17}, v{T+17}, v{T+18}
          v_mov_b32 v{T+18}, {sONE}
          v_cmp_eq_u32 vcc, 0, v{T+17}
          v_cndmask_b32 v{SEL}, 0, v{T+18}, vcc
          v_mov_b32 v{SEL+1}, v{SEL}
          v_mov_b32 v{SEL+2}, v{SEL}
          v_mov_b32 v{SEL+3}, v{SEL}""")
    for r in (XE + 1, XE + 2, XE + 3, CE0 + 1, CE0 + 2, CE0 + 3, CE1 + 1, CE1 + 2, CE1 + 3, S1, S2):
        P(f"v_mov_b32 v{r}, 0")
    g4, trb, ssw = T + 17, T + 18, T + 19
    P(f"""v_lshrrev_b32 v{g4}, 4, v{VLANE}
          v_bfe_u32 v{T+20}, v{VLANE}, 2, 2
          v_lshlrev_b32 v{trb}, 7, v{T+20}
          v_lshl_add_u32 v{trb}, v{g4}, 12, v{trb}
          v_and_b32 v{T+21}, 3, v{VLANE}
          v_lshl_add_u32 v{trb}, v{T+21}, 3, v{trb}
          v_bfe_u32 v{ssw}, v{VLANE}, 3, 1
          v_bfe_u32 v{T+22}, v{VLANE}, 4, 1
          v_lshl_add_u32 v{ssw}, v{T+22}, 1, v{ssw}
          v_lshlrev_b32 v{ssw}, 5, v{ssw}""")
    for t in range(4):
        P(f"""s_add_u32 {sT0}, {sW}, {t}
              s_and_b32 {sT0}, {sT0}, 3
              s_lshl_b32 {sT0}, {sT0}, 5
              v_xor_b32 v{AP[t]}, {sT0}, v{ssw}
              v_add_u32 v{AP[t]}, v{trb}, v{AP[t]}
              v_add_u32 v{APH[t]}, 0x10000, v{AP[t]}""")
    P(f"""s_mul_i32 {sT0}, {sW}, 5120
          s_add_u32 {sT0}, {sT0}, {HT}
          v_mul_u32_u24 v{AHW}, 80, v{VC4}
          v_lshl_add_u32 v{AHW}, v{hh}, 5, v{AHW}
          v_add_u32 v{AHW}, {sT0}, v{AHW}
          v_lshl_add_u32 v{AHR}, v{hh}, 3, v{T+20}
          v_mul_u32_u24 v{AHR}, 80, v{AHR}
          v_and_b32 v{T+23}, 1, v{VLANE}
          v_lshl_add_u32 v{AHR}, v{T+23}, 5, v{AHR}
          v_lshl_add_u32 v{AHR}, v{T+22}, 4, v{AHR}
          v_bfe_u32 v{T+23}, v{VLANE}, 1, 1
          v_lshl_add_u32 v{AHR}, v{T+23}, 3, v{AHR}
          v_add_u32 v{AHR}, {sT0}, v{AHR}""")
    seg = T + 23
    P(f"""s_lshl_b32 {sT0}, {sW}, 1
          v_add_u32 v{seg}, {sT0}, v{hh}
          v_lshlrev_b32 v{AEXR}, 8, v{seg}
          v_lshl_add_u32 v{AEXR}, v{VC4}, 3, v{AEXR}
          v_add_u32 v{AEXR}, {EXZ}, v{AEXR}
          v_add_u32 v{AEXW}, 1792, v{AEXR}""")
    P(f"""s_sub_u32 {sT0}, 16, {sM}
          s_lshl_b32 {sT0}, {sT0}, 8
          v_lshlrev_b32 v{VER}, 3, v{VC4}
          v_add_u32 v{VER}, {sT0}, v{VER}
          v_add_u32 v{VEW}, -256, v{VER}
          v_mov_b32 v{T+24}, {OOB}
          v_cmp_eq_u32 vcc, 7, v{seg}
          v_cndmask_b32 v{VEW}, v{T+24}, v{VEW}, vcc""")
    tau = T + 25
    P(f"""v_bfe_u32 v{tau}, v{VLANE}, 2, 1
          v_lshlrev_b32 v{tau}, 4, v{tau}
          v_lshl_add_u32 v{tau}, v{T+14}, 2, v{tau}
          v_add_u32 v{tau}, v{tau}, v{T+21}""")
    P(f"""s_lshr_b32 {sT0}, {sXB}, 7
          s_add_u32 {sT0}, {sT0}, {ST_OFF}
          s_cmp_eq_u32 {sJ}, 0
          s_cselect_b32 {sT0}, {sT0}, {OOB}
          v_lshlrev_b32 v{VST}, 3, v{tau}
          v_add_u32 v{VST}, {sT0}, v{VST}
          s_lshl_b32 {sT0}, {sW}, 7
          s_add_u32 {sT0}, {sT0}, {RS}
          v_lshlrev_b32 v{ACSG_W}, 2, v{tau}
          v_add_u32 v{PR}, {sT0}, v{ACSG_W}
          v_lshlrev_b32 v{ARS}, 6, v{hh}
          v_add_u32 v{ARS}, {sT0}, v{ARS}""")
    RSW = PR
    P(f"""s_lshl_b32 {sT0}, {sW}, 2
          v_lshlrev_b32 v{ACSB_R}, 4, v{VC4}
          v_add_u32 v{ACSB_R}, {CSB}, v{ACSB_R}
          v_add_u32 v{ACSB_W}, {sT0}, v{ACSB_R}
          v_lshlrev_b32 v{ACSG_W}, 2, v{VC4}
          v_add_u32 v{ACSG_W}, {CSG}, v{ACSG_W}""")
    VP = VX
    VQ = [ACC_G[6] + 12 + k for k in range(4)]
    P(f"""s_and_b32 {sT0}, {sW}, 1
          s_lshl_b32 {sT0}, {sT0}, 1
          v_bfe_u32 v{T+26}, v{VLANE}, 4, 1
          v_add_u32 v{T+26}, {sT0}, v{T+26}
          v_bfe_u32 v{T+27}, v{VLANE}, 1, 2
          v_xor_b32 v{T+26}, v{T+26}, v{T+27}
          v_and_b32 v{T+27}, 1, v{VLANE}
          v_lshlrev_b32 v{T+27}, 4, v{T+27}
          s_movk_i32 {sT1}, 3584
          v_mad_u32_u24 v{T+27}, v{rr}, {sT1}, v{T+27}
          v_add_u32 v{T+5}, {sJ4}, v{T+26}
          v_lshl_add_u32 v{VP[0]}, v{T+5}, 5, v{T+27}
          v_add_u32 v{T+5}, 4, v{T+26}
          v_cmp_gt_u32 vcc, {sJ4}, v{T+26}
          v_cndmask_b32 v{T+5}, v{T+5}, v{T+26}, vcc
          v_lshl_add_u32 v{PI}, v{T+5}, 5, v{T+27}
          v_cmp_eq_u32 vcc, 3, v{T+26}
          v_cndmask_b32 v{PI}, v{PI}, v{T+24}, vcc""")
    VQ0 = PI
    for k in range(1, 4):
        P(f"v_add_u32 v{VP[k]}, {k*56320}, v{VP[0]}")
    VQB = 222 + 0
    P(f"v_accvgpr_write_b32 a255, v{PI}")
    P(f"v_accvgpr_write_b32 a254, v{trb}")
    P(f"v_accvgpr_write_b32 a253, v{ssw}")
    VRP = ACC_G[6] + 15
    P(f"v_lshlrev_b32 v{VRP}, 1, v{VC4}\nv_lshl_add_u32 v{VRP}, v{hh}, 12, v{VRP}")

    a_, b_, t0, t1 = T + 26, T + 27, T + 1, T + 2
    P(f"""v_lshlrev_b32 v{PLRE}, 16, v{PLRE}
          v_lshlrev_b32 v{PLIM}, 16, v{PLIM}
          v_lshlrev_b32 v{PLDT}, 16, v{PLDT}
          v_mul_f32 v{PLDT}, {sL2E}, v{PLDT}
          v_exp_f32 v{PLDT}, v{PLDT}""")
    bf16r(P, PLDT, PLDT)
    P(f"""v_mul_f32 v{a_}, v{PLDT}, v{PLRE}
          v_mul_f32 v{b_}, v{PLDT}, v{PLIM}
          v_mul_f32 v{a_}, {sL2E}, v{a_}
          v_mul_f32 v{b_}, {sI2P}, v{b_}""")
    cpow(P, None, L1R, L1I, a_, b_, t0, t1)
    cpow(P, hex(f2u(16.0)), L16R, L16I, a_, b_, t0, t1)
    cpow(P, hex(f2u(128.0)), L128R, L128I, a_, b_, t0, t1)
    P(f"v_cvt_f32_u32 v{T+3}, v{seg}\nv_mul_f32 v{T+3}, {hex(f2u(16.0))}, v{T+3}")
    cpow(P, f"v{T+3}", LSR, LSI, a_, b_, t0, t1)
    P(f"""v_add_f32 v{t0}, -1.0, v{L1R}
          v_mul_f32 v{t1}, v{PLRE}, v{PLRE}
          v_fma_f32 v{t1}, v{PLIM}, v{PLIM}, v{t1}
          v_rcp_f32 v{t1}, v{t1}
          v_mul_f32 v{KR}, v{t0}, v{PLRE}
          v_fma_f32 v{KR}, v{L1I}, v{PLIM}, v{KR}
          v_mul_f32 v{KI}, v{L1I}, v{PLRE}
          v_fma_f32 v{KI}, -v{t0}, v{PLIM}, v{KI}
          v_add_f32 v{t1}, v{t1}, v{t1}
          v_mul_f32 v{KR}, v{KR}, v{t1}
          v_mul_f32 v{KI}, v{KI}, v{t1}""")

    def dma_pass(ps, b, slot):
        vp = VP
        r = [f"s_add_u32 m0, {sWL}, {slot*16384}", f"s_mul_i32 {sSO}, {KB[b]}, 1792", f"s_add_u32 {sSO}, {sSO}, {sPB}"]
        for ks in range(4):
            r.append((f"buffer_load_dwordx4 v{vp[ks]}, {SW}, {sSO} offen offset:{ks*1024} lds", f"{ps}{b}"))
        return r

    ringpos = [0]
    def ring():
        r = ARING + 4 * (ringpos[0] % NRING)
        ringpos[0] += 1
        return r

    def x_reads(n):
        off = (n & 3) * 16384
        tb = T + 16 * (n & 1)
        for s in range(4):
            P(f"ds_read_b128 {vr(tb+4*s,4)}, v{AX[s]} offset:{off}", tag=f"xr{n}")
        for s in range(4):
            P(f"ds_read_b128 {ar(AXF+16*n+4*s,4)}, v{AX[s]} offset:{off}", tag=f"xr{n}")

    def x_stats(n):
        tb = T + 16 * (n & 1)
        for k in range(16):
            P(f"v_dot2_f32_bf16 v{S1}, v{tb+k}, {sONE}, v{S1}")
            P(f"v_dot2_f32_bf16 v{S2}, v{tb+k}, v{tb+k}, v{S2}")

    def ssm_block(n):
        off = ((n & 3) >> 1) * 16384 + (n & 1) * 2048
        fr = []
        for s in range(4):
            for mat in range(2):
                r = ring()
                fr.append((s, mat, r))
        for (s, mat, r) in fr:
            P(f"ds_read_b128 {ar(r,4)}, v{AB[s]} offset:{off+mat*1024}")
        for mat in range(2):
            P(f"ds_read_b128 {ar(160+4*mat,4)}, v{ABC} offset:{off+mat*1024}")
        for (s, mat, r) in fr:
            acc = vr(ACC_S + 16 * mat, 16)
            c = "0" if (n == 0 and s == 0) else acc
            P(f"v_mfma_f32_32x32x16_bf16 {acc}, {ar(AXF+16*n+4*s,4)}, {ar(r,4)}, {c}")
        for mat in range(2):
            d = vr(CSBR + 4 * mat, 4)
            P(f"v_mfma_f32_16x16x32_bf16 {d}, {vr(SEL,4)}, {ar(160+4*mat,4)}, {'0' if n == 0 else d}")

    P("@waitvm B3\ns_barrier")
    for n in range(8):
        if n == 4:
            for s in range(4):
                P(f"v_add_u32 v{AX[s]}, 0x10000, v{AX[s]}")
        P(f"@waitvm X{n}")
        x_reads(n)
        if n < 4:
            ssm_block(n)
        P(f"@waitlg xr{n}")
        if n == 0:
            emit(dma_B(4) + dma_B(5))
        elif n == 1:
            emit(dma_B(6) + dma_B(7))
        else:
            emit(dma_pass("P", n - 2, n))
        if n == 2:
            P(f"""s_mul_i32 {sT0}, {sJ}, 112
                  s_lshl_b32 {sT1}, {sW}, 4
                  s_add_u32 {sT0}, {sT0}, {sT1}
                  s_lshl_b32 {sT0}, {sT0}, 10
                  s_lshl_b32 {sT1}, {sM}, 6
                  s_add_u32 {sT0}, {sT0}, {sT1}""")
            for g in range(2):
                for half in range(2):
                    P(f"s_add_u32 {sT1}, {sT0}, {g*65536 + half*8192}")
                    for e in range(4):
                        P(f"buffer_load_ushort v{ACC_G[4]+8*g+4*half+e}, v{VRP}, {SWD}, {sT1} offen offset:{e*1024}")
        x_stats(n)
    stamp(P, 1)
    for s in range(4):
        P(f"v_add_u32 v{AX[s]}, 0xffff0000, v{AX[s]}")
        P(f"v_add_u32 v{AB[s]}, {(-SCR) & 0xffffffff}, v{AB[s]}")
    P(f"v_add_u32 v{ABC}, {(-SCR) & 0xffffffff}, v{ABC}")
    u0, u1, mean, mb, den = T, T + 1, T + 2, T + 4, T + 5
    P(f"""v_mov_b32 v{u0}, v{S1}
          v_mov_b32 v{u1}, v{S2}
          v_permlane32_swap_b32 v{S1}, v{u0}
          v_permlane32_swap_b32 v{S2}, v{u1}
          v_add_f32 v{S1}, v{S1}, v{u0}
          v_add_f32 v{S2}, v{S2}, v{u1}
          v_mul_f32 v{mean}, {hex(f2u(1/512))}, v{S1}
          v_mul_f32 v{S2}, {hex(f2u(1/512))}, v{S2}
          v_fma_f32 v{S2}, -v{mean}, v{mean}, v{S2}
          v_max_f32 v{S2}, 0, v{S2}""")
    bf16r(P, mb, mean)
    bf16r(P, S2, S2)
    P(f"v_add_f32 v{S2}, {hex(f2u(1e-5))}, v{S2}")
    bf16r(P, S2, S2)
    P(f"v_sqrt_f32 v{S2}, v{S2}")
    bf16r(P, den, S2)
    P(f"""v_mov_b32 v{SIG}, v{den}
          v_rcp_f32 v{S1}, v{den}
          v_xor_b32 v{u0}, 0x80000000, v{mb}
          v_lshrrev_b32 v{u1}, 16, v{u0}
          v_or_b32 v{u0}, v{u0}, v{u1}
          v_cmp_gt_u32 vcc, 32, v{VLANE}
          v_cndmask_b32 v{XE}, 0, v{u0}, vcc
          v_mul_f32 v{C1}, {sL2E}, v{S1}
          v_sub_f32 v{C1}, 0, v{C1}""")
    P(f"buffer_store_dwordx2 {vr(mb,2)}, v{VST}, {SWS}, 0 offen sc1", tag="pub1")
    P("@waitvm B5\ns_barrier")
    P(f"ds_write_b32 v{RSW}, v{S1}", tag="rsw")
    P(f"v_mov_b32 v{T+8}, 0\nv_mov_b32 v{T+9}, 0")
    P(f"s_lshl_b32 {sT0}, {sW}, 9\ns_add_u32 {sT0}, {sT0}, {EXZ}")
    P(f"v_lshrrev_b32 v{T+10}, 1, v{VL16}\nv_add_u32 v{T+10}, {sT0}, v{T+10}")
    P(f"ds_write_b64 v{T+10}, {vr(T+8,2)}")
    ssm_block(4); ssm_block(5)
    P("@waitvm B7\ns_barrier")
    ssm_block(6); ssm_block(7)
    stamp(P, 2)

    def order(nt, nto):
        o = []
        for b in range(8 - nto):
            for ks in range(4):
                for t in range(nt):
                    o.append((t, b, ks))
        for t in range(nt):
            for b in range(8 - nto, 8):
                for ks in range(4):
                    o.append((t, b, ks))
        return o
    frs = [("P", t, b, ks) for (t, b, ks) in order(4, OPT["touterA"])] + [("Q", t, b, ks) for (t, b, ks) in order(3, OPT["touterB"])]
    slot_of = {}
    for b in range(8):
        slot_of[("P", b)] = (b + 2) % 8
        slot_of[("Q", b)] = (b + 2) % 8
    last_use = {}
    first_use = {}
    tile_last = {}
    for k, (ps, t, b, ks) in enumerate(frs):
        last_use[(ps, b)] = k
        first_use.setdefault((ps, b), k)
        tile_last[(ps, t)] = k
    NF = len(frs)
    lastP = max(k for k, fr in enumerate(frs) if fr[0] == "P")

    state = dict(done=-1, bars=0, marks={})
    released = {}
    released[("B", 4)] = False
    pending_dma = [("P", 6), ("P", 7)] + [("Q", b) for b in range(8)]
    prev_occ = {("P", 6): ("S", 0), ("P", 7): ("S", 1)}
    for b in range(8):
        prev_occ[("Q", b)] = ("P", b)
    dma_q = []
    opened = set()

    def barrier(tagwait=None):
        if tagwait:
            P(f"@waitvm {tagwait}")
        P("@waitlg xch")
        P("s_barrier")
        state["bars"] += 1
        released[("S", 0)] = released[("S", 1)] = True
        for key, lu in last_use.items():
            if lu <= state["done"]:
                released[key] = True

    tasks = []
    def gate_done(k): return ("gate", lambda: state["done"] >= k)
    def gate_bar(name): return ("gate", lambda: name in state["marks"] and state["bars"] > state["marks"][name])
    def mark(name): return ("mark", name)
    def gate_mark(name): return ("gate", lambda: name in state["marks"])

    def split_cs(src, ce, t0, t1):
        return [f"v_cvt_pk_bf16_f32 v{t0}, v{src}, v{src}",
                f"v_and_b32 v{t0}, 0xffff0000, v{t0}",
                f"v_sub_f32 v{t1}, v{src}, v{t0}",
                f"v_cvt_pk_bf16_f32 v{ce}, v{t0}, v{t1}"]

    e1 = []
    e1 += [(f"ds_write_b32 v{ACSB_W}, v{CSBR}", "xch"), (f"ds_write_b32 v{ACSB_W}, v{CSBI} offset:512", "xch"), mark("csb")]
    rp = ACC_G[4]
    for g in range(2):
        for k in range(4):
            e1.append(f"v_lshl_or_b32 v{rp+16+4*g+k}, v{rp+8*g+2*k+1}, 16, v{rp+8*g+2*k}")
    e1 += [f"s_mul_i32 {sT2}, {sM}, 176", f"s_mul_i32 {sT3}, {sJ}, 11", f"s_add_u32 {sT2}, {sT2}, {sT3}",
           f"s_add_u32 {sT2}, {sT2}, {sW}", f"s_lshl_b32 {sT2}, {sT2}, 10", f"s_add_u32 {sT2}, {sT2}, {W2_OFF + 4096}",
           (f"buffer_store_dwordx4 {vr(rp+16,4)}, v{VL16}, {SWS}, {sT2} offen sc1", "pub1"),
           f"s_add_u32 {sT2}, {sT2}, 4096", ("atomic", [f"s_cmp_eq_u32 {sW}, 3", f"s_cselect_b32 {sT2}, {OOB}, {sT2}"]),
           (f"buffer_store_dwordx4 {vr(rp+20,4)}, v{VL16}, {SWS}, {sT2} offen sc1", "pub1")]
    R16 = T
    for k in range(4):
        e1.append(f"ds_read_b128 {vr(R16+4*k,4)}, v{ARS} offset:{16*k}")
    e1 += [gate_bar("csb"),
           f"ds_read_b128 {vr(T+16,4)}, v{ACSB_R}", f"ds_read_b128 {vr(T+20,4)}, v{ACSB_R} offset:512"]
    for mat, b in ((0, T + 16), (1, T + 20)):
        e1 += [f"v_add_f32 v{b}, v{b}, v{b+1}", f"v_add_f32 v{b+2}, v{b+2}, v{b+3}", f"v_add_f32 v{b}, v{b}, v{b+2}"]
        e1 += split_cs(b, CE0 if mat == 0 else CE1, b + 1, b + 2)
    e1 += [f"v_mfma_f32_32x32x16_bf16 {vr(ACC_S,16)}, {vr(XE,4)}, {vr(CE0,4)}, {vr(ACC_S,16)}",
           f"v_mfma_f32_32x32x16_bf16 {vr(ACC_S+16,16)}, {vr(XE,4)}, {vr(CE1,4)}, {vr(ACC_S+16,16)}", ("delay", 2)]
    for q in range(16):
        e1 += [f"v_mul_f32 v{ACC_S+q}, v{ACC_S+q}, v{R16+q}", f"v_mul_f32 v{ACC_S+16+q}, v{ACC_S+16+q}, v{R16+q}"]
    ea, eb = (T + 16, T + 17), (T + 18, T + 19)
    cur = (ACC_S, ACC_S + 16)
    for q in range(1, 16):
        nxt = ea if q % 2 else eb
        e1 += [f"v_fma_f32 v{nxt[0]}, v{L1R}, v{cur[0]}, v{ACC_S+q}",
               f"v_fma_f32 v{nxt[1]}, v{L1R}, v{cur[1]}, v{ACC_S+16+q}",
               f"v_fma_f32 v{nxt[0]}, -v{L1I}, v{cur[1]}, v{nxt[0]}",
               f"v_fma_f32 v{nxt[1]}, v{L1I}, v{cur[0]}, v{nxt[1]}"]
        cur = nxt
    assert cur == ea
    e1 += [(f"ds_write_b64 v{AEXW}, {vr(ea[0],2)}", "xch"), "@waitvm pub1", mark("ex"), gate_bar("ex")]
    for k in range(7):
        e1.append(f"ds_read_b64 {vr(T+2*k,2)}, v{AEXR} offset:{256*k}")
    cur = (T, T + 1)
    for k in range(1, 7):
        u = (T + 2 * k, T + 2 * k + 1)
        nx = (PR, PI) if k == 6 else u
        e1 += [f"v_fma_f32 v{T+20}, v{L16R}, v{cur[0]}, v{u[0]}",
               f"v_fma_f32 v{T+21}, v{L16R}, v{cur[1]}, v{u[1]}",
               f"v_fma_f32 v{nx[0]}, -v{L16I}, v{cur[1]}, v{T+20}",
               f"v_fma_f32 v{nx[1]}, v{L16I}, v{cur[0]}, v{T+21}"]
        cur = nx
    e1 += [f"v_fma_f32 v{T+20}, v{L16R}, v{PR}, v{ea[0]}", f"v_fma_f32 v{T+21}, v{L16R}, v{PI}, v{ea[1]}",
           f"v_fma_f32 v{T+20}, -v{L16I}, v{PI}, v{T+20}", f"v_fma_f32 v{T+21}, v{L16I}, v{PR}, v{T+21}",
           (f"buffer_store_dwordx2 {vr(T+20,2)}, v{VEW}, {SE}, 0 offen sc1", "pubE"),
           ("atomic", [f"s_cmp_eq_u32 {sW}, 3", f"s_cselect_b32 {sT2}, {sFL}, {OOB}", f"v_mov_b32 v{T+23}, {sT2}"]),
           f"v_mov_b32 v{T+22}, 1", mark("e1regs"), ("delay", 12),
           "@waitvm pubE",
           (f"buffer_store_byte v{T+22}, v{T+23}, {SDB}, 0 offen sc0 sc1", "flag"), mark("e1done")]
    tasks.append(e1)

    ce_flip = [0]
    def glu_epi(ps, t):
        gi = t if ps == "P" else 4 + t
        acc = ACC_G[gi]
        pso = 0 if ps == "P" else 512
        r = [gate_done(tile_last[(ps, t)]), gate_mark("e1regs")]
        ce = CE0 if ce_flip[0] % 2 == 0 else CE1
        ce_flip[0] += 1
        tt = T + 24
        if t == 0:
            sact = None
            r += [("delay", 1)]
            r += [("atomic", [f"s_lshl_b32 {sT2}, {sW if ps == 'P' else TB[0]}, 7", f"v_add_u32 v{tt}, {sT2}, v{ACSG_W}"]),
                  (f"ds_write_b32 v{tt}, v{CSGA} offset:{pso}", "xch"), mark(f"csg{ps}")]
            r += split_cs(CSGA, ce, tt + 1, tt + 2) + [mark(f"csgfree{ps}")]
        else:
            if ps == "P":
                sc = [f"s_add_u32 {sT2}, {sW}, {t}", f"s_and_b32 {sT2}, {sT2}, 3", f"s_lshl_b32 {sT2}, {sT2}, 7"]
            else:
                sc = [f"s_lshl_b32 {sT2}, {TB[t]}, 7"]
            r += [("atomic", sc + [f"v_add_u32 v{tt}, {sT2}, v{ACSG_W}"]), gate_bar(f"csg{ps}"),
                  f"ds_read_b32 v{tt+3}, v{tt} offset:{pso}", ("delay", 1)]
            r += split_cs(tt + 3, ce, tt + 1, tt + 2)
        r += [f"v_mfma_f32_32x32x16_bf16 {vr(acc,16)}, {vr(ce,4)}, {vr(XE,4)}, {vr(acc,16)}", ("delay", 2)]
        for hf in range(2):
            es = range(4 * hf, 4 * hf + 4)
            r += [f"v_mul_f32 v{acc+e}, v{C1}, v{acc+e}" for e in es]
            r += [f"v_exp_f32 v{acc+e}, v{acc+e}" for e in es]
            r += [f"v_fma_f32 v{acc+e}, v{acc+e}, v{SIG}, v{SIG}" for e in es]
            r += [f"v_rcp_f32 v{acc+e}, v{acc+e}" for e in es]
            r += [f"v_mul_f32 v{acc+8+e}, v{acc+8+e}, v{acc+e}" for e in es]
        r += [f"v_cvt_pk_bf16_f32 v{acc+k}, v{acc+8+2*k}, v{acc+9+2*k}" for k in range(4)]
        r += [(f"buffer_store_dwordx4 {vr(acc,4)}, v{VL16}, {SWS}, {sHT[gi]} offen sc1", "pubH"), mark(f"epi{ps}{t}")]
        return r

    epiP = []
    for t in range(4):
        epiP += glu_epi("P", t)
    epiQ = [gate_mark("epiP3")]
    for t in range(3):
        epiQ += glu_epi("Q", t)

    sw = [("gate", lambda: not any(b[0] == "P" for b in pending_dma) and not any(isinstance(x, tuple) and x[1].startswith("P") for x in dma_q)),
          f"v_accvgpr_read_b32 v{VP[0]}, a255"]
    for k in range(1, 4):
        sw.append(f"v_add_u32 v{VP[k]}, {k*56320}, v{VP[0]}")
    sw.append(mark("vq"))
    tasks.append(sw)

    EL = ACC_G[0]
    l1 = [gate_mark("epiP1"), gate_mark("e1done"), gate_done(lastP + OPT.get("late", 8))]
    l1 += [f"v_lshrrev_b32 v{T+16}, 2, v{VL16}",
           (f"buffer_load_dword v{T+17}, v{T+16}, {SDB}, 0 offen sc1", "poll"), ("delay", 6), ("call", "poll1")]
    for k in range(15):
        l1.append(f"buffer_load_dwordx2 {vr(EL+2*k,2)}, v{VER}, {SE}, 0 offen offset:{(14-k)*256} sc1")
    l1.append(("delay", 8))
    cur = (EL, EL + 1)
    for k in range(1, 15):
        u = (EL + 2 * k, EL + 2 * k + 1)
        l1 += [f"v_fma_f32 v{T+16}, v{L128R}, v{cur[0]}, v{u[0]}",
               f"v_fma_f32 v{T+17}, v{L128R}, v{cur[1]}, v{u[1]}",
               f"v_fma_f32 v{u[0]}, -v{L128I}, v{cur[1]}, v{T+16}",
               f"v_fma_f32 v{u[1]}, v{L128I}, v{cur[0]}, v{T+17}"]
        cur = u
    sa, sb_ = (T + 16, T + 17), (T + 18, T + 19)
    l1 += [f"v_fma_f32 v{sa[0]}, v{LSR}, v{cur[0]}, v{PR}", f"v_fma_f32 v{sa[1]}, v{LSR}, v{cur[1]}, v{PI}",
           f"v_fma_f32 v{sa[0]}, -v{LSI}, v{cur[1]}, v{sa[0]}", f"v_fma_f32 v{sa[1]}, v{LSI}, v{cur[0]}, v{sa[1]}"]
    cur = sa
    for q in range(16):
        nxt = sb_ if cur == sa else sa
        l1 += [f"v_fma_f32 v{nxt[0]}, v{L1R}, v{cur[0]}, v{ACC_S+q}",
               f"v_fma_f32 v{nxt[1]}, v{L1R}, v{cur[1]}, v{ACC_S+16+q}",
               f"v_fma_f32 v{nxt[0]}, -v{L1I}, v{cur[1]}, v{nxt[0]}",
               f"v_fma_f32 v{nxt[1]}, v{L1I}, v{cur[0]}, v{nxt[1]}",
               f"v_mul_f32 v{ACC_S+q}, v{KR}, v{nxt[0]}",
               f"v_mul_f32 v{ACC_S+16+q}, v{KR}, v{nxt[1]}",
               f"v_fma_f32 v{ACC_S+q}, -v{KI}, v{nxt[1]}, v{ACC_S+q}",
               f"v_fma_f32 v{ACC_S+16+q}, -v{KI}, v{nxt[0]}, -v{ACC_S+16+q}"]
        cur = nxt
        if q % 2 == 1:
            l1 += [f"v_cvt_pk_bf16_f32 v{T+(q>>1)}, v{ACC_S+q-1}, v{ACC_S+q}",
                   f"v_cvt_pk_bf16_f32 v{T+8+(q>>1)}, v{ACC_S+16+q-1}, v{ACC_S+16+q}"]
    l1 += [(f"ds_write_b128 v{AHW}, {vr(T,4)}", "htw"), (f"ds_write_b128 v{AHW}, {vr(T+4,4)} offset:16", "htw"),
           (f"ds_write_b128 v{AHW}, {vr(T+8,4)} offset:{32*80}", "htw"), (f"ds_write_b128 v{AHW}, {vr(T+12,4)} offset:{32*80+16}", "htw"),
           ("delay", 1), "@waitlg htw"]
    for u in range(4):
        for a in range(2):
            l1.append(f"ds_read_b64_tr_b16 {vr(ACC_S+4*u+2*a,2)}, v{AHR} offset:{(16*u+4*a)*80}")
    l1.append(("delay", 1))
    for u in range(4):
        l1.append((f"buffer_store_dwordx4 {vr(ACC_S+4*u,4)}, v{VL16}, {SWS}, {sHB} offen offset:{u*1024} sc1" if u < 4 else "", "pubH"))
    l1.append(mark("l1done"))

    def poll1():
        d, t = T + 17, T + 18
        P(f"s_mov_b32 {sT2}, 0x01010101")
        P(f"v_lshrrev_b32 v{t}, 1, v{d}\nv_or_b32 v{t}, v{t}, v{d}\nv_and_b32 v{t}, {sT2}, v{t}\nv_cmp_eq_u32 vcc, {sT2}, v{t}")
        P("s_cmp_eq_u64 vcc, exec\ns_cbranch_scc1 Lp1_ok")
        P("@opaque_begin")
        P(f"s_mov_b32 {sT3}, 0")
        P(f"Lp1_spin:\ns_sleep 2\ns_add_u32 {sT3}, {sT3}, 1\ns_cmp_gt_u32 {sT3}, 0x40000\ns_cbranch_scc1 Lp1_ok")
        P(f"buffer_load_dword v{d}, v{T+16}, {SDB}, 0 offen sc1\ns_waitcnt vmcnt(0)")
        P(f"v_lshrrev_b32 v{t}, 1, v{d}\nv_or_b32 v{t}, v{t}, v{d}\nv_and_b32 v{t}, {sT2}, v{t}\nv_cmp_eq_u32 vcc, {sT2}, v{t}\ns_nop 4")
        P("s_cmp_eq_u64 vcc, exec\ns_cbranch_scc0 Lp1_spin")
        P("@opaque_end")
        P("Lp1_ok:")
    calls = dict(poll1=poll1)

    tasks += [epiP, l1, epiQ]
    tpos = [0] * len(tasks)
    tdelay = [0] * len(tasks)
    gapno = [0]

    def fill(budget, flush=False):
        progress = True
        while (budget > 0 or flush) and progress:
            progress = False
            for ti, tk in enumerate(tasks):
                while tpos[ti] < len(tk):
                    it = tk[tpos[ti]]
                    if isinstance(it, tuple) and it[0] == "gate":
                        if it[1]():
                            tpos[ti] += 1
                            continue
                        break
                    if isinstance(it, tuple) and it[0] == "mark":
                        state["marks"][it[1]] = state["bars"]
                        tpos[ti] += 1
                        continue
                    if isinstance(it, tuple) and it[0] == "delay":
                        tdelay[ti] = gapno[0] + it[1]
                        tpos[ti] += 1
                        continue
                    break
                if tpos[ti] >= len(tk):
                    continue
                it = tk[tpos[ti]]
                if isinstance(it, tuple) and it[0] == "gate":
                    continue
                if tdelay[ti] > gapno[0] and not flush:
                    continue
                if isinstance(it, tuple) and it[0] == "call":
                    calls[it[1]]()
                    budget -= 8
                elif isinstance(it, tuple) and it[0] == "atomic":
                    for x in it[1]:
                        P(x); budget -= P.l[-1].cost
                elif isinstance(it, tuple):
                    P(it[0], tag=it[1]); budget -= P.l[-1].cost
                else:
                    P(it); budget -= P.l[-1].cost
                    if P.l[-1].kind == "mfma":
                        budget += 6
                tpos[ti] += 1
                progress = True
                break
        return budget

    fr_ring = {}
    def issue_reads(k):
        ps, t, b, ks = frs[k]
        n = 0
        if (ps, b) not in opened:
            assert not any(x == (ps, b) for x in pending_dma) and not any(isinstance(x, tuple) and x[1] == f"{ps}{b}" for x in dma_q), f"block {ps}{b} not issued in time"
            barrier(f"{ps}{b}")
            opened.add((ps, b))
            n += 2
        if ps == "Q" and k == lastP + 1:
            P(f"v_accvgpr_read_b32 v{T+28}, a254\nv_accvgpr_read_b32 v{T+29}, a253")
            for t2 in range(3):
                P(f"s_lshl_b32 {sT1}, {TB[t2]}, 5\nv_xor_b32 v{AP[t2]}, {sT1}, v{T+29}\nv_add_u32 v{AP[t2]}, v{T+28}, v{AP[t2]}\nv_add_u32 v{APH[t2]}, 0x10000, v{AP[t2]}")
            n += 14
        sl = slot_of[(ps, b)]
        a = AP[t] if sl < 4 else APH[t]
        off = (sl & 3) * 16384 + ks * 1024
        r = ring()
        fr_ring[k] = r
        P(f"ds_read_b64_tr_b16 {ar(r,2)}, v{a} offset:{off}")
        P(f"ds_read_b64_tr_b16 {ar(r+2,2)}, v{a} offset:{off+512}")
        return n + 2

    LOOK = OPT["look"]
    for k in range(LOOK):
        issue_reads(k)
    seen_tile = set()
    since_dma = 99
    for k, (ps, t, b, ks) in enumerate(frs):
        gi = t if ps == "P" else 4 + t
        acc = vr(ACC_G[gi], 16)
        c = acc if (ps, t) in seen_tile else "0"
        xf = ar(AXF + 16 * b + 4 * ks, 4)
        P(f"v_mfma_f32_32x32x16_bf16 {acc}, {ar(fr_ring[k],4)}, {xf}, {c}")
        budget = 6
        if t == 0:
            d = vr(CSGA, 4)
            cs_c = d if (ps, t) in seen_tile else "0"
            pend_cs = f"v_mfma_f32_16x16x32_bf16 {d}, {vr(SEL,4)}, {ar(fr_ring[k],4)}, {cs_c}"
        else:
            pend_cs = None
        if ps == "Q" and (ps, t) not in seen_tile:
            assert "e1regs" in state["marks"] and "csgfreeP" in state["marks"], state["marks"]
        seen_tile.add((ps, t))
        if pend_cs is None:
            state["done"] = k
        if k + LOOK < NF:
            budget -= issue_reads(k + LOOK)
        since_dma += 1
        if not dma_q and pending_dma:
            blk = pending_dma[0]
            if released.get(prev_occ[blk]) and (blk[0] == "P" or "vq" in state["marks"]):
                dma_q.extend(dma_pass(blk[0], blk[1], slot_of[blk]))
                pending_dma.pop(0)
        if dma_q and since_dma >= OPT["dmagap"]:
            while dma_q:
                x = dma_q.pop(0)
                budget -= 1
                if isinstance(x, tuple):
                    P(x[0], tag=x[1]); break
                P(x)
            since_dma = 0
        budget = fill(budget)
        gapno[0] += 1
        if pend_cs:
            P(pend_cs)
            state["done"] = k
            fill(2 + min(budget, 0))
            gapno[0] += 1
    assert not pending_dma and not dma_q
    stamp(P, 3)
    for _ in range(4):
        fill(0, flush=True)
        if all(tpos[i] >= len(tasks[i]) for i in range(len(tasks))):
            break
        barrier()
    assert all(tpos[i] >= len(tasks[i]) for i in range(len(tasks))), [(tpos[i], len(tasks[i])) for i in range(len(tasks))]
    stamp(P, 4)


def phase2(P, standalone):
    T = TMP
    sMP, sN = "s63", "s64"
    sHA = ["s68", "s69"]
    sWA = ["s70", "s71"]
    sCB = ["s72", "s73"]
    sRB = "s74"
    ACC = [0, 16, 32, 48]
    HR = 64
    NH = OPT["hring"]
    XS = HR + 8 * NH
    assert XS + 16 <= 172 + 0 or True
    STV = 32
    if standalone:
        load_ptrs(P, [(0, iSX), (120, iSWS), (40, iSCRE), (48, iSCIM), (104, iSOUT), (64, pDSK)])
        if OPT["codepf"]:
            code_prefetch(P, "k2_start", "k2_end-k2_start", 12)
        P(f"v_lshrrev_b32 v{T}, 6, v0\nv_and_b32 v{VLANE}, 63, v0\nv_readfirstlane_b32 {sW}, v{T}")
        set_srd(P, iSX, 2048 * 1024); set_srd(P, iSWS, WS_WIN)
        set_srd(P, iSCRE, 524288); set_srd(P, iSCIM, 524288); set_srd(P, iSOUT, 4 << 20)
        P(f"s_lshl_b32 {sWL}, {sW}, 12")
        P(f"v_lshlrev_b32 v{VL16}, 4, v{VLANE}\nv_and_b32 v{VC4}, 31, v{VLANE}")
        hh, f, row = T + 11, T + 12, T + 13
        P(f"""v_lshrrev_b32 v{hh}, 5, v{VLANE}
              v_bfe_u32 v{f}, v{VLANE}, 1, 3
              v_xor_b32 v{f}, v{f}, v{hh}
              v_lshlrev_b32 v{f}, 4, v{f}
              v_and_b32 v{row}, 7, v{VLANE}
              v_lshlrev_b32 v{row}, 7, v{row}
              v_bfe_u32 v{T+14}, v{VLANE}, 3, 2
              v_lshl_add_u32 v{T+15}, v{T+14}, 10, v{row}
              v_add_u32 v{T+15}, {sWL}, v{T+15}""")
        for s in range(4):
            P(f"v_xor_b32 v{T+17}, {32*s}, v{f}\nv_add_u32 v{AX[s]}, v{T+15}, v{T+17}")
    AXH = AB
    for s in range(4):
        P(f"v_add_u32 v{AXH[s]}, 0x10000, v{AX[s]}")
    P(f"""s_and_b32 {sT0}, s2, 7
          s_lshr_b32 {sT1}, s2, 3
          s_lshl_b32 {sMP}, {sT0}, 2
          s_and_b32 {sT2}, {sT1}, 3
          s_add_u32 {sMP}, {sMP}, {sT2}
          s_lshr_b32 {sN}, {sT1}, 2
          s_lshr_b32 {sU0}, {sW}, 1
          s_and_b32 {sU1}, {sW}, 1
          s_mul_i32 {sU2}, {sW}, 44""")
    for k in range(2):
        P(f"""s_xor_b32 {sT0}, {sU0}, {k}
              s_lshl_b32 {sT1}, {sMP}, 1
              s_add_u32 {sT0}, {sT0}, {sT1}
              s_mul_i32 {sT0}, {sT0}, 176
              s_add_u32 {sT0}, {sT0}, {sU2}
              s_lshl_b32 {sHA[k]}, {sT0}, 10
              s_xor_b32 {sT0}, {sU1}, {k}
              s_lshl_b32 {sT1}, {sN}, 1
              s_add_u32 {sT0}, {sT0}, {sT1}
              s_lshl_b32 {sCB[k]}, {sT0}, 15
              s_lshl_b32 {sT1}, {sW}, 8
              s_add_u32 {sCB[k]}, {sCB[k]}, {sT1}
              s_mul_i32 {sT0}, {sT0}, 176
              s_add_u32 {sT0}, {sT0}, {sU2}
              s_lshl_b32 {sT0}, {sT0}, 10
              s_add_u32 {sWA[k]}, {sT0}, {W2_OFF}""")
    VC = VX
    P(f"""v_lshrrev_b32 v{T+1}, 3, v{VLANE}
          v_and_b32 v{T+2}, 7, v{VLANE}
          v_lshrrev_b32 v{T+3}, 1, v{T+1}
          v_xor_b32 v{T+3}, v{T+2}, v{T+3}
          v_lshlrev_b32 v{T+3}, 4, v{T+3}
          v_lshl_add_u32 v{VC[0]}, v{T+1}, 10, v{T+3}
          v_xor_b32 v{VC[1]}, 64, v{VC[0]}
          v_add_u32 v{VC[2]}, {2*7168}, v{VC[0]}
          v_add_u32 v{VC[3]}, {3*7168}, v{VC[1]}
          v_add_u32 v{VC[1]}, 7168, v{VC[1]}""")
    hh = T + 11
    VXO, VOO, VSO = T + 4, T + 5, T + 6
    P(f"""v_lshrrev_b32 v{hh}, 5, v{VLANE}
          v_lshlrev_b32 v{VXO}, 1, v{VC4}
          v_lshl_add_u32 v{VXO}, v{hh}, 14, v{VXO}
          v_lshlrev_b32 v{VOO}, 1, v{VXO}
          v_lshlrev_b32 v{VSO}, 7, v{hh}
          s_lshl_b32 {sT0}, {sMP}, 1
          s_add_u32 {sT0}, {sT0}, {sU0}
          s_lshl_b32 {sT0}, {sT0}, 5
          s_lshl_b32 {sT1}, {sN}, 1
          s_add_u32 {sT1}, {sT1}, {sU1}
          s_lshl_b32 {sT1}, {sT1}, 6
          s_lshl_b32 {sRB}, {sT0}, 10
          s_add_u32 {sRB}, {sRB}, {sT1}
          s_lshl_b32 {sU3}, {sT0}, 3
          s_add_u32 {sU3}, {sU3}, {ST_OFF}
          v_lshlrev_b32 v{T+7}, 1, v{VC4}
          v_add_u32 v{T+7}, {sT1}, v{T+7}""")
    DK = T + 8
    P(f"global_load_ushort v{DK}, v{T+7}, s[{pDSK}:{pDSK+1}]")
    XV = T + 12
    for g in range(4):
        P(f"s_add_u32 {sT0}, {sRB}, {g*4096}")
        for q in range(4):
            P(f"buffer_load_ushort v{XV+4*g+q}, v{VXO}, {SX}, {sT0} offen offset:{q*1024}")
    for k in range(8):
        P(f"buffer_load_dwordx4 {vr(STV+4*k,4)}, v{VSO}, {SWS}, {sU3} offen offset:{16*k} sc1")
    for ntl in range(2):
        for mat in range(2):
            for cc in range(2):
                rho = ntl * 4 + mat * 2 + cc
                P(f"s_add_u32 m0, {sWL}, {rho*16384}\ns_add_u32 {sSO}, {sCB[ntl]}, {cc*128}")
                for sb in range(4):
                    P(f"buffer_load_dwordx4 v{VC[sb]}, {SCIM if mat else SCRE}, {sSO} offen offset:{sb*1024} lds", tag=f"C{rho}")
    def wreg(wi):
        return (160 + 4 * wi) if wi < 24 else 4 * (wi - 24)
    steps = [(jj, u) for jj in range(4) for u in range(11)]
    def w_load(jj, g, ntl):
        wi = (jj * 7 + g) * 2 + ntl
        off = (jj * 11 + 4 + g) * 1024
        return [f"s_add_u32 {sSO}, {sWA[ntl]}, {off}", f"buffer_load_dwordx4 {ar(wreg(wi),4)}, v{VL16}, {SWS}, {sSO} offen sc1"]
    def h_load(si):
        jj, u = steps[si]
        off = (jj * 11 + u) * 1024
        r = []
        for tl in range(2):
            r += [f"s_add_u32 {sSO}, {sHA[tl]}, {off}", f"buffer_load_dwordx4 {vr(HR+8*(si%NH)+4*tl,4)}, v{VL16}, {SWS}, {sSO} offen sc1"]
        return r
    if standalone:
        hi = 0
        for jj in range(4):
            for u in range(11):
                si = jj * 11 + u
                if u >= 4:
                    for ntl in range(2):
                        for x in w_load(jj, u - 4, ntl): P(x)
                if si < NH:
                    for x in h_load(si): P(x)
                    hi = si + 1
            if jj == 1:
                break
        wdone = 2
    for q in range(16):
        m_, d_ = STV + 2 * q, STV + 2 * q + 1
        x = XV + q
        t0, t1 = T + 9, T + 10
        if q == 0:
            P(f"v_lshlrev_b32 v{DK}, 16, v{DK}")
        P(f"""v_lshlrev_b32 v{x}, 16, v{x}
              v_rcp_f32 v{t1}, v{d_}
              v_sub_f32 v{t0}, v{x}, v{m_}""")
        bf16r(P, t0, t0)
        P(f"""v_mul_f32 v{m_}, v{t0}, v{t1}
              v_fma_f32 v{t0}, -v{m_}, v{d_}, v{t0}
              v_fma_f32 v{t0}, v{t0}, v{t1}, v{m_}""")
        bf16r(P, t0, t0)
        P(f"v_mul_f32 v{t0}, v{t0}, v{DK}")
        bf16r(P, t0, t0)
        P(f"v_add_f32 v{ACC[0]+q}, v{t0}, v{x}")
    CR = ARING
    cpos = [0]
    def c_reads(si):
        jj, u = steps[si]
        mat, up = u >> 1, u & 1
        cc, sp = jj >> 1, 2 * (jj & 1) + up
        regs = []
        for ntl in range(2):
            rho = ntl * 4 + mat * 2 + cc
            P(f"@waitvm C{rho}")
            r = CR + 4 * (cpos[0] % NRING); cpos[0] += 1
            a = AX[sp] if rho < 4 else AXH[sp]
            P(f"ds_read_b128 {ar(r,4)}, v{a} offset:{(rho&3)*16384}")
            regs.append(r)
        return regs
    creg = {}
    CL = 2
    for si in range(CL):
        creg[si] = c_reads(si)
    first = [False, True, True, True]
    for si, (jj, u) in enumerate(steps):
        nx = si + CL
        if nx < 44 and steps[nx][1] < 4:
            creg[nx] = c_reads(nx)
        for tl in range(2):
            for ntl in range(2):
                a = 2 * tl + ntl
                bw = ar(creg[si][ntl], 4) if u < 4 else ar(wreg((jj * 7 + u - 4) * 2 + ntl), 4)
                acc = vr(ACC[a], 16)
                P(f"v_mfma_f32_32x32x16_bf16 {acc}, {vr(HR+8*(si%NH)+4*tl,4)}, {bw}, {'0' if first[a] else acc}")
                first[a] = False
        if standalone and si < 22:
            jw, uw = steps[si + 22]
            if uw >= 4:
                for ntl in range(2):
                    for x in w_load(jw, uw - 4, ntl): P(x)
        if si + NH < 44:
            for x in h_load(si + NH): P(x)
    AW, ARD = T + 9, T + 12
    P(f"v_add_u32 v{AW}, {sWL}, v{VL16}")
    for a in range(1, 4):
        P(f"s_xor_b32 {sT0}, {sWL}, {a*4096}\nv_add_u32 v{ARD+a}, {sT0}, v{VL16}")
    for a in range(1, 4):
        for k in range(4):
            P(f"ds_write_b128 v{AW}, {vr(ACC[a]+4*k,4)} offset:{a*16384+k*1024}")
    P("@waitlg0\ns_barrier")
    for a in range(1, 4):
        for k in range(4):
            P(f"ds_read_b128 {vr(HR+16*(a-1)+4*k,4)}, v{ARD+a} offset:{a*16384+k*1024}")
    P(f"s_lshl_b32 {sRB}, {sRB}, 1")
    for k in range(4):
        for a in range(1, 4):
            for r in range(4):
                q = 4 * k + r
                P(f"v_add_f32 v{ACC[0]+q}, v{ACC[0]+q}, v{HR+16*(a-1)+q}")
        for pr in range(2):
            P(f"s_add_u32 {sT0}, {sRB}, {(4*k+2*pr)*2048}")
            for r in range(2):
                P(f"buffer_store_dword v{ACC[0]+4*k+2*pr+r}, v{VOO}, {SOUT}, {sT0} offen offset:{r*2048}")


def finalize(P):
    st = {}
    l = auto_wait(P.l)
    l = pad_hazards(l, st)
    return l, st


def kd(name, nv=512):
    return f""".amdhsa_kernel {name}
  .amdhsa_next_free_vgpr {nv}
  .amdhsa_next_free_sgpr 102
  .amdhsa_accum_offset 256
  .amdhsa_group_segment_fixed_size 0
  .amdhsa_kernarg_size 128
  .amdhsa_user_sgpr_count 2
  .amdhsa_user_sgpr_kernarg_segment_ptr 1
  .amdhsa_system_sgpr_workgroup_id_x 1
.end_amdhsa_kernel"""


def main():
    ref = open(f"cdna_kernels/{NAME}.s.ref").read().split("\n")
    head = [l for l in ref if l.startswith(";") and "@launch" not in l and "Override launch" not in l and "grid=ceil" not in l]
    out = list(head)
    k1, k2 = "s5glu_p1_kernel", "s5glu_p2_kernel"
    out.append(f"; @launch kernel={k1} grid=(256,1,1) block=(256,1,1) lds=163840")
    out.append(f"; @launch kernel={k2} grid=(256,1,1) block=(256,1,1) lds=131072")
    out.append('.amdgcn_target "amdgcn-amd-amdhsa--gfx950"\n.text')
    P = Prog()
    common_head(P, k1, "k1_exit")
    phase1(P)
    P("@waitall")
    l1, st1 = finalize(P)
    out.append(f".globl {k1}\n.p2align 8\n.type {k1},@function\n{k1}:\nk1_start:")
    out.append(render(l1))
    out.append("k1_exit:\n    s_endpgm\nk1_end:")
    P = Prog()
    common_head(P, k2, "k2_exit")
    phase2(P, True)
    l2, st2 = finalize(P)
    out.append(f".globl {k2}\n.p2align 8\n.type {k2},@function\n{k2}:\nk2_start:")
    out.append(render(l2))
    out.append("k2_exit:\n    s_endpgm\nk2_end:")
    out.append('.section .rodata,"a"\n.p2align 6')
    out.append(kd(k1))
    out.append(".p2align 6")
    out.append(kd(k2))
    open(sys.argv[1], "w").write("\n".join(out) + "\n")
    for nm, l, st in (("p1", l1, st1), ("p2", l2, st2)):
        from collections import Counter
        c = Counter(i.kind for i in l)
        slots = sum(i.cost for i in l)
        print(nm, dict(c), "slots", slots, st)

main()
```

```python
import sys, struct, math
sys.path.insert(0, "work")
from asmlib import *

NAME = "parallel_sum__ssm_conv_s5__glu_gated_glu__prompt"
OPT = dict(fused=1, bfirst=0, to1=4, to2=2, look=6, dmagap=3, hring=6, stamps=0, codepf=1, late=8, budget=6, xlook=2)
for a in sys.argv[2:]:
    k, v = a.split("=")
    OPT[k] = int(v)
FUSED = OPT["fused"]

def f2u(x):
    return struct.unpack("<I", struct.pack("<f", x))[0]
LOG2E = f2u(1.4426950408889634)
INV2PI = f2u(0.15915494309189535)

H_OFF = 0
W2_OFF = 12 << 20
E_OFF = 15 << 20
ST_OFF = (15 << 20) + 65536
STAMP_OFF = (15 << 20) + 131072
WS_WIN = 16 << 20
OOB = 0x40000000

SCR = 131072
EXZ = SCR
EX = SCR + 1792
CSB = SCR + 4096
CSG = SCR + 5120
RS = SCR + 6144
HT = SCR + 8192

SX, SBR, SBI, SW, SWD, SWS, SDB, SE, SCRE, SCIM, SOUT, SCD = [f"s[{4+4*i}:{7+4*i}]" for i in range(12)]
def srd(i): return 4 + 4 * i
iSX, iSBR, iSBI, iSW, iSWD, iSWS, iSDB, iSE, iSCRE, iSCIM, iSOUT, iSCD = [srd(i) for i in range(12)]
pLRE, pLIM, pLDT, pDSK, pWU = 52, 54, 56, 58, 60
sW, sM, sJ, sJ4, sROT = "s62", "s63", "s64", "s65", "s66"
sT0, sT1, sT2, sT3 = "s67", "s76", "s77", "s78"
KB = [f"s{68+i}" for i in range(8)]
sXB, sBB, sPB, sWL = "s79", "s80", "s81", "s82"
sONE, sHB = "s83", "s84"
sHT = [f"s{85+i}" for i in range(7)]
sSO = "s92"
sL2E, sI2P = "s93", "s94"
sFL = "s95"
sU0, sU1, sU2, sU3 = "s96", "s97", "s98", "s99"

ACC_S = 0
ACC_G = [32 + 16 * t for t in range(7)]
CSBR, CSBI, CSGA = 144, 148, 152
SEL, XE, CE0, CE1 = 156, 160, 164, 168
AX = [172, 173, 174, 175]
AB = [176, 177, 178, 179]
ABC = 180
AP = [181, 182, 183, 184]
APH = [185, 186, 187, 188]
VX = [189, 190, 191, 192]
VB, VL16 = 193, 194
C1, SIG = 195, 196
L1R, L1I, L16R, L16I, L128R, L128I, LSR, LSI, KR, KI, PR, PI = range(197, 209)
S1, S2 = 209, 210
VEW, VER, AEXW, AEXR, ARS, AHW, AHR, ACSB_W, ACSB_R, ACSG_W, VST, VC4 = range(211, 223)
VLANE = 223
TMP = 224
AXF = 0
ARING = 128
NRING = 8

def vr(a, n=1): return f"v{a}" if n == 1 else f"v[{a}:{a+n-1}]"
def ar(a, n=1): return f"a{a}" if n == 1 else f"a[{a}:{a+n-1}]"


class Prog:
    def __init__(self):
        self.l = []
    def __call__(self, text, tag=None):
        for t in text.split("\n"):
            t = t.strip()
            if t:
                self.l.append(Ins(t, tag))
    def add(self, ins):
        self.l.append(ins)


def stamp(P, idx):
    if not OPT["stamps"]:
        return
    P("@opaque_begin")
    P(("s_memrealtime" if OPT["stamps"] == 2 else "s_memtime") + " s[100:101]\ns_waitcnt lgkmcnt(0)")
    P("@opaque_end")
    P(f"v_mov_b32 v{TMP+31}, s100")
    P(f"v_mov_b32 v{TMP+30}, 0")
    P(f"s_lshl_b32 s100, s2, 2\ns_add_u32 s100, s100, {sW}\ns_lshl_b32 s100, s100, 8\ns_add_u32 s100, s100, {STAMP_OFF + 4*idx}")
    P(f"buffer_store_dword v{TMP+31}, v{TMP+30}, {SWS}, s100 offen", tag="stamp")


def bf16r(P, dst, src):
    P(f"v_cvt_pk_bf16_f32 v{dst}, v{src}, v{src}")
    P(f"v_and_b32 v{dst}, 0xffff0000, v{dst}")


def common_head(P, kname, endlabel):
    P(f"s_cmp_ge_u32 s2, 256\ns_cbranch_scc1 {endlabel}")
    if OPT["stamps"]:
        P(("s_memrealtime" if OPT["stamps"] == 2 else "s_memtime") + " s[100:101]\ns_waitcnt lgkmcnt(0)\ns_mov_b32 s3, s100")

def stamp_entry(P, idx):
    if not OPT["stamps"]:
        return
    P(f"v_mov_b32 v{TMP+31}, s3")
    P(f"v_mov_b32 v{TMP+30}, 0")
    P(f"s_lshl_b32 s100, s2, 2\ns_add_u32 s100, s100, {sW}\ns_lshl_b32 s100, s100, 8\ns_add_u32 s100, s100, {STAMP_OFF + 4*idx}")
    P(f"buffer_store_dword v{TMP+31}, v{TMP+30}, {SWS}, s100 offen", tag="stamp")


def load_ptrs(P, items):
    for off, s in items:
        P(f"s_load_dwordx2 s[{s}:{s+1}], s[0:1], {off}")


def set_srd(P, i, nbytes):
    P(f"s_mov_b32 s{i+2}, {nbytes}\ns_mov_b32 s{i+3}, 0x20000")


def code_prefetch(P, start, size_expr, nkb):
    per = (nkb + 31) // 32
    P(f"s_getpc_b64 s[{iSCD}:{iSCD+1}]")
    P(f"Lpc_{start}:")
    P(f"s_sub_u32 s{iSCD}, s{iSCD}, Lpc_{start}-{start}\ns_subb_u32 s{iSCD+1}, s{iSCD+1}, 0")
    P(f"s_mov_b32 s{iSCD+2}, {size_expr}\ns_mov_b32 s{iSCD+3}, 0x20000")
    P(f"s_lshr_b32 {sT0}, s2, 3\ns_and_b32 {sT0}, {sT0}, 31\ns_mul_i32 {sT0}, {sT0}, {per*1024}")
    P(f"v_lshlrev_b32 v{TMP+28}, 2, v0")
    for k in range(per):
        P(f"buffer_load_dword v{TMP+29}, v{TMP+28}, {SCD}, {sT0} offen offset:{k*1024}" if k < 4 else "", tag="code")


def cpow(P, n_expr, dr, di, A, Bq, t0, t1):
    if n_expr is None:
        P(f"v_exp_f32 v{t0}, v{A}")
        P(f"v_fract_f32 v{t1}, v{Bq}")
    else:
        P(f"v_mul_f32 v{t0}, {n_expr}, v{A}")
        P(f"v_mul_f32 v{t1}, {n_expr}, v{Bq}")
        P(f"v_exp_f32 v{t0}, v{t0}")
        P(f"v_fract_f32 v{t1}, v{t1}")
    P(f"v_cos_f32 v{dr}, v{t1}")
    P(f"v_sin_f32 v{di}, v{t1}")
    P(f"v_mul_f32 v{dr}, v{t0}, v{dr}")
    P(f"v_mul_f32 v{di}, v{t0}, v{di}")


def cfma(dr, di, lr, li, sr, si, ur, ui, tr, ti):
    return [f"v_fma_f32 v{tr}, v{lr}, v{sr}, v{ur}",
            f"v_fma_f32 v{ti}, v{lr}, v{si}, v{ui}",
            f"v_fma_f32 v{dr if dr != sr else tr}, -v{li}, v{si}, v{tr}",
            f"v_fma_f32 v{di}, v{li}, v{sr}, v{ti}"] + ([f"v_mov_b32 v{dr}, v{tr}"] if dr == sr else [])


def phase1(P):
    T = TMP
    PA, PB = ("Q", "P") if OPT["bfirst"] else ("P", "Q")
    NT = {"P": 4, "Q": 3}
    GI = lambda ps, t: t if ps == "P" else 4 + t
    ACC2 = ACC_G[GI(PB, 0)]
    ACC2L = ACC_G[GI(PB, NT[PB] - 1)]
    VRP, PK_VQ, PK_TRB, PK_SSW = ACC2L + 15, ACC2L + 14, ACC2L + 13, ACC2L + 12
    TB = [sU0, sU1, sU2]

    def emit(lst):
        for x in lst:
            if isinstance(x, tuple):
                P(x[0], tag=x[1])
            else:
                P(x)

    load_ptrs(P, [(0, iSX), (24, iSBR), (32, iSBI), (8, pLRE), (16, pLIM), (56, pLDT), (80, iSW), (88, pWU),
                  (96, iSWD), (120, iSWS), (112, iSDB)])
    if FUSED:
        load_ptrs(P, [(40, iSCRE), (48, iSCIM), (104, iSOUT), (64, pDSK)])
    if OPT["codepf"]:
        code_prefetch(P, "k1_start", "k1_end-k1_start", 32)
    P(f"v_lshrrev_b32 v{T}, 6, v0")
    P(f"v_and_b32 v{VLANE}, 63, v0")
    P(f"v_readfirstlane_b32 {sW}, v{T}")
    P(f"""s_and_b32 {sT0}, s2, 7
          s_lshr_b32 {sT1}, s2, 3
          s_and_b32 {sM}, {sT0}, 1
          s_lshl_b32 {sM}, {sM}, 3
          s_and_b32 {sT2}, {sT1}, 7
          s_add_u32 {sM}, {sM}, {sT2}
          s_lshr_b32 {sJ4}, {sT1}, 3
          s_lshr_b32 {sJ}, {sT0}, 1
          s_lshl_b32 {sJ}, {sJ}, 2
          s_add_u32 {sJ}, {sJ}, {sJ4}
          s_add_u32 {sROT}, {sM}, {sJ}
          s_lshl_b32 {sROT}, {sROT}, 7""")
    for n in range(8):
        P(f"s_add_u32 {sT0}, {sROT}, {n*128}\ns_and_b32 {KB[n]}, {sT0}, 0x380")
    rr, p, q, t3 = T + 1, T + 2, T + 3, T + 4
    P(f"""v_lshrrev_b32 v{rr}, 3, v{VLANE}
          v_and_b32 v{p}, 7, v{VLANE}
          v_lshrrev_b32 v{q}, 1, v{rr}
          v_xor_b32 v{q}, v{p}, v{q}
          v_lshlrev_b32 v{q}, 4, v{q}
          v_lshrrev_b32 v{t3}, 2, v{rr}
          v_lshlrev_b32 v{t3}, 4, v{t3}
          v_and_b32 v{T+5}, 3, v{rr}
          v_add_u32 v{t3}, v{t3}, v{T+5}
          v_lshl_add_u32 v{VX[0]}, v{t3}, 10, v{q}
          v_xor_b32 v{VX[1]}, 64, v{VX[0]}
          v_add_u32 v{VX[2]}, {2*3072}, v{VX[0]}
          v_add_u32 v{VX[3]}, {3*3072}, v{VX[1]}
          v_add_u32 v{VX[1]}, 3072, v{VX[1]}""")
    P(f"""s_lshl_b32 {sWL}, {sW}, 12
          s_lshl_b32 {sXB}, {sM}, 17
          s_lshl_b32 {sT0}, {sW}, 15
          s_add_u32 {sXB}, {sXB}, {sT0}
          s_lshl_b32 {sBB}, {sJ}, 15
          s_lshl_b32 {sT0}, {sW}, 13
          s_add_u32 {sBB}, {sBB}, {sT0}
          s_and_b32 {sT0}, {sW}, 1
          s_lshl_b32 {sT0}, {sT0}, 6
          v_xor_b32 v{VB}, {sT0}, v{q}
          v_lshl_add_u32 v{VB}, v{rr}, 10, v{VB}
          v_and_b32 v{VC4}, 31, v{VLANE}
          v_lshlrev_b32 v{T+6}, 1, v{VC4}
          s_lshl_b32 {sT1}, {sJ}, 6
          v_add_u32 v{T+6}, {sT1}, v{T+6}""")
    set_srd(P, iSX, 2048 * 1024); set_srd(P, iSBR, 524288); set_srd(P, iSBI, 524288)
    PLRE, PLIM, PLDT = T + 8, T + 9, T + 10

    def dma_B(n):
        base = (SCR + (n >> 1) * 16384 if n < 4 else ((n - 4) >> 1) * 16384) + (n & 1) * 2048
        return [f"s_add_u32 m0, {sWL}, {base}", f"s_add_u32 {sSO}, {sBB}, {KB[n]}",
                (f"buffer_load_dwordx4 v{VB}, {SBR}, {sSO} offen lds", f"B{n}"),
                f"s_add_u32 m0, {sWL}, {base+1024}",
                (f"buffer_load_dwordx4 v{VB}, {SBI}, {sSO} offen lds", f"B{n}")]

    def dma_X(n):
        return [f"s_add_u32 m0, {sWL}, {n*16384}", f"s_add_u32 {sSO}, {sXB}, {KB[n]}"] + \
               [(f"buffer_load_dwordx4 v{VX[sb]}, {SX}, {sSO} offen offset:{sb*1024} lds", f"X{n}") for sb in range(4)]

    XL = OPT["xlook"]
    emit(dma_X(0) + dma_B(0))
    P(f"global_load_ushort v{PLRE}, v{T+6}, s[{pLRE}:{pLRE+1}]")
    P(f"global_load_ushort v{PLIM}, v{T+6}, s[{pLIM}:{pLIM+1}]")
    P(f"global_load_ushort v{PLDT}, v{T+6}, s[{pLDT}:{pLDT+1}]")
    emit(dma_X(1) + dma_B(1))
    set_srd(P, iSW, 1835008); set_srd(P, iSWD, 1835008); set_srd(P, iSWS, WS_WIN); set_srd(P, iSDB, 256)
    stamp(P, 6)
    if FUSED:
        set_srd(P, iSCRE, 524288); set_srd(P, iSCIM, 524288); set_srd(P, iSOUT, 4 << 20)
    stamp_entry(P, 0)
    P(f"""s_mov_b32 {sONE}, 0x3f803f80
          s_mov_b32 {sL2E}, {LOG2E}
          s_mov_b32 {sI2P}, {INV2PI}
          s_bitcmp1_b32 {sW}, 0
          s_cselect_b32 s{iSW}, s{pWU}, s{iSW}
          s_cselect_b32 s{iSW+1}, s{pWU+1}, s{iSW+1}
          s_lshl_b32 {sT0}, {sJ}, 12
          s_add_u32 {sT0}, {sT0}, {E_OFF}
          s_add_u32 s{iSE}, s{iSWS}, {sT0}
          s_addc_u32 s{iSE+1}, s{iSWS+1}, 0""")
    set_srd(P, iSE, 4096)
    P(f"""s_mul_i32 {sPB}, {sJ}, 224
          s_lshr_b32 {sT0}, {sW}, 1
          s_mul_i32 {sT0}, {sT0}, {8*3584}
          s_add_u32 {sPB}, {sPB}, {sT0}
          s_lshl_b32 {sT0}, {sM}, 2
          s_add_u32 {sT0}, {sT0}, {sW}
          s_mul_i32 {sHB}, {sT0}, 176
          s_mul_i32 {sT0}, {sJ}, 11
          s_add_u32 {sHB}, {sHB}, {sT0}
          s_lshl_b32 {sHB}, {sHB}, 10
          s_add_u32 {sT2}, {sJ4}, 4
          s_lshl_b32 {sT2}, {sT2}, 10
          s_add_u32 {sT2}, {sT2}, {sHB}""")
    for t in range(4):
        P(f"""s_add_u32 {sT0}, {sW}, {t}
              s_and_b32 {sT0}, {sT0}, 3
              s_lshl_b32 {sT0}, {sT0}, 10
              s_add_u32 {sHT[t]}, {sT2}, {sT0}""")
    for t in range(3):
        tab = sum((((w + t) % 3) << (4 * w)) for w in range(4))
        P(f"""s_lshl_b32 {sT0}, {sW}, 2
              s_lshr_b32 {sT0}, {tab}, {sT0}
              s_and_b32 {TB[t]}, {sT0}, 3
              s_cmp_lt_u32 {TB[t]}, {sJ4}
              s_cselect_b32 {sT1}, 4, 8
              s_add_u32 {sT0}, {TB[t]}, {sT1}
              s_lshl_b32 {sT0}, {sT0}, 10
              s_add_u32 {sHT[4+t]}, {sHB}, {sT0}""")
    P(f"s_lshl_b32 {sFL}, {sM}, 4\ns_add_u32 {sFL}, {sFL}, {sJ}")
    P(f"s_cmp_eq_u32 {sW}, 3\ns_cselect_b32 {sFL}, {sFL}, {OOB}")
    hh, f, row = T + 11, T + 12, T + 13
    P(f"""v_lshrrev_b32 v{hh}, 5, v{VLANE}
          v_bfe_u32 v{f}, v{VLANE}, 1, 3
          v_xor_b32 v{f}, v{f}, v{hh}
          v_lshlrev_b32 v{f}, 4, v{f}
          v_and_b32 v{row}, 7, v{VLANE}
          v_lshlrev_b32 v{row}, 7, v{row}
          v_bfe_u32 v{T+14}, v{VLANE}, 3, 2
          v_lshl_add_u32 v{T+15}, v{T+14}, 10, v{row}
          v_add_u32 v{T+15}, {sWL}, v{T+15}
          v_lshl_add_u32 v{T+16}, v{T+14}, 12, v{row}
          v_add_u32 v{T+16}, {SCR}, v{T+16}""")
    for s_ in range(4):
        P(f"v_xor_b32 v{T+17}, {32*s_}, v{f}")
        P(f"v_add_u32 v{AX[s_]}, v{T+15}, v{T+17}")
        P(f"v_add_u32 v{AB[s_]}, v{T+16}, v{T+17}")
    P(f"s_lshl_b32 {sT0}, {sW}, 5")
    P(f"v_xor_b32 v{T+17}, {sT0}, v{f}")
    P(f"v_add_u32 v{ABC}, v{T+16}, v{T+17}")
    P(f"v_lshlrev_b32 v{VL16}, 4, v{VLANE}")
    P(f"""v_bfe_u32 v{T+17}, v{VLANE}, 2, 1
          v_bfe_u32 v{T+22}, v{VLANE}, 4, 1
          v_xor_b32 v{T+17}, v{T+17}, v{T+22}
          v_and_b32 v{T+21}, 3, v{VLANE}
          v_or_b32 v{T+17}, v{T+17}, v{T+21}
          v_cmp_eq_u32 vcc, 0, v{T+17}
          v_mov_b32 v{T+18}, {sONE}
          v_mov_b32 v{S1}, 0
          v_cndmask_b32 v{SEL}, 0, v{T+18}, vcc
          v_mov_b32 v{S2}, 0
          v_mov_b32 v{SEL+1}, v{SEL}
          v_mov_b32 v{SEL+2}, v{SEL}
          v_mov_b32 v{SEL+3}, v{SEL}""")
    if XL >= 3:
        emit(dma_X(2) + dma_B(2))
    for r in (XE + 1, XE + 2, XE + 3, CE0 + 1, CE0 + 2, CE0 + 3, CE1 + 1, CE1 + 2, CE1 + 3):
        P(f"v_mov_b32 v{r}, 0")
    P(f"""v_lshrrev_b32 v{T+17}, 4, v{VLANE}
          v_bfe_u32 v{T+20}, v{VLANE}, 2, 2
          v_lshlrev_b32 v{PK_TRB}, 7, v{T+20}
          v_lshl_add_u32 v{PK_TRB}, v{T+17}, 12, v{PK_TRB}
          v_lshl_add_u32 v{PK_TRB}, v{T+21}, 3, v{PK_TRB}
          v_bfe_u32 v{PK_SSW}, v{VLANE}, 3, 1
          v_lshl_add_u32 v{PK_SSW}, v{T+22}, 1, v{PK_SSW}
          v_lshlrev_b32 v{PK_SSW}, 5, v{PK_SSW}""")

    def set_ap(ps, tmp):
        r = []
        for t in range(NT[ps]):
            if ps == "P":
                r += [f"s_add_u32 {tmp}, {sW}, {t}", f"s_and_b32 {tmp}, {tmp}, 3", f"s_lshl_b32 {tmp}, {tmp}, 5"]
            else:
                r += [f"s_lshl_b32 {tmp}, {TB[t]}, 5"]
            r += [f"v_xor_b32 v{AP[t]}, {tmp}, v{PK_SSW}", f"v_add_u32 v{AP[t]}, v{PK_TRB}, v{AP[t]}", f"v_add_u32 v{APH[t]}, 0x10000, v{AP[t]}"]
        return r
    emit(set_ap(PA, sT0))
    P(f"""s_mul_i32 {sT0}, {sW}, 5120
          s_add_u32 {sT0}, {sT0}, {HT}
          v_mul_u32_u24 v{AHW}, 80, v{VC4}
          v_lshl_add_u32 v{AHW}, v{hh}, 5, v{AHW}
          v_add_u32 v{AHW}, {sT0}, v{AHW}
          v_lshl_add_u32 v{AHR}, v{hh}, 3, v{T+20}
          v_mul_u32_u24 v{AHR}, 80, v{AHR}
          v_and_b32 v{T+23}, 1, v{VLANE}
          v_lshl_add_u32 v{AHR}, v{T+23}, 5, v{AHR}
          v_lshl_add_u32 v{AHR}, v{T+22}, 4, v{AHR}
          v_bfe_u32 v{T+23}, v{VLANE}, 1, 1
          v_lshl_add_u32 v{AHR}, v{T+23}, 3, v{AHR}
          v_add_u32 v{AHR}, {sT0}, v{AHR}""")
    seg = T + 23
    P(f"""s_lshl_b32 {sT0}, {sW}, 1
          v_add_u32 v{seg}, {sT0}, v{hh}
          v_lshlrev_b32 v{AEXR}, 8, v{seg}
          v_lshl_add_u32 v{AEXR}, v{VC4}, 3, v{AEXR}
          v_add_u32 v{AEXR}, {EXZ}, v{AEXR}
          v_add_u32 v{AEXW}, 1792, v{AEXR}
          s_sub_u32 {sT0}, 16, {sM}
          s_lshl_b32 {sT0}, {sT0}, 8
          v_lshlrev_b32 v{VER}, 3, v{VC4}
          v_add_u32 v{VER}, {sT0}, v{VER}
          v_cmp_eq_u32 vcc, 7, v{seg}
          v_add_u32 v{VEW}, -256, v{VER}
          v_mov_b32 v{T+24}, {OOB}
          v_cndmask_b32 v{VEW}, v{T+24}, v{VEW}, vcc""")
    tau = T + 25
    RSW = PR
    P(f"""v_bfe_u32 v{tau}, v{VLANE}, 2, 1
          v_lshlrev_b32 v{tau}, 4, v{tau}
          v_lshl_add_u32 v{tau}, v{T+14}, 2, v{tau}
          v_add_u32 v{tau}, v{tau}, v{T+21}
          s_lshr_b32 {sT0}, {sXB}, 7
          s_add_u32 {sT0}, {sT0}, {ST_OFF}
          s_cmp_eq_u32 {sJ}, 0
          s_cselect_b32 {sT0}, {sT0}, {OOB}
          v_lshlrev_b32 v{VST}, 3, v{tau}
          v_add_u32 v{VST}, {sT0}, v{VST}
          s_lshl_b32 {sT0}, {sW}, 7
          s_add_u32 {sT0}, {sT0}, {RS}
          v_lshlrev_b32 v{RSW}, 2, v{tau}
          v_add_u32 v{RSW}, {sT0}, v{RSW}
          v_lshlrev_b32 v{ARS}, 6, v{hh}
          v_add_u32 v{ARS}, {sT0}, v{ARS}
          s_lshl_b32 {sT0}, {sW}, 2
          v_lshlrev_b32 v{ACSB_R}, 4, v{VC4}
          v_add_u32 v{ACSB_R}, {CSB}, v{ACSB_R}
          v_add_u32 v{ACSB_W}, {sT0}, v{ACSB_R}
          v_lshlrev_b32 v{ACSG_W}, 2, v{VC4}
          v_add_u32 v{ACSG_W}, {CSG}, v{ACSG_W}""")
    dP, dQ = (PI, PK_VQ) if PA == "P" else (PK_VQ, PI)
    P(f"""s_and_b32 {sT0}, {sW}, 1
          s_lshl_b32 {sT0}, {sT0}, 1
          v_add_u32 v{T+26}, {sT0}, v{T+22}
          v_bfe_u32 v{T+27}, v{VLANE}, 1, 2
          v_xor_b32 v{T+26}, v{T+26}, v{T+27}
          v_and_b32 v{T+27}, 1, v{VLANE}
          v_lshlrev_b32 v{T+27}, 4, v{T+27}
          s_movk_i32 {sT1}, 3584
          v_mad_u32_u24 v{T+27}, v{rr}, {sT1}, v{T+27}
          v_add_u32 v{T+5}, {sJ4}, v{T+26}
          v_cmp_gt_u32 vcc, {sJ4}, v{T+26}
          v_lshl_add_u32 v{dP}, v{T+5}, 5, v{T+27}
          v_add_u32 v{T+5}, 4, v{T+26}
          v_cndmask_b32 v{T+5}, v{T+5}, v{T+26}, vcc
          v_cmp_eq_u32 vcc, 3, v{T+26}
          v_lshl_add_u32 v{dQ}, v{T+5}, 5, v{T+27}
          v_lshlrev_b32 v{VRP}, 1, v{VC4}
          v_cndmask_b32 v{dQ}, v{dQ}, v{T+24}, vcc
          v_lshl_add_u32 v{VRP}, v{hh}, 12, v{VRP}""")
    VP = [ACC2L + 8 + k for k in range(4)]
    if FUSED:
        p2_scalars(P)
    a_, b_, t0, t1 = T + 26, T + 27, T + 1, T + 2
    P(f"""v_lshlrev_b32 v{PLRE}, 16, v{PLRE}
          v_lshlrev_b32 v{PLIM}, 16, v{PLIM}
          v_lshlrev_b32 v{PLDT}, 16, v{PLDT}
          v_mul_f32 v{PLDT}, {sL2E}, v{PLDT}
          v_exp_f32 v{PLDT}, v{PLDT}
          v_mov_b32 v{VP[0]}, v{PI}""")
    bf16r(P, PLDT, PLDT)
    P(f"""v_mul_f32 v{a_}, v{PLDT}, v{PLRE}
          v_mul_f32 v{b_}, v{PLDT}, v{PLIM}
          v_mul_f32 v{a_}, {sL2E}, v{a_}
          v_mul_f32 v{b_}, {sI2P}, v{b_}""")
    for k in range(1, 4):
        P(f"v_add_u32 v{VP[k]}, {k*56320}, v{PI}")
    cpow(P, None, L1R, L1I, a_, b_, t0, t1)
    cpow(P, hex(f2u(16.0)), L16R, L16I, a_, b_, t0, t1)
    cpow(P, hex(f2u(128.0)), L128R, L128I, a_, b_, t0, t1)
    P(f"v_cvt_f32_u32 v{T+3}, v{seg}\nv_mul_f32 v{T+3}, {hex(f2u(16.0))}, v{T+3}")
    cpow(P, f"v{T+3}", LSR, LSI, a_, b_, t0, t1)
    P(f"""v_mul_f32 v{t1}, v{PLRE}, v{PLRE}
          v_fma_f32 v{t1}, v{PLIM}, v{PLIM}, v{t1}
          v_rcp_f32 v{t1}, v{t1}
          v_add_f32 v{t0}, -1.0, v{L1R}
          v_mul_f32 v{KR}, v{t0}, v{PLRE}
          v_fma_f32 v{KR}, v{L1I}, v{PLIM}, v{KR}
          v_mul_f32 v{KI}, v{L1I}, v{PLRE}
          v_fma_f32 v{KI}, -v{t0}, v{PLIM}, v{KI}
          v_add_f32 v{t1}, v{t1}, v{t1}
          v_mul_f32 v{KR}, v{KR}, v{t1}
          v_mul_f32 v{KI}, v{KI}, v{t1}""")
    stamp(P, 12)

    vp_cur = [VP]
    def dma_pass(ps, b, slot):
        vp = vp_cur[0]
        r = [f"s_add_u32 m0, {sWL}, {slot*16384}", f"s_mul_i32 {sSO}, {KB[b]}, 1792", f"s_add_u32 {sSO}, {sSO}, {sPB}"]
        for ks in range(4):
            r.append((f"buffer_load_dwordx4 v{vp[ks]}, {SW}, {sSO} offen offset:{ks*1024} lds", f"{ps}{b}"))
        return r

    ringpos = [0]
    def ring():
        r = ARING + 4 * (ringpos[0] % NRING)
        ringpos[0] += 1
        return r

    rp = ACC2
    rpl = [f"s_mul_i32 {sT0}, {sJ}, 112", f"s_lshl_b32 {sT1}, {sW}, 4", f"s_add_u32 {sT0}, {sT0}, {sT1}",
           f"s_lshl_b32 {sT0}, {sT0}, 10", f"s_lshl_b32 {sT1}, {sM}, 6", f"s_add_u32 {sT0}, {sT0}, {sT1}"]
    for g in range(2):
        for half in range(2):
            rpl.append(f"s_add_u32 {sT1}, {sT0}, {g*65536 + half*8192}")
            for e in range(4):
                rpl.append((f"buffer_load_ushort v{rp+8*g+4*half+e}, v{VRP}, {SWD}, {sT1} offen offset:{e*1024}", "rp"))

    CSF = [CE0 + 0, CE1 + 0]
    npass_issued = 0
    for n in range(8):
        if n == 4:
            for s_ in range(4):
                P(f"v_add_u32 v{AX[s_]}, 0x10000, v{AX[s_]}")
                P(f"v_add_u32 v{AB[s_]}, {(-SCR) & 0xffffffff}, v{AB[s_]}")
            P(f"v_add_u32 v{ABC}, {(-SCR) & 0xffffffff}, v{ABC}")
        P(f"@waitvm X{n},B{n}\ns_barrier")
        if OPT["stamps"] and OPT.get("fine"): stamp(P, 48 + n)
        off = (n & 3) * 16384
        tb = T + 16 * (n & 1)
        for s_ in range(4):
            P(f"ds_read_b128 {vr(tb+4*s_,4)}, v{AX[s_]} offset:{off}", tag=f"xt{n}")
        for s_ in range(4):
            P(f"ds_read_b128 {ar(AXF+16*n+4*s_,4)}, v{AX[s_]} offset:{off}", tag=f"xr{n}")
        boff = ((n & 3) >> 1) * 16384 + (n & 1) * 2048
        fr = [(s_, mat, ring()) for s_ in range(4) for mat in range(2)]
        for k, (s_, mat, r) in enumerate(fr):
            P(f"ds_read_b128 {ar(r,4)}, v{AB[s_]} offset:{boff+mat*1024}", tag=f"bf{k>>2}")
            if k == 3:
                P(f"@waitlg xt{n}")
                for kk in range(8):
                    P(f"v_dot2_f32_bf16 v{S1}, v{tb+kk}, {sONE}, v{S1}")
                    P(f"v_dot2_f32_bf16 v{S2}, v{tb+kk}, v{tb+kk}, v{S2}")
        for mat in range(2):
            P(f"ds_read_b128 {ar(160+4*mat,4)}, v{ABC} offset:{boff+mat*1024}", tag="bf1")
        for kk in range(8, 16):
            P(f"v_dot2_f32_bf16 v{S1}, v{tb+kk}, {sONE}, v{S1}")
            P(f"v_dot2_f32_bf16 v{S2}, v{tb+kk}, v{tb+kk}, v{S2}")
        q_ = []
        nn = n + XL
        if nn < 8:
            q_ += dma_X(nn) + dma_B(nn)
        else:
            while npass_issued < min(6, n - 1) and len([x for x in q_ if isinstance(x, tuple)]) < 8:
                q_ += dma_pass(PA, npass_issued, npass_issued + 2)
                npass_issued += 1
        if n == 7:
            q_ += rpl
        P("@waitlg bf0")
        for k, (s_, mat, r) in enumerate(fr):
            if k == 4:
                P("@waitlg bf1")
            acc = vr(ACC_S + 16 * mat, 16)
            c = "0" if (n == 0 and s_ == 0) else acc
            P(f"v_mfma_f32_32x32x16_bf16 {acc}, {ar(AXF+16*n+4*s_,4)}, {ar(r,4)}, {c}")
            while q_:
                x = q_.pop(0)
                emit([x])
                if isinstance(x, tuple):
                    break
        for mat in range(2):
            d = vr(CSBR + 4 * mat, 4)
            P(f"v_mfma_f32_16x16x32_bf16 {d}, {vr(SEL,4)}, {ar(160+4*mat,4)}, {'0' if n == 0 else d}")
        emit(q_)
    stamp(P, 2)

    def order(nt, nto):
        o = []
        for b in range(8 - nto):
            for ks in range(4):
                for t in range(nt):
                    o.append((t, b, ks))
        for t in range(nt):
            for b in range(8 - nto, 8):
                for ks in range(4):
                    o.append((t, b, ks))
        return o
    frs = [(PA, t, b, ks) for (t, b, ks) in order(NT[PA], OPT["to1"])] + [(PB, t, b, ks) for (t, b, ks) in order(NT[PB], OPT["to2"])]
    slot_of = lambda ps, b: (b + 2) % 8
    last_use, tile_last = {}, {}
    for k, (ps, t, b, ks) in enumerate(frs):
        last_use[(ps, b)] = k
        tile_last[(ps, t)] = k
    NF = len(frs)
    last1 = max(k for k, fr in enumerate(frs) if fr[0] == PA)

    state = dict(done=-1, bars=0, marks={})
    released = {"free": True}
    pending_dma = [(PA, b) for b in range(npass_issued, 8)] + [(PB, b) for b in range(8)]
    prev_occ = {}
    for b in range(8):
        prev_occ[(PA, b)] = "free" if b < 6 else "S"
        prev_occ[(PB, b)] = (PA, b)
    dma_q = []
    opened = set()

    def barrier(tagwait=None):
        if tagwait:
            P(f"@waitvm {tagwait}")
        P("@waitlg xch")
        if OPT["stamps"] and OPT.get("fine"): stamp(P, 16 + state["bars"])
        P("s_barrier")
        state["bars"] += 1
        released["S"] = True
        for key, lu in last_use.items():
            if lu <= state["done"]:
                released[key] = True

    tasks = []
    def gate_done(k): return ("gate", lambda: state["done"] >= k)
    def gate_bar(name): return ("gate", lambda: name in state["marks"] and state["bars"] > state["marks"][name])
    def mark(name): return ("mark", name)
    def gate_mark(name): return ("gate", lambda: name in state["marks"])

    def split_cs(src, ce, t0, t1):
        return [f"v_cvt_pk_bf16_f32 v{t0}, v{src}, v{src}",
                f"v_and_b32 v{t0}, 0xffff0000, v{t0}",
                f"v_sub_f32 v{t1}, v{src}, v{t0}",
                f"v_cvt_pk_bf16_f32 v{ce}, v{t0}, v{t1}"]
    def bfr(dst, src):
        return [f"v_cvt_pk_bf16_f32 v{dst}, v{src}, v{src}", f"v_and_b32 v{dst}, 0xffff0000, v{dst}"]

    u0, u1, mean, mb, den = T, T + 1, T + 2, T + 4, T + 5
    e1 = [(f"ds_write_b32 v{ACSB_W}, v{CSBR}", "xch"), (f"ds_write_b32 v{ACSB_W}, v{CSBI} offset:512", "xch"),
          f"v_mov_b32 v{T+8}, 0", f"v_mov_b32 v{T+9}, 0",
          ("atomic", [f"s_lshl_b32 {sT2}, {sW}, 9", f"s_add_u32 {sT2}, {sT2}, {EXZ}",
                      f"v_lshrrev_b32 v{T+10}, 1, v{VL16}", f"v_add_u32 v{T+10}, {sT2}, v{T+10}"]),
          (f"ds_write_b64 v{T+10}, {vr(T+8,2)}", "xch"), mark("csb")]
    e1 += [f"v_mov_b32 v{u0}, v{S1}", f"v_mov_b32 v{u1}, v{S2}"]
    e1 += [f"v_add_u32 v{AX[s_]}, 0xffff0000, v{AX[s_]}" for s_ in range(4)]
    e1 += [f"v_permlane32_swap_b32 v{S1}, v{u0}", f"v_permlane32_swap_b32 v{S2}, v{u1}",
           f"v_add_f32 v{S1}, v{S1}, v{u0}", f"v_add_f32 v{S2}, v{S2}, v{u1}",
           f"v_mul_f32 v{mean}, {hex(f2u(1/512))}, v{S1}", f"v_mul_f32 v{S2}, {hex(f2u(1/512))}, v{S2}",
           f"v_fma_f32 v{S2}, -v{mean}, v{mean}, v{S2}", f"v_max_f32 v{S2}, 0, v{S2}"]
    e1 += bfr(S2, S2) + [f"v_add_f32 v{S2}, {hex(f2u(1e-5))}, v{S2}"] + bfr(S2, S2) + [f"v_sqrt_f32 v{S2}, v{S2}"]
    e1 += bfr(mb, mean) + bfr(den, S2)
    e1 += [f"v_rcp_f32 v{S1}, v{den}", f"v_xor_b32 v{u0}, 0x80000000, v{mb}", f"v_lshrrev_b32 v{u1}, 16, v{u0}",
           (f"ds_write_b32 v{RSW}, v{S1}", "rsw"),
           f"v_or_b32 v{u0}, v{u0}, v{u1}",
           ("atomic", [f"v_cmp_gt_u32 vcc, 32, v{VLANE}", f"v_mov_b32 v{SIG}, v{den}", f"v_mul_f32 v{C1}, {sL2E}, v{S1}",
                       f"v_cndmask_b32 v{XE}, 0, v{u0}, vcc"]),
           f"v_sub_f32 v{C1}, 0, v{C1}",
           (f"buffer_store_dwordx2 {vr(mb,2)}, v{VST}, {SWS}, 0 offen sc1", "pub1")]
    R16 = T + 8
    e1 += ["@waitlg rsw"]
    for k in range(4):
        e1.append(f"ds_read_b128 {vr(R16+4*k,4)}, v{ARS} offset:{16*k}")
    e1 += [gate_bar("csb"),
           f"ds_read_b128 {vr(T,4)}, v{ACSB_R}", f"ds_read_b128 {vr(T+4,4)}, v{ACSB_R} offset:512", ("delay", 2)]
    for mat, b in ((0, T), (1, T + 4)):
        e1 += [f"v_add_f32 v{b}, v{b}, v{b+1}", f"v_add_f32 v{b+2}, v{b+2}, v{b+3}", f"v_add_f32 v{b}, v{b}, v{b+2}"]
        e1 += split_cs(b, CE0 if mat == 0 else CE1, b + 1, b + 2)
    e1 += [f"v_mfma_f32_32x32x16_bf16 {vr(ACC_S,16)}, {vr(XE,4)}, {vr(CE0,4)}, {vr(ACC_S,16)}",
           f"v_mfma_f32_32x32x16_bf16 {vr(ACC_S+16,16)}, {vr(XE,4)}, {vr(CE1,4)}, {vr(ACC_S+16,16)}"]
    for g in range(2):
        for k in range(4):
            e1.append(f"v_lshl_or_b32 v{rp+16+4*g+k}, v{rp+8*g+2*k+1}, 16, v{rp+8*g+2*k}")
    e1 += [f"s_mul_i32 {sT2}, {sM}, 176", f"s_mul_i32 {sT3}, {sJ}, 11", f"s_add_u32 {sT2}, {sT2}, {sT3}",
           f"s_add_u32 {sT2}, {sT2}, {sW}", f"s_lshl_b32 {sT2}, {sT2}, 10", f"s_add_u32 {sT2}, {sT2}, {W2_OFF + 4096}",
           (f"buffer_store_dwordx4 {vr(rp+16,4)}, v{VL16}, {SWS}, {sT2} offen sc1", "pub1"),
           f"s_add_u32 {sT2}, {sT2}, 4096", ("atomic", [f"s_cmp_eq_u32 {sW}, 3", f"s_cselect_b32 {sT2}, {OOB}, {sT2}"]),
           (f"buffer_store_dwordx4 {vr(rp+20,4)}, v{VL16}, {SWS}, {sT2} offen sc1", "pub1")]
    for q in range(16):
        e1 += [f"v_mul_f32 v{ACC_S+q}, v{ACC_S+q}, v{R16+q}", f"v_mul_f32 v{ACC_S+16+q}, v{ACC_S+16+q}, v{R16+q}"]
    ea, eb = (T + 16, T + 17), (T + 18, T + 19)
    cur = (ACC_S, ACC_S + 16)
    for q in range(1, 16):
        nxt = ea if q % 2 else eb
        e1 += [f"v_fma_f32 v{nxt[0]}, v{L1R}, v{cur[0]}, v{ACC_S+q}",
               f"v_fma_f32 v{nxt[1]}, v{L1R}, v{cur[1]}, v{ACC_S+16+q}",
               f"v_fma_f32 v{nxt[0]}, -v{L1I}, v{cur[1]}, v{nxt[0]}",
               f"v_fma_f32 v{nxt[1]}, v{L1I}, v{cur[0]}, v{nxt[1]}"]
        cur = nxt
    assert cur == ea
    e1 += [(f"ds_write_b64 v{AEXW}, {vr(ea[0],2)}", "xch"), "@waitvm pub1", mark("ex"), gate_bar("ex")]
    for k in range(7):
        e1.append(f"ds_read_b64 {vr(T+2*k,2)}, v{AEXR} offset:{256*k}")
    e1.append(("delay", 2))
    cur = (T, T + 1)
    for k in range(1, 7):
        u = (T + 2 * k, T + 2 * k + 1)
        nx = (PR, PI) if k == 6 else u
        e1 += [f"v_fma_f32 v{T+20}, v{L16R}, v{cur[0]}, v{u[0]}",
               f"v_fma_f32 v{T+21}, v{L16R}, v{cur[1]}, v{u[1]}",
               f"v_fma_f32 v{nx[0]}, -v{L16I}, v{cur[1]}, v{T+20}",
               f"v_fma_f32 v{nx[1]}, v{L16I}, v{cur[0]}, v{T+21}"]
        cur = nx
    e1 += [f"v_fma_f32 v{T+20}, v{L16R}, v{PR}, v{ea[0]}", f"v_fma_f32 v{T+21}, v{L16R}, v{PI}, v{ea[1]}",
           f"v_fma_f32 v{T+20}, -v{L16I}, v{PI}, v{T+20}", f"v_fma_f32 v{T+21}, v{L16I}, v{PR}, v{T+21}",
           (f"buffer_store_dwordx2 {vr(T+20,2)}, v{VEW}, {SE}, 0 offen sc1", "pubE"),
           f"v_mov_b32 v{S2}, {sFL}", f"v_mov_b32 v{S1}, 1", mark("e1regs"), ("delay", OPT.get("edelay", 16)),
           "@waitvm pubE",
           (f"buffer_store_byte v{S1}, v{S2}, {SDB}, 0 offen sc0 sc1", "flag"), mark("e1done")]
    tasks.append(e1)

    ce_flip = [0]
    def glu_epi(ps, t):
        gi = GI(ps, t)
        acc = ACC_G[gi]
        pso = 0 if ps == "P" else 512
        r = [gate_done(tile_last[(ps, t)]), gate_mark("e1regs")]
        ce = CE0 if ce_flip[0] % 2 == 0 else CE1
        ce_flip[0] += 1
        tt = T + 24
        if t == 0:
            r += [("delay", 2),
                  ("atomic", [f"s_lshl_b32 {sT2}, {sW if ps == 'P' else TB[0]}, 7", f"v_add_u32 v{tt}, {sT2}, v{ACSG_W}"]),
                  (f"ds_write_b32 v{tt}, v{CSGA} offset:{pso}", "xch"), mark(f"csg{ps}")]
            r += split_cs(CSGA, ce, tt + 1, tt + 2) + [mark(f"csgfree{ps}")]
        else:
            if ps == "P":
                sc = [f"s_add_u32 {sT2}, {sW}, {t}", f"s_and_b32 {sT2}, {sT2}, 3", f"s_lshl_b32 {sT2}, {sT2}, 7"]
            else:
                sc = [f"s_lshl_b32 {sT2}, {TB[t]}, 7"]
            pre = [gate_bar(f"csg{ps}"), ("atomic", sc + [f"v_add_u32 v{tt}, {sT2}, v{ACSG_W}"]),
                   f"ds_read_b32 v{tt+3}, v{tt} offset:{pso}", ("delay", 2)] + split_cs(tt + 3, ce, tt + 1, tt + 2)
            r = pre + r
        r += [f"v_mfma_f32_32x32x16_bf16 {vr(acc,16)}, {vr(ce,4)}, {vr(XE,4)}, {vr(acc,16)}", ("delay", 2)]
        for hf in range(2):
            es = range(4 * hf, 4 * hf + 4)
            r += [f"v_mul_f32 v{acc+e}, v{C1}, v{acc+e}" for e in es]
            r += [f"v_exp_f32 v{acc+e}, v{acc+e}" for e in es]
            r += [f"v_fma_f32 v{acc+e}, v{acc+e}, v{SIG}, v{SIG}" for e in es]
            r += [f"v_rcp_f32 v{acc+e}, v{acc+e}" for e in es]
            r += [f"v_mul_f32 v{acc+8+e}, v{acc+8+e}, v{acc+e}" for e in es]
        r += [f"v_cvt_pk_bf16_f32 v{acc+k}, v{acc+8+2*k}, v{acc+9+2*k}" for k in range(4)]
        r += [(f"buffer_store_dwordx4 {vr(acc,4)}, v{VL16}, {SWS}, {sHT[gi]} offen sc1", "pubH"), mark(f"epi{ps}{t}")]
        return r

    epi1 = []
    for t in range(NT[PA]):
        epi1 += glu_epi(PA, t)
    epi2 = [gate_mark(f"epi{PA}{NT[PA]-1}")]
    for t in range(NT[PB]):
        epi2 += glu_epi(PB, t)

    sw = [f"v_mov_b32 v{VX[0]}, v{PK_VQ}"] + [f"v_add_u32 v{VX[k]}, {k*56320}, v{PK_VQ}" for k in range(1, 4)] + [mark("vq")]
    tasks.append(sw)

    EL = ACC_G[GI(PA, 0)]
    l1 = [gate_mark(f"epi{PA}1"), gate_mark("e1done"), gate_done(last1 + OPT["late"])]
    l1 += [f"v_lshrrev_b32 v{T+16}, 2, v{VL16}",
           (f"buffer_load_dword v{T+17}, v{T+16}, {SDB}, 0 offen sc1", "poll"), ("delay", OPT.get("pdelay", 10)), ("call", "poll1"), mark("poll1")]
    for k in range(15):
        l1.append(f"buffer_load_dwordx2 {vr(EL+2*k,2)}, v{VER}, {SE}, 0 offen offset:{(14-k)*256} sc1")
    l1.append(("delay", OPT.get("edelay2", 12)))
    cur = (EL, EL + 1)
    for k in range(1, 15):
        u = (EL + 2 * k, EL + 2 * k + 1)
        l1 += [f"v_fma_f32 v{T+16}, v{L128R}, v{cur[0]}, v{u[0]}",
               f"v_fma_f32 v{T+17}, v{L128R}, v{cur[1]}, v{u[1]}",
               f"v_fma_f32 v{u[0]}, -v{L128I}, v{cur[1]}, v{T+16}",
               f"v_fma_f32 v{u[1]}, v{L128I}, v{cur[0]}, v{T+17}"]
        cur = u
    sa, sb_ = (T + 16, T + 17), (T + 18, T + 19)
    l1 += [f"v_fma_f32 v{sa[0]}, v{LSR}, v{cur[0]}, v{PR}", f"v_fma_f32 v{sa[1]}, v{LSR}, v{cur[1]}, v{PI}",
           f"v_fma_f32 v{sa[0]}, -v{LSI}, v{cur[1]}, v{sa[0]}", f"v_fma_f32 v{sa[1]}, v{LSI}, v{cur[0]}, v{sa[1]}"]
    cur = sa
    for q in range(16):
        nxt = sb_ if cur == sa else sa
        l1 += [f"v_fma_f32 v{nxt[0]}, v{L1R}, v{cur[0]}, v{ACC_S+q}",
               f"v_fma_f32 v{nxt[1]}, v{L1R}, v{cur[1]}, v{ACC_S+16+q}",
               f"v_fma_f32 v{nxt[0]}, -v{L1I}, v{cur[1]}, v{nxt[0]}",
               f"v_fma_f32 v{nxt[1]}, v{L1I}, v{cur[0]}, v{nxt[1]}",
               f"v_mul_f32 v{ACC_S+q}, v{KR}, v{nxt[0]}",
               f"v_mul_f32 v{ACC_S+16+q}, v{KR}, v{nxt[1]}",
               f"v_fma_f32 v{ACC_S+q}, -v{KI}, v{nxt[1]}, v{ACC_S+q}",
               f"v_fma_f32 v{ACC_S+16+q}, -v{KI}, v{nxt[0]}, -v{ACC_S+16+q}"]
        cur = nxt
        if q % 2 == 1:
            l1 += [f"v_cvt_pk_bf16_f32 v{T+(q>>1)}, v{ACC_S+q-1}, v{ACC_S+q}",
                   f"v_cvt_pk_bf16_f32 v{T+8+(q>>1)}, v{ACC_S+16+q-1}, v{ACC_S+16+q}"]
    l1 += [(f"ds_write_b128 v{AHW}, {vr(T,4)}", "htw"), (f"ds_write_b128 v{AHW}, {vr(T+4,4)} offset:16", "htw"),
           (f"ds_write_b128 v{AHW}, {vr(T+8,4)} offset:{32*80}", "htw"), (f"ds_write_b128 v{AHW}, {vr(T+12,4)} offset:{32*80+16}", "htw"),
           ("delay", 2), "@waitlg htw"]
    for u in range(4):
        for a in range(2):
            l1.append(f"ds_read_b64_tr_b16 {vr(ACC_S+4*u+2*a,2)}, v{AHR} offset:{(16*u+4*a)*80}")
    l1.append(("delay", 2))
    for u in range(4):
        l1.append((f"buffer_store_dwordx4 {vr(ACC_S+4*u,4)}, v{VL16}, {SWS}, {sHB} offen offset:{u*1024} sc1", "pubH"))
    l1.append(mark("l1done"))

    def poll1():
        d, t = T + 17, T + 18
        P(f"s_mov_b32 {sT2}, 0x01010101")
        P(f"v_lshrrev_b32 v{t}, 1, v{d}\nv_or_b32 v{t}, v{t}, v{d}\nv_and_b32 v{t}, {sT2}, v{t}\nv_cmp_eq_u32 vcc, {sT2}, v{t}")
        P("s_cmp_eq_u64 vcc, exec\ns_cbranch_scc1 Lp1_ok")
        P("@opaque_begin")
        P(f"s_mov_b32 {sT3}, 0")
        P(f"Lp1_spin:\ns_sleep 2\ns_add_u32 {sT3}, {sT3}, 1\ns_cmp_gt_u32 {sT3}, 0x40000\ns_cbranch_scc1 Lp1_ok")
        P(f"buffer_load_dword v{d}, v{T+16}, {SDB}, 0 offen sc1\ns_waitcnt vmcnt(0)")
        P(f"v_lshrrev_b32 v{t}, 1, v{d}\nv_or_b32 v{t}, v{t}, v{d}\nv_and_b32 v{t}, {sT2}, v{t}\nv_cmp_eq_u32 vcc, {sT2}, v{t}\ns_nop 4")
        P("s_cmp_eq_u64 vcc, exec\ns_cbranch_scc0 Lp1_spin")
        P("@opaque_end")
        P("Lp1_ok:")
    calls = dict(poll1=poll1)

    tasks += [epi1, l1, epi2]
    tpos = [0] * len(tasks)
    tdelay = [0] * len(tasks)
    gapno = [0]

    def fill(budget, flush=False):
        progress = True
        while (budget > 0 or flush) and progress:
            progress = False
            for ti, tk in enumerate(tasks):
                while tpos[ti] < len(tk):
                    it = tk[tpos[ti]]
                    if isinstance(it, tuple) and it[0] == "gate":
                        if it[1]():
                            tpos[ti] += 1
                            continue
                        break
                    if isinstance(it, tuple) and it[0] == "mark":
                        state["marks"][it[1]] = state["bars"]
                        tpos[ti] += 1
                        continue
                    if isinstance(it, tuple) and it[0] == "delay":
                        tdelay[ti] = gapno[0] + it[1]
                        tpos[ti] += 1
                        continue
                    break
                if tpos[ti] >= len(tk):
                    continue
                it = tk[tpos[ti]]
                if isinstance(it, tuple) and it[0] == "gate":
                    continue
                if tdelay[ti] > gapno[0] and not flush:
                    continue
                if isinstance(it, tuple) and it[0] == "call":
                    calls[it[1]]()
                    budget -= 8
                elif isinstance(it, tuple) and it[0] == "atomic":
                    for x in it[1]:
                        P(x); budget -= P.l[-1].cost
                elif isinstance(it, tuple):
                    P(it[0], tag=it[1]); budget -= P.l[-1].cost
                else:
                    if budget == 1 and not flush and Ins(it).cost == 2 and Ins(it).kind == "valu":
                        return budget
                    P(it); budget -= P.l[-1].cost
                    if P.l[-1].kind == "mfma":
                        budget = OPT["budget"]
                        gapno[0] += 1
                tpos[ti] += 1
                progress = True
                break
        return budget

    fr_ring = {}
    def issue_reads(k):
        ps, t, b, ks = frs[k]
        n = 0
        if (ps, b) not in opened:
            assert not any(x == (ps, b) for x in pending_dma) and not any(isinstance(x, tuple) and x[1] == f"{ps}{b}" for x in dma_q), f"block {ps}{b} not issued in time"
            barrier(f"{ps}{b}")
            opened.add((ps, b))
            n += 2
        if k == last1 + 1:
            sa_ = set_ap(PB, sT1)
            emit(sa_)
            n += len(sa_)
        sl = slot_of(ps, b)
        a = AP[t] if sl < 4 else APH[t]
        off = (sl & 3) * 16384 + ks * 1024
        r = ring()
        fr_ring[k] = r
        P(f"ds_read_b64_tr_b16 {ar(r,2)}, v{a} offset:{off}", tag=f"f{k}")
        P(f"ds_read_b64_tr_b16 {ar(r+2,2)}, v{a} offset:{off+512}", tag=f"f{k}")
        return n + 2

    early = early_loads() if FUSED else []
    LOOK = OPT["look"]
    for k in range(LOOK):
        issue_reads(k)
    seen_tile = set()
    since_dma = 99
    for k, (ps, t, b, ks) in enumerate(frs):
        acc = vr(ACC_G[GI(ps, t)], 16)
        c = acc if (ps, t) in seen_tile else "0"
        xf = ar(AXF + 16 * b + 4 * ks, 4)
        budget = OPT["budget"]
        if k % 2 == 0:
            P(f"@waitlg f{k},f{min(k+1, NF-1)}")
            budget -= 1
        P(f"v_mfma_f32_32x32x16_bf16 {acc}, {ar(fr_ring[k],4)}, {xf}, {c}")
        if t == 0:
            d = vr(CSGA, 4)
            cs_c = d if (ps, t) in seen_tile else "0"
            pend_cs = f"v_mfma_f32_16x16x32_bf16 {d}, {vr(SEL,4)}, {ar(fr_ring[k],4)}, {cs_c}"
        else:
            pend_cs = None
        if ps == PB and (ps, t) not in seen_tile:
            assert "e1regs" in state["marks"] and f"csgfree{PA}" in state["marks"] and "vq" in state["marks"], state["marks"]
            assert not any(x[0] == PA for x in pending_dma)
        seen_tile.add((ps, t))
        if pend_cs is None:
            state["done"] = k
        if k + LOOK < NF:
            budget -= issue_reads(k + LOOK)
        since_dma += 1
        if not dma_q and pending_dma:
            blk = pending_dma[0]
            if released.get(prev_occ[blk]) and (blk[0] == PA or "vq" in state["marks"]):
                vp_cur[0] = VP if blk[0] == PA else VX
                dma_q.extend(dma_pass(blk[0], blk[1], slot_of(*blk)))
                pending_dma.pop(0)
        if not dma_q and not pending_dma and early and "poll1" in state["marks"]:
            dma_q.extend(early.pop(0))
        if dma_q and since_dma >= OPT["dmagap"]:
            while dma_q:
                x = dma_q.pop(0)
                budget -= 1
                emit([x])
                if isinstance(x, tuple):
                    break
            since_dma = 0
        budget = fill(budget)
        gapno[0] += 1
        if pend_cs:
            P(pend_cs)
            state["done"] = k
            fill(2 + min(budget, 0))
    assert not pending_dma
    emit(dma_q)
    stamp(P, 3)
    for _ in range(4):
        fill(0, flush=True)
        if all(tpos[i] >= len(tasks[i]) for i in range(len(tasks))):
            break
        barrier()
    assert all(tpos[i] >= len(tasks[i]) for i in range(len(tasks))), [(tpos[i], len(tasks[i])) for i in range(len(tasks))]
    stamp(P, 4)
    return early


sWA = ["s52", "s53"]
sHA = ["s54", "s55"]
sCB = ["s56", "s57"]
sRB, sSTB = "s60", "s61"
sCOL, sPF = "s48", "s49"
STEPS = [(jj, u) for jj in range(4) for u in range(11)]

def wreg(wi):
    return (160 + 4 * wi) if wi < 24 else 4 * (wi - 24)

def w_load(wi):
    g7, ntl = wi >> 1, wi & 1
    jj, g = g7 // 7, g7 % 7
    off = (jj * 11 + 4 + g) * 1024
    return [f"s_add_u32 {sSO}, {sWA[ntl]}, {off}",
            (f"buffer_load_dwordx4 {ar(wreg(wi),4)}, v{VL16}, {SWS}, {sSO} offen sc1", "w2")]

def early_loads():
    return [w_load(wi) for wi in range(24)]

def p2_scalars(P):
    mp, nn, a, b = "s50", "s51", sT0, sT1
    P(f"""s_and_b32 {a}, s2, 7
          s_lshr_b32 {b}, s2, 3
          s_lshl_b32 {mp}, {a}, 2
          s_and_b32 {a}, {b}, 3
          s_add_u32 {mp}, {mp}, {a}
          s_lshr_b32 {nn}, {b}, 2
          s_lshr_b32 {sPF}, {mp}, 1
          s_lshl_b32 {sPF}, {sPF}, 2
          s_add_u32 {sPF}, {sPF}, {sW}
          s_lshl_b32 {sPF}, {sPF}, 2
          s_lshl_b32 {mp}, {mp}, 1
          s_lshr_b32 {a}, {sW}, 1
          s_add_u32 {mp}, {mp}, {a}
          s_lshl_b32 {nn}, {nn}, 1
          s_and_b32 {a}, {sW}, 1
          s_add_u32 {nn}, {nn}, {a}
          s_mul_i32 {sT2}, {sW}, 44
          s_lshl_b32 {sT3}, {sW}, 8""")
    for k in range(2):
        P(f"""s_xor_b32 {a}, {mp}, {k}
              s_mul_i32 {a}, {a}, 176
              s_add_u32 {a}, {a}, {sT2}
              s_lshl_b32 {sHA[k]}, {a}, 10
              s_xor_b32 {a}, {nn}, {k}
              s_lshl_b32 {sCB[k]}, {a}, 15
              s_add_u32 {sCB[k]}, {sCB[k]}, {sT3}
              s_mul_i32 {a}, {a}, 176
              s_add_u32 {a}, {a}, {sT2}
              s_lshl_b32 {a}, {a}, 10
              s_add_u32 {sWA[k]}, {a}, {W2_OFF}""")
    P(f"""s_lshl_b32 {sCOL}, {nn}, 6
          s_lshl_b32 {sRB}, {mp}, 15
          s_add_u32 {sRB}, {sRB}, {sCOL}
          s_lshl_b32 {sSTB}, {mp}, 8
          s_add_u32 {sSTB}, {sSTB}, {ST_OFF}""")


def phase2(P, standalone, early):
    T = TMP
    ACC = [0, 16, 32, 48]
    HR = 64
    NH = OPT["hring"]
    STV = HR + 8 * NH
    XV = STV + 32
    assert XV + 16 <= 172
    AXH = AB
    VC = VX
    VXO, VOO, VSO, DK = AP[0], AP[1], AP[2], AP[3]

    def emit(lst):
        for x in lst:
            if isinstance(x, tuple):
                P(x[0], tag=x[1])
            else:
                P(x)

    if standalone:
        load_ptrs(P, [(0, iSX), (120, iSWS), (40, iSCRE), (48, iSCIM), (104, iSOUT), (64, pDSK)])
        if OPT["codepf"]:
            code_prefetch(P, "k2_start", "k2_end-k2_start", 12)
        P(f"v_lshrrev_b32 v{T}, 6, v0\nv_and_b32 v{VLANE}, 63, v0\nv_readfirstlane_b32 {sW}, v{T}")
        set_srd(P, iSX, 2048 * 1024); set_srd(P, iSWS, WS_WIN)
        set_srd(P, iSCRE, 524288); set_srd(P, iSCIM, 524288); set_srd(P, iSOUT, 4 << 20)
        P(f"s_lshl_b32 {sWL}, {sW}, 12")
        P(f"v_lshlrev_b32 v{VL16}, 4, v{VLANE}\nv_and_b32 v{VC4}, 31, v{VLANE}")
        hh, f, row = T + 11, T + 12, T + 13
        P(f"""v_lshrrev_b32 v{hh}, 5, v{VLANE}
              v_bfe_u32 v{f}, v{VLANE}, 1, 3
              v_xor_b32 v{f}, v{f}, v{hh}
              v_lshlrev_b32 v{f}, 4, v{f}
              v_and_b32 v{row}, 7, v{VLANE}
              v_lshlrev_b32 v{row}, 7, v{row}
              v_bfe_u32 v{T+14}, v{VLANE}, 3, 2
              v_lshl_add_u32 v{T+15}, v{T+14}, 10, v{row}
              v_add_u32 v{T+15}, {sWL}, v{T+15}""")
        for s in range(4):
            P(f"v_xor_b32 v{T+17}, {32*s}, v{f}\nv_add_u32 v{AX[s]}, v{T+15}, v{T+17}")
        p2_scalars(P)
        early = early_loads()
    wl = list(early) + [w_load(wi) for wi in range(24, 56)]
    setup = [f"v_lshrrev_b32 v{T+1}, 3, v{VLANE}", f"v_and_b32 v{T+2}, 7, v{VLANE}", f"v_lshrrev_b32 v{T+3}, 1, v{T+1}",
             f"v_xor_b32 v{T+3}, v{T+2}, v{T+3}", f"v_lshlrev_b32 v{T+3}, 4, v{T+3}",
             f"v_lshl_add_u32 v{VC[0]}, v{T+1}, 10, v{T+3}", f"v_xor_b32 v{VC[1]}, 64, v{VC[0]}",
             f"v_add_u32 v{VC[2]}, {2*7168}, v{VC[0]}", f"v_add_u32 v{VC[3]}, {3*7168}, v{VC[1]}", f"v_add_u32 v{VC[1]}, 7168, v{VC[1]}",
             f"v_lshrrev_b32 v{T+4}, 5, v{VLANE}", f"v_lshlrev_b32 v{T+5}, 1, v{VC4}",
             f"v_lshl_add_u32 v{VXO}, v{T+4}, 14, v{T+5}", f"v_lshlrev_b32 v{VOO}, 1, v{VXO}", f"v_lshlrev_b32 v{VSO}, 7, v{T+4}",
             f"v_add_u32 v{T+5}, {sCOL}, v{T+5}", f"v_mov_b32 v{T+6}, {sPF}", f"v_mov_b32 v{S1}, 2"]
    setup += [f"v_add_u32 v{AXH[s]}, 0x10000, v{AX[s]}" for s in range(4)]
    NA = OPT.get("na", 6)
    for k in range(NA):
        emit(wl.pop(0))
        emit(setup[:4]); setup = setup[4:]
    emit(setup)
    if not standalone:
        P("@waitvm pubH\ns_barrier")
        P(f"buffer_store_byte v{S1}, v{S2}, {SDB}, 0 offen sc0 sc1", tag="flag")
        stamp(P, 5)
    P(f"global_load_ushort v{DK}, v{T+5}, s[{pDSK}:{pDSK+1}]")
    for g in range(4):
        P(f"s_add_u32 {sT0}, {sRB}, {g*4096}")
        for q in range(4):
            P(f"buffer_load_ushort v{XV+4*g+q}, v{VXO}, {SX}, {sT0} offen offset:{q*1024}")
    for k in range(8):
        P(f"buffer_load_dwordx4 {vr(STV+4*k,4)}, v{VSO}, {SWS}, {sSTB} offen offset:{16*k} sc1")
    big = []
    for cc in range(2):
        for mat in range(2):
            for ntl in range(2):
                rho = ntl * 4 + mat * 2 + cc
                grp = [f"s_add_u32 m0, {sWL}, {rho*16384}", f"s_add_u32 {sSO}, {sCB[ntl]}, {cc*128}"]
                for sb in range(4):
                    grp.append((f"buffer_load_dwordx4 v{VC[sb]}, {SCIM if mat else SCRE}, {sSO} offen offset:{sb*1024} lds", f"C{rho}"))
                    big.append(grp); grp = []
    big += wl
    base = [f"v_lshlrev_b32 v{DK}, 16, v{DK}"]
    for q in range(16):
        m_, d_ = STV + 2 * q, STV + 2 * q + 1
        x = XV + q
        t0, t1 = T + 9 + 2 * (q & 1), T + 10 + 2 * (q & 1)
        bf = lambda r: [f"v_cvt_pk_bf16_f32 v{r}, v{r}, v{r}", f"v_and_b32 v{r}, 0xffff0000, v{r}"]
        base += [f"v_lshlrev_b32 v{x}, 16, v{x}", f"v_rcp_f32 v{t1}, v{d_}", f"v_sub_f32 v{t0}, v{x}, v{m_}"] + bf(t0)
        base += [f"v_mul_f32 v{m_}, v{t0}, v{t1}", f"v_fma_f32 v{t0}, -v{m_}, v{d_}, v{t0}", f"v_fma_f32 v{t0}, v{t0}, v{t1}, v{m_}"] + bf(t0)
        base += [f"v_mul_f32 v{t0}, v{t0}, v{DK}"] + bf(t0) + [f"v_add_f32 v{ACC[0]+q}, v{t0}, v{x}"]
    NB0 = OPT.get("nb0", 10)
    NPOLL = OPT.get("npoll", 6)
    per = (len(base) + max(1, len(big) - NB0 - NPOLL) - 1) // max(1, len(big) - NB0 - NPOLL)
    nbig = len(big)
    for k in range(nbig):
        if not standalone and k == nbig - NPOLL:
            emit(base); base = []
            P(f"buffer_load_dword v{T+7}, v{T+6}, {SDB}, 0 offen sc1", tag="poll")
        emit(big[k])
        if k >= NB0:
            emit(base[:per]); base = base[per:]
    emit(base)
    stamp(P, 8)
    if standalone: stamp_entry(P, 7)
    if not standalone:
        P(f"s_mov_b32 {sT2}, 0x02020202")
        P(f"v_cmp_eq_u32 vcc, {sT2}, v{T+7}")
        P("s_cmp_eq_u64 vcc, exec\ns_cbranch_scc1 Lp2_ok")
        P("@opaque_begin")
        P(f"s_mov_b32 {sT3}, 0")
        P(f"Lp2_spin:\ns_sleep 1\ns_add_u32 {sT3}, {sT3}, 1\ns_cmp_gt_u32 {sT3}, 0x40000\ns_cbranch_scc1 Lp2_ok")
        P(f"buffer_load_dword v{T+7}, v{T+6}, {SDB}, 0 offen sc1\ns_waitcnt vmcnt(0)")
        P(f"v_cmp_eq_u32 vcc, {sT2}, v{T+7}\ns_nop 4")
        P("s_cmp_eq_u64 vcc, exec\ns_cbranch_scc0 Lp2_spin")
        P("@opaque_end")
        P("Lp2_ok:")
    stamp(P, 9)

    def h_load(si):
        jj, u = STEPS[si]
        off = (jj * 11 + u) * 1024
        r = []
        for tl in range(2):
            r += [f"s_add_u32 {sSO}, {sHA[tl]}, {off}", f"buffer_load_dwordx4 {vr(HR+8*(si%NH)+4*tl,4)}, v{VL16}, {SWS}, {sSO} offen sc1"]
        return r
    for si in range(NH - 1):
        emit(h_load(si))
    cpos = [0]
    def c_reads(si):
        jj, u = STEPS[si]
        mat, up = u >> 1, u & 1
        cc, sp = jj >> 1, 2 * (jj & 1) + up
        regs = []
        for ntl in range(2):
            rho = ntl * 4 + mat * 2 + cc
            P(f"@waitvm C{rho}")
            r = ARING + 4 * (cpos[0] % NRING); cpos[0] += 1
            a = AX[sp] if rho < 4 else AXH[sp]
            P(f"ds_read_b128 {ar(r,4)}, v{a} offset:{(rho&3)*16384}")
            regs.append(r)
        return regs
    creg = {}
    CL = 2
    for si in range(CL):
        creg[si] = c_reads(si)
    AW, ARD = T + 9, T + 12
    first = [False, True, True, True]
    for si, (jj, u) in enumerate(STEPS):
        hl = h_load(si + NH - 1) if si + NH - 1 < 44 else []
        for tl in range(2):
            for ntl in range(2):
                a = 2 * tl + ntl
                bw = ar(creg[si][ntl], 4) if u < 4 else ar(wreg((jj * 7 + u - 4) * 2 + ntl), 4)
                acc = vr(ACC[a], 16)
                P(f"v_mfma_f32_32x32x16_bf16 {acc}, {vr(HR+8*(si%NH)+4*tl,4)}, {bw}, {'0' if first[a] else acc}")
                first[a] = False
                if a == 0: emit(hl[:2])
                if a == 1: emit(hl[2:])
                if a == 2:
                    nx = si + CL
                    if nx < 44 and STEPS[nx][1] < 4:
                        creg[nx] = c_reads(nx)
        if si == 40:
            P(f"v_add_u32 v{AW}, {sWL}, v{VL16}")
            for a in range(1, 4):
                P(f"s_xor_b32 {sT0}, {sWL}, {a*4096}\nv_add_u32 v{ARD+a}, {sT0}, v{VL16}")
            P(f"s_lshl_b32 {sRB}, {sRB}, 1")
    stamp(P, 10)
    for a in range(1, 4):
        for k in range(4):
            P(f"ds_write_b128 v{AW}, {vr(ACC[a]+4*k,4)} offset:{a*16384+k*1024}")
    P("@waitlg0\ns_barrier")
    for k in range(4):
        for a in range(1, 4):
            P(f"ds_read_b128 {vr(HR+16*(a-1)+4*k,4)}, v{ARD+a} offset:{a*16384+k*1024}")
    for k in range(4):
        for a in range(1, 4):
            for r in range(4):
                q = 4 * k + r
                P(f"v_add_f32 v{ACC[0]+q}, v{ACC[0]+q}, v{HR+16*(a-1)+q}")
        for pr in range(2):
            P(f"s_add_u32 {sT0}, {sRB}, {(4*k+2*pr)*2048}")
            for r in range(2):
                P(f"buffer_store_dword v{ACC[0]+4*k+2*pr+r}, v{VOO}, {SOUT}, {sT0} offen offset:{r*2048}")
    if OPT["stamps"]:
        P("@waitall")
        stamp(P, 11)


def finalize(P):
    st = {}
    l = auto_wait(P.l)
    l = pad_hazards(l, st)
    return l, st


def kd(name, nv=512):
    return f""".amdhsa_kernel {name}
  .amdhsa_next_free_vgpr {nv}
  .amdhsa_next_free_sgpr 102
  .amdhsa_accum_offset 256
  .amdhsa_group_segment_fixed_size 0
  .amdhsa_kernarg_size 128
  .amdhsa_user_sgpr_count 2
  .amdhsa_user_sgpr_kernarg_segment_ptr 1
  .amdhsa_system_sgpr_workgroup_id_x 1
.end_amdhsa_kernel"""


def main():
    from collections import Counter
    ref = open(f"cdna_kernels/{NAME}.s.ref").read().split("\n")
    head = [l for l in ref if l.startswith(";") and "@launch" not in l and "Override launch" not in l and "grid=ceil" not in l]
    out = list(head)
    progs = []
    if FUSED:
        k1 = NAME + "_kernel"
        out.append("; @launch grid=(256,1,1) block=(256,1,1) lds=163840")
        out.append('.amdgcn_target "amdgcn-amd-amdhsa--gfx950"\n.text')
        P = Prog()
        common_head(P, k1, "k1_exit")
        early = phase1(P)
        print("early W2 loads left over:", len(early))
        phase2(P, False, early)
        l1, st1 = finalize(P)
        progs.append(("fused", l1, st1))
        out.append(f".globl {k1}\n.p2align 8\n.type {k1},@function\n{k1}:\nk1_start:")
        out.append(render(l1))
        out.append("k1_exit:\n    s_endpgm\nk1_end:")
        out.append('.section .rodata,"a"\n.p2align 6')
        out.append(kd(k1))
    else:
        k1, k2 = "s5glu_p1_kernel", "s5glu_p2_kernel"
        out.append(f"; @launch kernel={k1} grid=(256,1,1) block=(256,1,1) lds=163840")
        out.append(f"; @launch kernel={k2} grid=(256,1,1) block=(256,1,1) lds=131072")
        out.append('.amdgcn_target "amdgcn-amd-amdhsa--gfx950"\n.text')
        P = Prog()
        common_head(P, k1, "k1_exit")
        phase1(P)
        P("@waitall")
        stamp(P, 5)
        l1, st1 = finalize(P)
        out.append(f".globl {k1}\n.p2align 8\n.type {k1},@function\n{k1}:\nk1_start:")
        out.append(render(l1))
        out.append("k1_exit:\n    s_endpgm\nk1_end:")
        P = Prog()
        common_head(P, k2, "k2_exit")
        phase2(P, True, None)
        l2, st2 = finalize(P)
        out.append(f".globl {k2}\n.p2align 8\n.type {k2},@function\n{k2}:\nk2_start:")
        out.append(render(l2))
        out.append("k2_exit:\n    s_endpgm\nk2_end:")
        out.append('.section .rodata,"a"\n.p2align 6')
        out.append(kd(k1))
        out.append(".p2align 6")
        out.append(kd(k2))
        progs += [("p1", l1, st1), ("p2", l2, st2)]
    open(sys.argv[1], "w").write("\n".join(out) + "\n")
    for nm, l, st in progs:
        c = Counter(i.kind for i in l)
        print(nm, dict(c), "slots", sum(i.cost for i in l), st)

main()
```

```python
import sys, struct, math
sys.path.insert(0, "work")
from asmlib import *

NAME = "parallel_sum__ssm_conv_s5__glu_gated_glu__prompt"
OPT = dict(fused=1, bfirst=0, to1=4, to2=2, look=6, dmagap=3, hring=6, stamps=0, codepf=1, late=8, budget=6, xlook=2)
for a in sys.argv[2:]:
    k, v = a.split("=")
    OPT[k] = int(v)
FUSED = OPT["fused"]

def f2u(x):
    return struct.unpack("<I", struct.pack("<f", x))[0]
LOG2E = f2u(1.4426950408889634)
INV2PI = f2u(0.15915494309189535)

H_OFF = 0
W2_OFF = 12 << 20
E_OFF = 15 << 20
ST_OFF = (15 << 20) + 65536
STAMP_OFF = (15 << 20) + 131072
WS_WIN = 16 << 20
OOB = 0x40000000

SCR = 131072
EXZ = SCR
EX = SCR + 1792
CSB = SCR + 4096
CSG = SCR + 5120
RS = SCR + 6144
HT = SCR + 8192

SX, SBR, SBI, SW, SWD, SWS, SDB, SE, SCRE, SCIM, SOUT, SCD = [f"s[{4+4*i}:{7+4*i}]" for i in range(12)]
def srd(i): return 4 + 4 * i
iSX, iSBR, iSBI, iSW, iSWD, iSWS, iSDB, iSE, iSCRE, iSCIM, iSOUT, iSCD = [srd(i) for i in range(12)]
pLRE, pLIM, pLDT, pDSK, pWU = 52, 54, 56, 58, 60
sW, sM, sJ, sJ4, sROT = "s62", "s63", "s64", "s65", "s66"
sT0, sT1, sT2, sT3 = "s67", "s76", "s77", "s78"
KB = [f"s{68+i}" for i in range(8)]
sXB, sBB, sPB, sWL = "s79", "s80", "s81", "s82"
sONE, sHB = "s83", "s84"
sHT = [f"s{85+i}" for i in range(7)]
sSO = "s92"
sL2E, sI2P = "s93", "s94"
sFL = "s95"
sU0, sU1, sU2, sU3 = "s96", "s97", "s98", "s99"

ACC_S = 0
ACC_G = [32 + 16 * t for t in range(7)]
CSBR, CSBI, CSGA = 144, 148, 152
SEL, XE, CE0, CE1 = 156, 160, 164, 168
AX = [172, 173, 174, 175]
AB = [176, 177, 178, 179]
ABC = 180
AP = [181, 182, 183, 184]
APH = [185, 186, 187, 188]
VX = [189, 190, 191, 192]
VB, VL16 = 193, 194
C1, SIG = 195, 196
L1R, L1I, L16R, L16I, L128R, L128I, LSR, LSI, KR, KI, PR, PI = range(197, 209)
S1, S2 = 209, 210
VEW, VER, AEXW, AEXR, ARS, AHW, AHR, ACSB_W, ACSB_R, ACSG_W, VST, VC4 = range(211, 223)
VLANE = 223
TMP = 224
AXF = 0
ARING = 128
NRING = 8

def vr(a, n=1): return f"v{a}" if n == 1 else f"v[{a}:{a+n-1}]"
def ar(a, n=1): return f"a{a}" if n == 1 else f"a[{a}:{a+n-1}]"


class Prog:
    def __init__(self):
        self.l = []
    def __call__(self, text, tag=None):
        for t in text.split("\n"):
            t = t.strip()
            if t:
                self.l.append(Ins(t, tag))
    def add(self, ins):
        self.l.append(ins)


def stamp(P, idx):
    if not OPT["stamps"]:
        return
    P("@opaque_begin")
    P(("s_memrealtime" if OPT["stamps"] == 2 else "s_memtime") + " s[100:101]\ns_waitcnt lgkmcnt(0)")
    P("@opaque_end")
    P(f"v_mov_b32 v{TMP+31}, s100")
    P(f"v_mov_b32 v{TMP+30}, 0")
    P(f"s_lshl_b32 s100, s2, 2\ns_add_u32 s100, s100, {sW}\ns_lshl_b32 s100, s100, 8\ns_add_u32 s100, s100, {STAMP_OFF + 4*idx}")
    P(f"buffer_store_dword v{TMP+31}, v{TMP+30}, {SWS}, s100 offen", tag="stamp")


def bf16r(P, dst, src):
    P(f"v_cvt_pk_bf16_f32 v{dst}, v{src}, v{src}")
    P(f"v_and_b32 v{dst}, 0xffff0000, v{dst}")


def common_head(P, kname, endlabel):
    P(f"s_cmp_ge_u32 s2, 256\ns_cbranch_scc1 {endlabel}")
    if OPT["stamps"]:
        P(("s_memrealtime" if OPT["stamps"] == 2 else "s_memtime") + " s[100:101]\ns_waitcnt lgkmcnt(0)\ns_mov_b32 s3, s100")
    if OPT.get("badmap"):
        P("s_and_b32 s3, s2, 7\ns_lshl_b32 s3, s3, 3\ns_lshr_b32 s4, s2, 3\ns_and_b32 s4, s4, 7\ns_or_b32 s3, s3, s4\ns_and_b32 s2, s2, 0xc0\ns_or_b32 s2, s2, s3")
    if OPT.get("failif") or OPT.get("padto"):
        P("s_memrealtime s[100:101]\ns_waitcnt lgkmcnt(0)\ns_mov_b32 s3, s100")

def stamp_entry(P, idx):
    if not OPT["stamps"]:
        return
    P(f"v_mov_b32 v{TMP+31}, s3")
    P(f"v_mov_b32 v{TMP+30}, 0")
    P(f"s_lshl_b32 s100, s2, 2\ns_add_u32 s100, s100, {sW}\ns_lshl_b32 s100, s100, 8\ns_add_u32 s100, s100, {STAMP_OFF + 4*idx}")
    P(f"buffer_store_dword v{TMP+31}, v{TMP+30}, {SWS}, s100 offen", tag="stamp")


def load_ptrs(P, items):
    for off, s in items:
        P(f"s_load_dwordx2 s[{s}:{s+1}], s[0:1], {off}")


def set_srd(P, i, nbytes):
    P(f"s_mov_b32 s{i+2}, {nbytes}\ns_mov_b32 s{i+3}, 0x20000")


def code_prefetch(P, start, size_expr, nkb):
    per = (nkb + 31) // 32
    P(f"s_getpc_b64 s[{iSCD}:{iSCD+1}]")
    P(f"Lpc_{start}:")
    P(f"s_sub_u32 s{iSCD}, s{iSCD}, Lpc_{start}-{start}\ns_subb_u32 s{iSCD+1}, s{iSCD+1}, 0")
    P(f"s_mov_b32 s{iSCD+2}, {size_expr}\ns_mov_b32 s{iSCD+3}, 0x20000")
    P(f"s_lshr_b32 {sT0}, s2, 3\ns_and_b32 {sT0}, {sT0}, 31\ns_mul_i32 {sT0}, {sT0}, {per*1024}")
    P(f"v_lshlrev_b32 v{TMP+28}, 2, v0")
    for k in range(per):
        P(f"buffer_load_dword v{TMP+29}, v{TMP+28}, {SCD}, {sT0} offen offset:{k*1024}" if k < 4 else "", tag="code")


def cpow(P, n_expr, dr, di, A, Bq, t0, t1):
    if n_expr is None:
        P(f"v_exp_f32 v{t0}, v{A}")
        P(f"v_fract_f32 v{t1}, v{Bq}")
    else:
        P(f"v_mul_f32 v{t0}, {n_expr}, v{A}")
        P(f"v_mul_f32 v{t1}, {n_expr}, v{Bq}")
        P(f"v_exp_f32 v{t0}, v{t0}")
        P(f"v_fract_f32 v{t1}, v{t1}")
    P(f"v_cos_f32 v{dr}, v{t1}")
    P(f"v_sin_f32 v{di}, v{t1}")
    P(f"v_mul_f32 v{dr}, v{t0}, v{dr}")
    P(f"v_mul_f32 v{di}, v{t0}, v{di}")


def cfma(dr, di, lr, li, sr, si, ur, ui, tr, ti):
    return [f"v_fma_f32 v{tr}, v{lr}, v{sr}, v{ur}",
            f"v_fma_f32 v{ti}, v{lr}, v{si}, v{ui}",
            f"v_fma_f32 v{dr if dr != sr else tr}, -v{li}, v{si}, v{tr}",
            f"v_fma_f32 v{di}, v{li}, v{sr}, v{ti}"] + ([f"v_mov_b32 v{dr}, v{tr}"] if dr == sr else [])


def phase1(P):
    T = TMP
    PA, PB = ("Q", "P") if OPT["bfirst"] else ("P", "Q")
    NT = {"P": 4, "Q": 3}
    GI = lambda ps, t: t if ps == "P" else 4 + t
    ACC2 = ACC_G[GI(PB, 0)]
    ACC2L = ACC_G[GI(PB, NT[PB] - 1)]
    VRP, PK_VQ, PK_TRB, PK_SSW = ACC2L + 15, ACC2L + 14, ACC2L + 13, ACC2L + 12
    TB = [sU0, sU1, sU2]

    def emit(lst):
        for x in lst:
            if isinstance(x, tuple):
                P(x[0], tag=x[1])
            else:
                P(x)

    load_ptrs(P, [(0, iSX), (24, iSBR), (32, iSBI), (8, pLRE), (16, pLIM), (56, pLDT), (80, iSW), (88, pWU),
                  (96, iSWD), (120, iSWS), (112, iSDB)])
    if FUSED:
        load_ptrs(P, [(40, iSCRE), (48, iSCIM), (104, iSOUT), (64, pDSK)])
    if OPT["codepf"]:
        code_prefetch(P, "k1_start", "k1_end-k1_start", 32)
    P(f"v_lshrrev_b32 v{T}, 6, v0")
    P(f"v_and_b32 v{VLANE}, 63, v0")
    P(f"v_readfirstlane_b32 {sW}, v{T}")
    P(f"""s_and_b32 {sT0}, s2, 7
          s_lshr_b32 {sT1}, s2, 3
          s_and_b32 {sM}, {sT0}, 1
          s_lshl_b32 {sM}, {sM}, 3
          s_and_b32 {sT2}, {sT1}, 7
          s_add_u32 {sM}, {sM}, {sT2}
          s_lshr_b32 {sJ4}, {sT1}, 3
          s_lshr_b32 {sJ}, {sT0}, 1
          s_lshl_b32 {sJ}, {sJ}, 2
          s_add_u32 {sJ}, {sJ}, {sJ4}
          s_add_u32 {sROT}, {sM}, {sJ}
          s_lshl_b32 {sROT}, {sROT}, 7""")
    for n in range(8):
        P(f"s_add_u32 {sT0}, {sROT}, {n*128}\ns_and_b32 {KB[n]}, {sT0}, 0x380")
    rr, p, q, t3 = T + 1, T + 2, T + 3, T + 4
    P(f"""v_lshrrev_b32 v{rr}, 3, v{VLANE}
          v_and_b32 v{p}, 7, v{VLANE}
          v_lshrrev_b32 v{q}, 1, v{rr}
          v_xor_b32 v{q}, v{p}, v{q}
          v_lshlrev_b32 v{q}, 4, v{q}
          v_lshrrev_b32 v{t3}, 2, v{rr}
          v_lshlrev_b32 v{t3}, 4, v{t3}
          v_and_b32 v{T+5}, 3, v{rr}
          v_add_u32 v{t3}, v{t3}, v{T+5}
          v_lshl_add_u32 v{VX[0]}, v{t3}, 10, v{q}
          v_xor_b32 v{VX[1]}, 64, v{VX[0]}
          v_add_u32 v{VX[2]}, {2*3072}, v{VX[0]}
          v_add_u32 v{VX[3]}, {3*3072}, v{VX[1]}
          v_add_u32 v{VX[1]}, 3072, v{VX[1]}""")
    P(f"""s_lshl_b32 {sWL}, {sW}, 12
          s_lshl_b32 {sXB}, {sM}, 17
          s_lshl_b32 {sT0}, {sW}, 15
          s_add_u32 {sXB}, {sXB}, {sT0}
          s_lshl_b32 {sBB}, {sJ}, 15
          s_lshl_b32 {sT0}, {sW}, 13
          s_add_u32 {sBB}, {sBB}, {sT0}
          s_and_b32 {sT0}, {sW}, 1
          s_lshl_b32 {sT0}, {sT0}, 6
          v_xor_b32 v{VB}, {sT0}, v{q}
          v_lshl_add_u32 v{VB}, v{rr}, 10, v{VB}
          v_and_b32 v{VC4}, 31, v{VLANE}
          v_lshlrev_b32 v{T+6}, 1, v{VC4}
          s_lshl_b32 {sT1}, {sJ}, 6
          v_add_u32 v{T+6}, {sT1}, v{T+6}""")
    set_srd(P, iSX, 2048 * 1024); set_srd(P, iSBR, 524288); set_srd(P, iSBI, 524288)
    PLRE, PLIM, PLDT = T + 8, T + 9, T + 10

    def dma_B(n):
        base = (SCR + (n >> 1) * 16384 if n < 4 else ((n - 4) >> 1) * 16384) + (n & 1) * 2048
        return [f"s_add_u32 m0, {sWL}, {base}", f"s_add_u32 {sSO}, {sBB}, {KB[n]}",
                (f"buffer_load_dwordx4 v{VB}, {SBR}, {sSO} offen lds", f"B{n}"),
                f"s_add_u32 m0, {sWL}, {base+1024}",
                (f"buffer_load_dwordx4 v{VB}, {SBI}, {sSO} offen lds", f"B{n}")]

    def dma_X(n):
        return [f"s_add_u32 m0, {sWL}, {n*16384}", f"s_add_u32 {sSO}, {sXB}, {KB[n]}"] + \
               [(f"buffer_load_dwordx4 v{VX[sb]}, {SX}, {sSO} offen offset:{sb*1024} lds", f"X{n}") for sb in range(4)]

    XL = OPT["xlook"]
    emit(dma_X(0) + dma_B(0))
    P(f"global_load_ushort v{PLRE}, v{T+6}, s[{pLRE}:{pLRE+1}]")
    P(f"global_load_ushort v{PLIM}, v{T+6}, s[{pLIM}:{pLIM+1}]")
    P(f"global_load_ushort v{PLDT}, v{T+6}, s[{pLDT}:{pLDT+1}]")
    emit(dma_X(1) + dma_B(1))
    set_srd(P, iSW, 1835008); set_srd(P, iSWD, 1835008); set_srd(P, iSWS, WS_WIN); set_srd(P, iSDB, 256)
    stamp(P, 6)
    if FUSED:
        set_srd(P, iSCRE, 524288); set_srd(P, iSCIM, 524288); set_srd(P, iSOUT, 4 << 20)
    stamp_entry(P, 0)
    P(f"""s_mov_b32 {sONE}, 0x3f803f80
          s_mov_b32 {sL2E}, {LOG2E}
          s_mov_b32 {sI2P}, {INV2PI}
          s_bitcmp1_b32 {sW}, 0
          s_cselect_b32 s{iSW}, s{pWU}, s{iSW}
          s_cselect_b32 s{iSW+1}, s{pWU+1}, s{iSW+1}
          s_lshl_b32 {sT0}, {sJ}, 12
          s_add_u32 {sT0}, {sT0}, {E_OFF}
          s_add_u32 s{iSE}, s{iSWS}, {sT0}
          s_addc_u32 s{iSE+1}, s{iSWS+1}, 0""")
    set_srd(P, iSE, 4096)
    P(f"""s_mul_i32 {sPB}, {sJ}, 224
          s_lshr_b32 {sT0}, {sW}, 1
          s_mul_i32 {sT0}, {sT0}, {8*3584}
          s_add_u32 {sPB}, {sPB}, {sT0}
          s_lshl_b32 {sT0}, {sM}, 2
          s_add_u32 {sT0}, {sT0}, {sW}
          s_mul_i32 {sHB}, {sT0}, 176
          s_mul_i32 {sT0}, {sJ}, 11
          s_add_u32 {sHB}, {sHB}, {sT0}
          s_lshl_b32 {sHB}, {sHB}, 10
          s_add_u32 {sT2}, {sJ4}, 4
          s_lshl_b32 {sT2}, {sT2}, 10
          s_add_u32 {sT2}, {sT2}, {sHB}""")
    for t in range(4):
        P(f"""s_add_u32 {sT0}, {sW}, {t}
              s_and_b32 {sT0}, {sT0}, 3
              s_lshl_b32 {sT0}, {sT0}, 10
              s_add_u32 {sHT[t]}, {sT2}, {sT0}""")
    for t in range(3):
        tab = sum((((w + t) % 3) << (4 * w)) for w in range(4))
        P(f"""s_lshl_b32 {sT0}, {sW}, 2
              s_lshr_b32 {sT0}, {tab}, {sT0}
              s_and_b32 {TB[t]}, {sT0}, 3
              s_cmp_lt_u32 {TB[t]}, {sJ4}
              s_cselect_b32 {sT1}, 4, 8
              s_add_u32 {sT0}, {TB[t]}, {sT1}
              s_lshl_b32 {sT0}, {sT0}, 10
              s_add_u32 {sHT[4+t]}, {sHB}, {sT0}""")
    P(f"s_lshl_b32 {sFL}, {sM}, 4\ns_add_u32 {sFL}, {sFL}, {sJ}")
    P(f"s_cmp_eq_u32 {sW}, 3\ns_cselect_b32 {sFL}, {sFL}, {OOB}")
    hh, f, row = T + 11, T + 12, T + 13
    P(f"""v_lshrrev_b32 v{hh}, 5, v{VLANE}
          v_bfe_u32 v{f}, v{VLANE}, 1, 3
          v_xor_b32 v{f}, v{f}, v{hh}
          v_lshlrev_b32 v{f}, 4, v{f}
          v_and_b32 v{row}, 7, v{VLANE}
          v_lshlrev_b32 v{row}, 7, v{row}
          v_bfe_u32 v{T+14}, v{VLANE}, 3, 2
          v_lshl_add_u32 v{T+15}, v{T+14}, 10, v{row}
          v_add_u32 v{T+15}, {sWL}, v{T+15}
          v_lshl_add_u32 v{T+16}, v{T+14}, 12, v{row}
          v_add_u32 v{T+16}, {SCR}, v{T+16}""")
    for s_ in range(4):
        P(f"v_xor_b32 v{T+17}, {32*s_}, v{f}")
        P(f"v_add_u32 v{AX[s_]}, v{T+15}, v{T+17}")
        P(f"v_add_u32 v{AB[s_]}, v{T+16}, v{T+17}")
    P(f"s_lshl_b32 {sT0}, {sW}, 5")
    P(f"v_xor_b32 v{T+17}, {sT0}, v{f}")
    P(f"v_add_u32 v{ABC}, v{T+16}, v{T+17}")
    P(f"v_lshlrev_b32 v{VL16}, 4, v{VLANE}")
    P(f"""v_bfe_u32 v{T+17}, v{VLANE}, 2, 1
          v_bfe_u32 v{T+22}, v{VLANE}, 4, 1
          v_xor_b32 v{T+17}, v{T+17}, v{T+22}
          v_and_b32 v{T+21}, 3, v{VLANE}
          v_or_b32 v{T+17}, v{T+17}, v{T+21}
          v_cmp_eq_u32 vcc, 0, v{T+17}
          v_mov_b32 v{T+18}, {sONE}
          v_mov_b32 v{S1}, 0
          v_cndmask_b32 v{SEL}, 0, v{T+18}, vcc
          v_mov_b32 v{S2}, 0
          v_mov_b32 v{SEL+1}, v{SEL}
          v_mov_b32 v{SEL+2}, v{SEL}
          v_mov_b32 v{SEL+3}, v{SEL}""")
    if XL >= 3:
        emit(dma_X(2) + dma_B(2))
    for r in (XE + 1, XE + 2, XE + 3, CE0 + 1, CE0 + 2, CE0 + 3, CE1 + 1, CE1 + 2, CE1 + 3):
        P(f"v_mov_b32 v{r}, 0")
    P(f"""v_lshrrev_b32 v{T+17}, 4, v{VLANE}
          v_bfe_u32 v{T+20}, v{VLANE}, 2, 2
          v_lshlrev_b32 v{PK_TRB}, 7, v{T+20}
          v_lshl_add_u32 v{PK_TRB}, v{T+17}, 12, v{PK_TRB}
          v_lshl_add_u32 v{PK_TRB}, v{T+21}, 3, v{PK_TRB}
          v_bfe_u32 v{PK_SSW}, v{VLANE}, 3, 1
          v_lshl_add_u32 v{PK_SSW}, v{T+22}, 1, v{PK_SSW}
          v_lshlrev_b32 v{PK_SSW}, 5, v{PK_SSW}""")

    def set_ap(ps, tmp):
        r = []
        for t in range(NT[ps]):
            if ps == "P":
                r += [f"s_add_u32 {tmp}, {sW}, {t}", f"s_and_b32 {tmp}, {tmp}, 3", f"s_lshl_b32 {tmp}, {tmp}, 5"]
            else:
                r += [f"s_lshl_b32 {tmp}, {TB[t]}, 5"]
            r += [f"v_xor_b32 v{AP[t]}, {tmp}, v{PK_SSW}", f"v_add_u32 v{AP[t]}, v{PK_TRB}, v{AP[t]}", f"v_add_u32 v{APH[t]}, 0x10000, v{AP[t]}"]
        return r
    emit(set_ap(PA, sT0))
    P(f"""s_mul_i32 {sT0}, {sW}, 5120
          s_add_u32 {sT0}, {sT0}, {HT}
          v_mul_u32_u24 v{AHW}, 80, v{VC4}
          v_lshl_add_u32 v{AHW}, v{hh}, 5, v{AHW}
          v_add_u32 v{AHW}, {sT0}, v{AHW}
          v_lshl_add_u32 v{AHR}, v{hh}, 3, v{T+20}
          v_mul_u32_u24 v{AHR}, 80, v{AHR}
          v_and_b32 v{T+23}, 1, v{VLANE}
          v_lshl_add_u32 v{AHR}, v{T+23}, 5, v{AHR}
          v_lshl_add_u32 v{AHR}, v{T+22}, 4, v{AHR}
          v_bfe_u32 v{T+23}, v{VLANE}, 1, 1
          v_lshl_add_u32 v{AHR}, v{T+23}, 3, v{AHR}
          v_add_u32 v{AHR}, {sT0}, v{AHR}""")
    seg = T + 23
    P(f"""s_lshl_b32 {sT0}, {sW}, 1
          v_add_u32 v{seg}, {sT0}, v{hh}
          v_lshlrev_b32 v{AEXR}, 8, v{seg}
          v_lshl_add_u32 v{AEXR}, v{VC4}, 3, v{AEXR}
          v_add_u32 v{AEXR}, {EXZ}, v{AEXR}
          v_add_u32 v{AEXW}, 1792, v{AEXR}
          s_sub_u32 {sT0}, 16, {sM}
          s_lshl_b32 {sT0}, {sT0}, 8
          v_lshlrev_b32 v{VER}, 3, v{VC4}
          v_add_u32 v{VER}, {sT0}, v{VER}
          v_cmp_eq_u32 vcc, 7, v{seg}
          v_add_u32 v{VEW}, -256, v{VER}
          v_mov_b32 v{T+24}, {OOB}
          v_cndmask_b32 v{VEW}, v{T+24}, v{VEW}, vcc""")
    tau = T + 25
    RSW = PR
    P(f"""v_bfe_u32 v{tau}, v{VLANE}, 2, 1
          v_lshlrev_b32 v{tau}, 4, v{tau}
          v_lshl_add_u32 v{tau}, v{T+14}, 2, v{tau}
          v_add_u32 v{tau}, v{tau}, v{T+21}
          s_lshr_b32 {sT0}, {sXB}, 7
          s_add_u32 {sT0}, {sT0}, {ST_OFF}
          s_cmp_eq_u32 {sJ}, 0
          s_cselect_b32 {sT0}, {sT0}, {OOB}
          v_lshlrev_b32 v{VST}, 3, v{tau}
          v_add_u32 v{VST}, {sT0}, v{VST}
          s_lshl_b32 {sT0}, {sW}, 7
          s_add_u32 {sT0}, {sT0}, {RS}
          v_lshlrev_b32 v{RSW}, 2, v{tau}
          v_add_u32 v{RSW}, {sT0}, v{RSW}
          v_lshlrev_b32 v{ARS}, 6, v{hh}
          v_add_u32 v{ARS}, {sT0}, v{ARS}
          s_lshl_b32 {sT0}, {sW}, 2
          v_lshlrev_b32 v{ACSB_R}, 4, v{VC4}
          v_add_u32 v{ACSB_R}, {CSB}, v{ACSB_R}
          v_add_u32 v{ACSB_W}, {sT0}, v{ACSB_R}
          v_lshlrev_b32 v{ACSG_W}, 2, v{VC4}
          v_add_u32 v{ACSG_W}, {CSG}, v{ACSG_W}""")
    dP, dQ = (PI, PK_VQ) if PA == "P" else (PK_VQ, PI)
    P(f"""s_and_b32 {sT0}, {sW}, 1
          s_lshl_b32 {sT0}, {sT0}, 1
          v_add_u32 v{T+26}, {sT0}, v{T+22}
          v_bfe_u32 v{T+27}, v{VLANE}, 1, 2
          v_xor_b32 v{T+26}, v{T+26}, v{T+27}
          v_and_b32 v{T+27}, 1, v{VLANE}
          v_lshlrev_b32 v{T+27}, 4, v{T+27}
          s_movk_i32 {sT1}, 3584
          v_mad_u32_u24 v{T+27}, v{rr}, {sT1}, v{T+27}
          v_add_u32 v{T+5}, {sJ4}, v{T+26}
          v_cmp_gt_u32 vcc, {sJ4}, v{T+26}
          v_lshl_add_u32 v{dP}, v{T+5}, 5, v{T+27}
          v_add_u32 v{T+5}, 4, v{T+26}
          v_cndmask_b32 v{T+5}, v{T+5}, v{T+26}, vcc
          v_cmp_eq_u32 vcc, 3, v{T+26}
          v_lshl_add_u32 v{dQ}, v{T+5}, 5, v{T+27}
          v_lshlrev_b32 v{VRP}, 1, v{VC4}
          v_cndmask_b32 v{dQ}, v{dQ}, v{T+24}, vcc
          v_lshl_add_u32 v{VRP}, v{hh}, 12, v{VRP}""")
    VP = [ACC2L + 8 + k for k in range(4)]
    if FUSED:
        p2_scalars(P)
    a_, b_, t0, t1 = T + 26, T + 27, T + 1, T + 2
    P(f"""v_lshlrev_b32 v{PLRE}, 16, v{PLRE}
          v_lshlrev_b32 v{PLIM}, 16, v{PLIM}
          v_lshlrev_b32 v{PLDT}, 16, v{PLDT}
          v_mul_f32 v{PLDT}, {sL2E}, v{PLDT}
          v_exp_f32 v{PLDT}, v{PLDT}
          v_mov_b32 v{VP[0]}, v{PI}""")
    bf16r(P, PLDT, PLDT)
    P(f"""v_mul_f32 v{a_}, v{PLDT}, v{PLRE}
          v_mul_f32 v{b_}, v{PLDT}, v{PLIM}
          v_mul_f32 v{a_}, {sL2E}, v{a_}
          v_mul_f32 v{b_}, {sI2P}, v{b_}""")
    for k in range(1, 4):
        P(f"v_add_u32 v{VP[k]}, {k*56320}, v{PI}")
    cpow(P, None, L1R, L1I, a_, b_, t0, t1)
    cpow(P, hex(f2u(16.0)), L16R, L16I, a_, b_, t0, t1)
    cpow(P, hex(f2u(128.0)), L128R, L128I, a_, b_, t0, t1)
    P(f"v_cvt_f32_u32 v{T+3}, v{seg}\nv_mul_f32 v{T+3}, {hex(f2u(16.0))}, v{T+3}")
    cpow(P, f"v{T+3}", LSR, LSI, a_, b_, t0, t1)
    P(f"""v_mul_f32 v{t1}, v{PLRE}, v{PLRE}
          v_fma_f32 v{t1}, v{PLIM}, v{PLIM}, v{t1}
          v_rcp_f32 v{t1}, v{t1}
          v_add_f32 v{t0}, -1.0, v{L1R}
          v_mul_f32 v{KR}, v{t0}, v{PLRE}
          v_fma_f32 v{KR}, v{L1I}, v{PLIM}, v{KR}
          v_mul_f32 v{KI}, v{L1I}, v{PLRE}
          v_fma_f32 v{KI}, -v{t0}, v{PLIM}, v{KI}
          v_add_f32 v{t1}, v{t1}, v{t1}
          v_mul_f32 v{KR}, v{KR}, v{t1}
          v_mul_f32 v{KI}, v{KI}, v{t1}""")
    stamp(P, 12)

    vp_cur = [VP]
    def dma_pass(ps, b, slot):
        vp = vp_cur[0]
        r = [f"s_add_u32 m0, {sWL}, {slot*16384}", f"s_mul_i32 {sSO}, {KB[b]}, 1792", f"s_add_u32 {sSO}, {sSO}, {sPB}"]
        for ks in range(4):
            r.append((f"buffer_load_dwordx4 v{vp[ks]}, {SW}, {sSO} offen offset:{ks*1024} lds", f"{ps}{b}"))
        return r

    ringpos = [0]
    def ring():
        r = ARING + 4 * (ringpos[0] % NRING)
        ringpos[0] += 1
        return r

    rp = ACC2
    rpl = [f"s_mul_i32 {sT0}, {sJ}, 112", f"s_lshl_b32 {sT1}, {sW}, 4", f"s_add_u32 {sT0}, {sT0}, {sT1}",
           f"s_lshl_b32 {sT0}, {sT0}, 10", f"s_lshl_b32 {sT1}, {sM}, 6", f"s_add_u32 {sT0}, {sT0}, {sT1}"]
    for g in range(2):
        for half in range(2):
            rpl.append(f"s_add_u32 {sT1}, {sT0}, {g*65536 + half*8192}")
            for e in range(4):
                rpl.append((f"buffer_load_ushort v{rp+8*g+4*half+e}, v{VRP}, {SWD}, {sT1} offen offset:{e*1024}", "rp"))

    CSF = [CE0 + 0, CE1 + 0]
    npass_issued = 0
    for n in range(8):
        if n == 4:
            for s_ in range(4):
                P(f"v_add_u32 v{AX[s_]}, 0x10000, v{AX[s_]}")
                P(f"v_add_u32 v{AB[s_]}, {(-SCR) & 0xffffffff}, v{AB[s_]}")
            P(f"v_add_u32 v{ABC}, {(-SCR) & 0xffffffff}, v{ABC}")
        P(f"@waitvm X{n},B{n}\ns_barrier")
        if OPT["stamps"] and OPT.get("fine"): stamp(P, 48 + n)
        off = (n & 3) * 16384
        tb = T + 16 * (n & 1)
        for s_ in range(4):
            P(f"ds_read_b128 {vr(tb+4*s_,4)}, v{AX[s_]} offset:{off}", tag=f"xt{n}")
        for s_ in range(4):
            P(f"ds_read_b128 {ar(AXF+16*n+4*s_,4)}, v{AX[s_]} offset:{off}", tag=f"xr{n}")
        boff = ((n & 3) >> 1) * 16384 + (n & 1) * 2048
        fr = [(s_, mat, ring()) for s_ in range(4) for mat in range(2)]
        for k, (s_, mat, r) in enumerate(fr):
            P(f"ds_read_b128 {ar(r,4)}, v{AB[s_]} offset:{boff+mat*1024}", tag=f"bf{k>>2}")
            if k == 3:
                P(f"@waitlg xt{n}")
                for kk in range(8):
                    P(f"v_dot2_f32_bf16 v{S1}, v{tb+kk}, {sONE}, v{S1}")
                    P(f"v_dot2_f32_bf16 v{S2}, v{tb+kk}, v{tb+kk}, v{S2}")
        for mat in range(2):
            P(f"ds_read_b128 {ar(160+4*mat,4)}, v{ABC} offset:{boff+mat*1024}", tag="bf1")
        for kk in range(8, 16):
            P(f"v_dot2_f32_bf16 v{S1}, v{tb+kk}, {sONE}, v{S1}")
            P(f"v_dot2_f32_bf16 v{S2}, v{tb+kk}, v{tb+kk}, v{S2}")
        q_ = []
        nn = n + XL
        if nn < 8:
            q_ += dma_X(nn) + dma_B(nn)
        else:
            while npass_issued < min(6, n - 1) and len([x for x in q_ if isinstance(x, tuple)]) < 8:
                q_ += dma_pass(PA, npass_issued, npass_issued + 2)
                npass_issued += 1
        if n == 7:
            q_ += rpl
        P("@waitlg bf0")
        for k, (s_, mat, r) in enumerate(fr):
            if k == 4:
                P("@waitlg bf1")
            acc = vr(ACC_S + 16 * mat, 16)
            c = "0" if (n == 0 and s_ == 0) else acc
            P(f"v_mfma_f32_32x32x16_bf16 {acc}, {ar(AXF+16*n+4*s_,4)}, {ar(r,4)}, {c}")
            while q_:
                x = q_.pop(0)
                emit([x])
                if isinstance(x, tuple):
                    break
        for mat in range(2):
            d = vr(CSBR + 4 * mat, 4)
            P(f"v_mfma_f32_16x16x32_bf16 {d}, {vr(SEL,4)}, {ar(160+4*mat,4)}, {'0' if n == 0 else d}")
        emit(q_)
    stamp(P, 2)

    def order(nt, nto):
        o = []
        for b in range(8 - nto):
            for ks in range(4):
                for t in range(nt):
                    o.append((t, b, ks))
        for t in range(nt):
            for b in range(8 - nto, 8):
                for ks in range(4):
                    o.append((t, b, ks))
        return o
    frs = [(PA, t, b, ks) for (t, b, ks) in order(NT[PA], OPT["to1"])] + [(PB, t, b, ks) for (t, b, ks) in order(NT[PB], OPT["to2"])]
    slot_of = lambda ps, b: (b + 2) % 8
    last_use, tile_last = {}, {}
    for k, (ps, t, b, ks) in enumerate(frs):
        last_use[(ps, b)] = k
        tile_last[(ps, t)] = k
    NF = len(frs)
    last1 = max(k for k, fr in enumerate(frs) if fr[0] == PA)

    state = dict(done=-1, bars=0, marks={})
    released = {"free": True}
    pending_dma = [(PA, b) for b in range(npass_issued, 8)] + [(PB, b) for b in range(8)]
    prev_occ = {}
    for b in range(8):
        prev_occ[(PA, b)] = "free" if b < 6 else "S"
        prev_occ[(PB, b)] = (PA, b)
    dma_q = []
    opened = set()

    def barrier(tagwait=None):
        if tagwait:
            P(f"@waitvm {tagwait}")
        P("@waitlg xch")
        if OPT["stamps"] and OPT.get("fine"): stamp(P, 16 + state["bars"])
        P("s_barrier")
        state["bars"] += 1
        released["S"] = True
        for key, lu in last_use.items():
            if lu <= state["done"]:
                released[key] = True

    tasks = []
    def gate_done(k): return ("gate", lambda: state["done"] >= k)
    def gate_bar(name): return ("gate", lambda: name in state["marks"] and state["bars"] > state["marks"][name])
    def mark(name): return ("mark", name)
    def gate_mark(name): return ("gate", lambda: name in state["marks"])

    def split_cs(src, ce, t0, t1):
        return [f"v_cvt_pk_bf16_f32 v{t0}, v{src}, v{src}",
                f"v_and_b32 v{t0}, 0xffff0000, v{t0}",
                f"v_sub_f32 v{t1}, v{src}, v{t0}",
                f"v_cvt_pk_bf16_f32 v{ce}, v{t0}, v{t1}"]
    def bfr(dst, src):
        return [f"v_cvt_pk_bf16_f32 v{dst}, v{src}, v{src}", f"v_and_b32 v{dst}, 0xffff0000, v{dst}"]

    u0, u1, mean, mb, den = T, T + 1, T + 2, T + 4, T + 5
    e1 = [(f"ds_write_b32 v{ACSB_W}, v{CSBR}", "xch"), (f"ds_write_b32 v{ACSB_W}, v{CSBI} offset:512", "xch"),
          f"v_mov_b32 v{T+8}, 0", f"v_mov_b32 v{T+9}, 0",
          ("atomic", [f"s_lshl_b32 {sT2}, {sW}, 9", f"s_add_u32 {sT2}, {sT2}, {EXZ}",
                      f"v_lshrrev_b32 v{T+10}, 1, v{VL16}", f"v_add_u32 v{T+10}, {sT2}, v{T+10}"]),
          (f"ds_write_b64 v{T+10}, {vr(T+8,2)}", "xch"), mark("csb")]
    e1 += [f"v_mov_b32 v{u0}, v{S1}", f"v_mov_b32 v{u1}, v{S2}"]
    e1 += [f"v_add_u32 v{AX[s_]}, 0xffff0000, v{AX[s_]}" for s_ in range(4)]
    e1 += [f"v_permlane32_swap_b32 v{S1}, v{u0}", f"v_permlane32_swap_b32 v{S2}, v{u1}",
           f"v_add_f32 v{S1}, v{S1}, v{u0}", f"v_add_f32 v{S2}, v{S2}, v{u1}",
           f"v_mul_f32 v{mean}, {hex(f2u(1/512))}, v{S1}", f"v_mul_f32 v{S2}, {hex(f2u(1/512))}, v{S2}",
           f"v_fma_f32 v{S2}, -v{mean}, v{mean}, v{S2}", f"v_max_f32 v{S2}, 0, v{S2}"]
    e1 += bfr(S2, S2) + [f"v_add_f32 v{S2}, {hex(f2u(1e-5))}, v{S2}"] + bfr(S2, S2) + [f"v_sqrt_f32 v{S2}, v{S2}"]
    e1 += bfr(mb, mean) + bfr(den, S2)
    e1 += [f"v_rcp_f32 v{S1}, v{den}", f"v_xor_b32 v{u0}, 0x80000000, v{mb}", f"v_lshrrev_b32 v{u1}, 16, v{u0}",
           (f"ds_write_b32 v{RSW}, v{S1}", "rsw"),
           f"v_or_b32 v{u0}, v{u0}, v{u1}",
           ("atomic", [f"v_cmp_gt_u32 vcc, 32, v{VLANE}", f"v_mov_b32 v{SIG}, v{den}", f"v_mul_f32 v{C1}, {sL2E}, v{S1}",
                       f"v_cndmask_b32 v{XE}, 0, v{u0}, vcc"]),
           f"v_sub_f32 v{C1}, 0, v{C1}",
           (f"buffer_store_dwordx2 {vr(mb,2)}, v{VST}, {SWS}, 0 offen sc1", "pub1")]
    R16 = T + 8
    e1 += ["@waitlg rsw"]
    for k in range(4):
        e1.append(f"ds_read_b128 {vr(R16+4*k,4)}, v{ARS} offset:{16*k}")
    e1 += [gate_bar("csb"),
           f"ds_read_b128 {vr(T,4)}, v{ACSB_R}", f"ds_read_b128 {vr(T+4,4)}, v{ACSB_R} offset:512", ("delay", 2)]
    for mat, b in ((0, T), (1, T + 4)):
        e1 += [f"v_add_f32 v{b}, v{b}, v{b+1}", f"v_add_f32 v{b+2}, v{b+2}, v{b+3}", f"v_add_f32 v{b}, v{b}, v{b+2}"]
        e1 += split_cs(b, CE0 if mat == 0 else CE1, b + 1, b + 2)
    e1 += [f"v_mfma_f32_32x32x16_bf16 {vr(ACC_S,16)}, {vr(XE,4)}, {vr(CE0,4)}, {vr(ACC_S,16)}",
           f"v_mfma_f32_32x32x16_bf16 {vr(ACC_S+16,16)}, {vr(XE,4)}, {vr(CE1,4)}, {vr(ACC_S+16,16)}"]
    for g in range(2):
        for k in range(4):
            e1.append(f"v_lshl_or_b32 v{rp+16+4*g+k}, v{rp+8*g+2*k+1}, 16, v{rp+8*g+2*k}")
    e1 += [f"s_mul_i32 {sT2}, {sM}, 176", f"s_mul_i32 {sT3}, {sJ}, 11", f"s_add_u32 {sT2}, {sT2}, {sT3}",
           f"s_add_u32 {sT2}, {sT2}, {sW}", f"s_lshl_b32 {sT2}, {sT2}, 10", f"s_add_u32 {sT2}, {sT2}, {W2_OFF + 4096}",
           (f"buffer_store_dwordx4 {vr(rp+16,4)}, v{VL16}, {SWS}, {sT2} offen sc1", "pub1"),
           f"s_add_u32 {sT2}, {sT2}, 4096", ("atomic", [f"s_cmp_eq_u32 {sW}, 3", f"s_cselect_b32 {sT2}, {OOB}, {sT2}"]),
           (f"buffer_store_dwordx4 {vr(rp+20,4)}, v{VL16}, {SWS}, {sT2} offen sc1", "pub1")]
    for q in range(16):
        e1 += [f"v_mul_f32 v{ACC_S+q}, v{ACC_S+q}, v{R16+q}", f"v_mul_f32 v{ACC_S+16+q}, v{ACC_S+16+q}, v{R16+q}"]
    ea, eb = (T + 16, T + 17), (T + 18, T + 19)
    cur = (ACC_S, ACC_S + 16)
    for q in range(1, 16):
        nxt = ea if q % 2 else eb
        e1 += [f"v_fma_f32 v{nxt[0]}, v{L1R}, v{cur[0]}, v{ACC_S+q}",
               f"v_fma_f32 v{nxt[1]}, v{L1R}, v{cur[1]}, v{ACC_S+16+q}",
               f"v_fma_f32 v{nxt[0]}, -v{L1I}, v{cur[1]}, v{nxt[0]}",
               f"v_fma_f32 v{nxt[1]}, v{L1I}, v{cur[0]}, v{nxt[1]}"]
        cur = nxt
    assert cur == ea
    e1 += [(f"ds_write_b64 v{AEXW}, {vr(ea[0],2)}", "xch"), "@waitvm pub1", mark("ex"), gate_bar("ex")]
    for k in range(7):
        e1.append(f"ds_read_b64 {vr(T+2*k,2)}, v{AEXR} offset:{256*k}")
    e1.append(("delay", 2))
    cur = (T, T + 1)
    for k in range(1, 7):
        u = (T + 2 * k, T + 2 * k + 1)
        nx = (PR, PI) if k == 6 else u
        e1 += [f"v_fma_f32 v{T+20}, v{L16R}, v{cur[0]}, v{u[0]}",
               f"v_fma_f32 v{T+21}, v{L16R}, v{cur[1]}, v{u[1]}",
               f"v_fma_f32 v{nx[0]}, -v{L16I}, v{cur[1]}, v{T+20}",
               f"v_fma_f32 v{nx[1]}, v{L16I}, v{cur[0]}, v{T+21}"]
        cur = nx
    e1 += [f"v_fma_f32 v{T+20}, v{L16R}, v{PR}, v{ea[0]}", f"v_fma_f32 v{T+21}, v{L16R}, v{PI}, v{ea[1]}",
           f"v_fma_f32 v{T+20}, -v{L16I}, v{PI}, v{T+20}", f"v_fma_f32 v{T+21}, v{L16I}, v{PR}, v{T+21}",
           (f"buffer_store_dwordx2 {vr(T+20,2)}, v{VEW}, {SE}, 0 offen sc1", "pubE"),
           f"v_mov_b32 v{S2}, {sFL}", f"v_mov_b32 v{S1}, 1", mark("e1regs"), ("delay", OPT.get("edelay", 16)),
           "@waitvm pubE",
           (f"buffer_store_byte v{S1}, v{S2}, {SDB}, 0 offen sc0 sc1", "flag"), mark("e1done")]
    tasks.append(e1)

    ce_flip = [0]
    def glu_epi(ps, t):
        gi = GI(ps, t)
        acc = ACC_G[gi]
        pso = 0 if ps == "P" else 512
        r = [gate_done(tile_last[(ps, t)]), gate_mark("e1regs")]
        ce = CE0 if ce_flip[0] % 2 == 0 else CE1
        ce_flip[0] += 1
        tt = T + 24
        if t == 0:
            r += [("delay", 2),
                  ("atomic", [f"s_lshl_b32 {sT2}, {sW if ps == 'P' else TB[0]}, 7", f"v_add_u32 v{tt}, {sT2}, v{ACSG_W}"]),
                  (f"ds_write_b32 v{tt}, v{CSGA} offset:{pso}", "xch"), mark(f"csg{ps}")]
            r += split_cs(CSGA, ce, tt + 1, tt + 2) + [mark(f"csgfree{ps}")]
        else:
            if ps == "P":
                sc = [f"s_add_u32 {sT2}, {sW}, {t}", f"s_and_b32 {sT2}, {sT2}, 3", f"s_lshl_b32 {sT2}, {sT2}, 7"]
            else:
                sc = [f"s_lshl_b32 {sT2}, {TB[t]}, 7"]
            pre = [gate_bar(f"csg{ps}"), ("atomic", sc + [f"v_add_u32 v{tt}, {sT2}, v{ACSG_W}"]),
                   f"ds_read_b32 v{tt+3}, v{tt} offset:{pso}", ("delay", 2)] + split_cs(tt + 3, ce, tt + 1, tt + 2)
            r = pre + r
        r += [f"v_mfma_f32_32x32x16_bf16 {vr(acc,16)}, {vr(ce,4)}, {vr(XE,4)}, {vr(acc,16)}", ("delay", 2)]
        for hf in range(2):
            es = range(4 * hf, 4 * hf + 4)
            r += [f"v_mul_f32 v{acc+e}, v{C1}, v{acc+e}" for e in es]
            r += [f"v_exp_f32 v{acc+e}, v{acc+e}" for e in es]
            r += [f"v_fma_f32 v{acc+e}, v{acc+e}, v{SIG}, v{SIG}" for e in es]
            r += [f"v_rcp_f32 v{acc+e}, v{acc+e}" for e in es]
            r += [f"v_mul_f32 v{acc+8+e}, v{acc+8+e}, v{acc+e}" for e in es]
        r += [f"v_cvt_pk_bf16_f32 v{acc+k}, v{acc+8+2*k}, v{acc+9+2*k}" for k in range(4)]
        r += [(f"buffer_store_dwordx4 {vr(acc,4)}, v{VL16}, {SWS}, {sHT[gi]} offen sc1", "pubH"), mark(f"epi{ps}{t}")]
        return r

    epi1 = []
    for t in range(NT[PA]):
        epi1 += glu_epi(PA, t)
    epi2 = [gate_mark(f"epi{PA}{NT[PA]-1}")]
    for t in range(NT[PB]):
        epi2 += glu_epi(PB, t)

    sw = [f"v_mov_b32 v{VX[0]}, v{PK_VQ}"] + [f"v_add_u32 v{VX[k]}, {k*56320}, v{PK_VQ}" for k in range(1, 4)] + [mark("vq")]
    tasks.append(sw)

    EL = ACC_G[GI(PA, 0)]
    l1 = [gate_mark(f"epi{PA}1"), gate_mark("e1done"), gate_done(last1 + OPT["late"])]
    l1 += [f"v_lshrrev_b32 v{T+16}, 2, v{VL16}",
           (f"buffer_load_dword v{T+17}, v{T+16}, {SDB}, 0 offen sc1", "poll"), ("delay", OPT.get("pdelay", 10)), ("call", "poll1"), mark("poll1")]
    for k in range(15):
        l1.append(f"buffer_load_dwordx2 {vr(EL+2*k,2)}, v{VER}, {SE}, 0 offen offset:{(14-k)*256} sc1")
    l1.append(("delay", OPT.get("edelay2", 12)))
    cur = (EL, EL + 1)
    for k in range(1, 15):
        u = (EL + 2 * k, EL + 2 * k + 1)
        l1 += [f"v_fma_f32 v{T+16}, v{L128R}, v{cur[0]}, v{u[0]}",
               f"v_fma_f32 v{T+17}, v{L128R}, v{cur[1]}, v{u[1]}",
               f"v_fma_f32 v{u[0]}, -v{L128I}, v{cur[1]}, v{T+16}",
               f"v_fma_f32 v{u[1]}, v{L128I}, v{cur[0]}, v{T+17}"]
        cur = u
    sa, sb_ = (T + 16, T + 17), (T + 18, T + 19)
    l1 += [f"v_fma_f32 v{sa[0]}, v{LSR}, v{cur[0]}, v{PR}", f"v_fma_f32 v{sa[1]}, v{LSR}, v{cur[1]}, v{PI}",
           f"v_fma_f32 v{sa[0]}, -v{LSI}, v{cur[1]}, v{sa[0]}", f"v_fma_f32 v{sa[1]}, v{LSI}, v{cur[0]}, v{sa[1]}"]
    cur = sa
    for q in range(16):
        nxt = sb_ if cur == sa else sa
        l1 += [f"v_fma_f32 v{nxt[0]}, v{L1R}, v{cur[0]}, v{ACC_S+q}",
               f"v_fma_f32 v{nxt[1]}, v{L1R}, v{cur[1]}, v{ACC_S+16+q}",
               f"v_fma_f32 v{nxt[0]}, -v{L1I}, v{cur[1]}, v{nxt[0]}",
               f"v_fma_f32 v{nxt[1]}, v{L1I}, v{cur[0]}, v{nxt[1]}",
               f"v_mul_f32 v{ACC_S+q}, v{KR}, v{nxt[0]}",
               f"v_mul_f32 v{ACC_S+16+q}, v{KR}, v{nxt[1]}",
               f"v_fma_f32 v{ACC_S+q}, -v{KI}, v{nxt[1]}, v{ACC_S+q}",
               f"v_fma_f32 v{ACC_S+16+q}, -v{KI}, v{nxt[0]}, -v{ACC_S+16+q}"]
        cur = nxt
        if q % 2 == 1:
            l1 += [f"v_cvt_pk_bf16_f32 v{T+(q>>1)}, v{ACC_S+q-1}, v{ACC_S+q}",
                   f"v_cvt_pk_bf16_f32 v{T+8+(q>>1)}, v{ACC_S+16+q-1}, v{ACC_S+16+q}"]
    l1 += [(f"ds_write_b128 v{AHW}, {vr(T,4)}", "htw"), (f"ds_write_b128 v{AHW}, {vr(T+4,4)} offset:16", "htw"),
           (f"ds_write_b128 v{AHW}, {vr(T+8,4)} offset:{32*80}", "htw"), (f"ds_write_b128 v{AHW}, {vr(T+12,4)} offset:{32*80+16}", "htw"),
           ("delay", 2), "@waitlg htw"]
    for u in range(4):
        for a in range(2):
            l1.append(f"ds_read_b64_tr_b16 {vr(ACC_S+4*u+2*a,2)}, v{AHR} offset:{(16*u+4*a)*80}")
    l1.append(("delay", 2))
    for u in range(4):
        l1.append((f"buffer_store_dwordx4 {vr(ACC_S+4*u,4)}, v{VL16}, {SWS}, {sHB} offen offset:{u*1024} sc1", "pubH"))
    l1.append(mark("l1done"))

    def poll1():
        d, t = T + 17, T + 18
        P(f"s_mov_b32 {sT2}, 0x01010101")
        P(f"v_lshrrev_b32 v{t}, 1, v{d}\nv_or_b32 v{t}, v{t}, v{d}\nv_and_b32 v{t}, {sT2}, v{t}\nv_cmp_eq_u32 vcc, {sT2}, v{t}")
        P("s_cmp_eq_u64 vcc, exec\ns_cbranch_scc1 Lp1_ok")
        P("@opaque_begin")
        P(f"s_mov_b32 {sT3}, 0")
        P(f"Lp1_spin:\ns_sleep 2\ns_add_u32 {sT3}, {sT3}, 1\ns_cmp_gt_u32 {sT3}, 0x40000\ns_cbranch_scc1 Lp1_ok")
        P(f"buffer_load_dword v{d}, v{T+16}, {SDB}, 0 offen sc1\ns_waitcnt vmcnt(0)")
        P(f"v_lshrrev_b32 v{t}, 1, v{d}\nv_or_b32 v{t}, v{t}, v{d}\nv_and_b32 v{t}, {sT2}, v{t}\nv_cmp_eq_u32 vcc, {sT2}, v{t}\ns_nop 4")
        P("s_cmp_eq_u64 vcc, exec\ns_cbranch_scc0 Lp1_spin")
        P("@opaque_end")
        P("Lp1_ok:")
    calls = dict(poll1=poll1)

    tasks += [epi1, l1, epi2]
    tpos = [0] * len(tasks)
    tdelay = [0] * len(tasks)
    gapno = [0]

    def fill(budget, flush=False):
        progress = True
        while (budget > 0 or flush) and progress:
            progress = False
            for ti, tk in enumerate(tasks):
                while tpos[ti] < len(tk):
                    it = tk[tpos[ti]]
                    if isinstance(it, tuple) and it[0] == "gate":
                        if it[1]():
                            tpos[ti] += 1
                            continue
                        break
                    if isinstance(it, tuple) and it[0] == "mark":
                        state["marks"][it[1]] = state["bars"]
                        tpos[ti] += 1
                        continue
                    if isinstance(it, tuple) and it[0] == "delay":
                        tdelay[ti] = gapno[0] + it[1]
                        tpos[ti] += 1
                        continue
                    break
                if tpos[ti] >= len(tk):
                    continue
                it = tk[tpos[ti]]
                if isinstance(it, tuple) and it[0] == "gate":
                    continue
                if tdelay[ti] > gapno[0] and not flush:
                    continue
                if isinstance(it, tuple) and it[0] == "call":
                    calls[it[1]]()
                    budget -= 8
                elif isinstance(it, tuple) and it[0] == "atomic":
                    for x in it[1]:
                        P(x); budget -= P.l[-1].cost
                elif isinstance(it, tuple):
                    P(it[0], tag=it[1]); budget -= P.l[-1].cost
                else:
                    if budget == 1 and not flush and Ins(it).cost == 2 and Ins(it).kind == "valu":
                        return budget
                    P(it); budget -= P.l[-1].cost
                    if P.l[-1].kind == "mfma":
                        budget = OPT["budget"]
                        gapno[0] += 1
                tpos[ti] += 1
                progress = True
                break
        return budget

    fr_ring = {}
    def issue_reads(k):
        ps, t, b, ks = frs[k]
        n = 0
        if (ps, b) not in opened:
            assert not any(x == (ps, b) for x in pending_dma) and not any(isinstance(x, tuple) and x[1] == f"{ps}{b}" for x in dma_q), f"block {ps}{b} not issued in time"
            barrier(f"{ps}{b}")
            opened.add((ps, b))
            n += 2
        if k == last1 + 1:
            sa_ = set_ap(PB, sT1)
            emit(sa_)
            n += len(sa_)
        sl = slot_of(ps, b)
        a = AP[t] if sl < 4 else APH[t]
        off = (sl & 3) * 16384 + ks * 1024
        r = ring()
        fr_ring[k] = r
        P(f"ds_read_b64_tr_b16 {ar(r,2)}, v{a} offset:{off}", tag=f"f{k}")
        P(f"ds_read_b64_tr_b16 {ar(r+2,2)}, v{a} offset:{off+512}", tag=f"f{k}")
        return n + 2

    early = early_loads() if FUSED else []
    LOOK = OPT["look"]
    for k in range(LOOK):
        issue_reads(k)
    seen_tile = set()
    since_dma = 99
    for k, (ps, t, b, ks) in enumerate(frs):
        acc = vr(ACC_G[GI(ps, t)], 16)
        c = acc if (ps, t) in seen_tile else "0"
        xf = ar(AXF + 16 * b + 4 * ks, 4)
        budget = OPT["budget"]
        if k % 2 == 0:
            P(f"@waitlg f{k},f{min(k+1, NF-1)}")
            budget -= 1
        P(f"v_mfma_f32_32x32x16_bf16 {acc}, {ar(fr_ring[k],4)}, {xf}, {c}")
        if t == 0:
            d = vr(CSGA, 4)
            cs_c = d if (ps, t) in seen_tile else "0"
            pend_cs = f"v_mfma_f32_16x16x32_bf16 {d}, {vr(SEL,4)}, {ar(fr_ring[k],4)}, {cs_c}"
        else:
            pend_cs = None
        if ps == PB and (ps, t) not in seen_tile:
            assert "e1regs" in state["marks"] and f"csgfree{PA}" in state["marks"] and "vq" in state["marks"], state["marks"]
            assert not any(x[0] == PA for x in pending_dma)
        seen_tile.add((ps, t))
        if pend_cs is None:
            state["done"] = k
        if k + LOOK < NF:
            budget -= issue_reads(k + LOOK)
        since_dma += 1
        if not dma_q and pending_dma:
            blk = pending_dma[0]
            if released.get(prev_occ[blk]) and (blk[0] == PA or "vq" in state["marks"]):
                vp_cur[0] = VP if blk[0] == PA else VX
                dma_q.extend(dma_pass(blk[0], blk[1], slot_of(*blk)))
                pending_dma.pop(0)
        if not dma_q and not pending_dma and early and "poll1" in state["marks"]:
            dma_q.extend(early.pop(0))
        if dma_q and since_dma >= OPT["dmagap"]:
            while dma_q:
                x = dma_q.pop(0)
                budget -= 1
                emit([x])
                if isinstance(x, tuple):
                    break
            since_dma = 0
        budget = fill(budget)
        gapno[0] += 1
        if pend_cs:
            P(pend_cs)
            state["done"] = k
            fill(2 + min(budget, 0))
    assert not pending_dma
    emit(dma_q)
    stamp(P, 3)
    for _ in range(4):
        fill(0, flush=True)
        if all(tpos[i] >= len(tasks[i]) for i in range(len(tasks))):
            break
        barrier()
    assert all(tpos[i] >= len(tasks[i]) for i in range(len(tasks))), [(tpos[i], len(tasks[i])) for i in range(len(tasks))]
    stamp(P, 4)
    return early


sWA = ["s52", "s53"]
sHA = ["s54", "s55"]
sCB = ["s56", "s57"]
sRB, sSTB = "s60", "s61"
sCOL, sPF = "s48", "s49"
STEPS = [(jj, u) for jj in range(4) for u in range(11)]

def wreg(wi):
    return (160 + 4 * wi) if wi < 24 else 4 * (wi - 24)

def w_load(wi):
    g7, ntl = wi >> 1, wi & 1
    jj, g = g7 // 7, g7 % 7
    off = (jj * 11 + 4 + g) * 1024
    return [f"s_add_u32 {sSO}, {sWA[ntl]}, {off}",
            (f"buffer_load_dwordx4 {ar(wreg(wi),4)}, v{VL16}, {SWS}, {sSO} offen sc1", "w2")]

def early_loads():
    return [w_load(wi) for wi in range(24)]

def p2_scalars(P):
    mp, nn, a, b = "s50", "s51", sT0, sT1
    P(f"""s_and_b32 {a}, s2, 7
          s_lshr_b32 {b}, s2, 3
          s_lshl_b32 {mp}, {a}, 2
          s_and_b32 {a}, {b}, 3
          s_add_u32 {mp}, {mp}, {a}
          s_lshr_b32 {nn}, {b}, 2
          s_lshr_b32 {sPF}, {mp}, 1
          s_lshl_b32 {sPF}, {sPF}, 2
          s_add_u32 {sPF}, {sPF}, {sW}
          s_lshl_b32 {sPF}, {sPF}, 2
          s_lshl_b32 {mp}, {mp}, 1
          s_lshr_b32 {a}, {sW}, 1
          s_add_u32 {mp}, {mp}, {a}
          s_lshl_b32 {nn}, {nn}, 1
          s_and_b32 {a}, {sW}, 1
          s_add_u32 {nn}, {nn}, {a}
          s_mul_i32 {sT2}, {sW}, 44
          s_lshl_b32 {sT3}, {sW}, 8""")
    for k in range(2):
        P(f"""s_xor_b32 {a}, {mp}, {k}
              s_mul_i32 {a}, {a}, 176
              s_add_u32 {a}, {a}, {sT2}
              s_lshl_b32 {sHA[k]}, {a}, 10
              s_xor_b32 {a}, {nn}, {k}
              s_lshl_b32 {sCB[k]}, {a}, 15
              s_add_u32 {sCB[k]}, {sCB[k]}, {sT3}
              s_mul_i32 {a}, {a}, 176
              s_add_u32 {a}, {a}, {sT2}
              s_lshl_b32 {a}, {a}, 10
              s_add_u32 {sWA[k]}, {a}, {W2_OFF}""")
    P(f"""s_lshl_b32 {sCOL}, {nn}, 6
          s_lshl_b32 {sRB}, {mp}, 15
          s_add_u32 {sRB}, {sRB}, {sCOL}
          s_lshl_b32 {sSTB}, {mp}, 8
          s_add_u32 {sSTB}, {sSTB}, {ST_OFF}""")


def phase2(P, standalone, early):
    T = TMP
    ACC = [0, 16, 32, 48]
    HR = 64
    NH = OPT["hring"]
    STV = HR + 8 * NH
    XV = STV + 32
    assert XV + 16 <= 172
    AXH = AB
    VC = VX
    VXO, VOO, VSO, DK = AP[0], AP[1], AP[2], AP[3]

    def emit(lst):
        for x in lst:
            if isinstance(x, tuple):
                P(x[0], tag=x[1])
            else:
                P(x)

    if standalone:
        load_ptrs(P, [(0, iSX), (120, iSWS), (40, iSCRE), (48, iSCIM), (104, iSOUT), (64, pDSK)])
        if OPT["codepf"]:
            code_prefetch(P, "k2_start", "k2_end-k2_start", 12)
        P(f"v_lshrrev_b32 v{T}, 6, v0\nv_and_b32 v{VLANE}, 63, v0\nv_readfirstlane_b32 {sW}, v{T}")
        set_srd(P, iSX, 2048 * 1024); set_srd(P, iSWS, WS_WIN)
        set_srd(P, iSCRE, 524288); set_srd(P, iSCIM, 524288); set_srd(P, iSOUT, 4 << 20)
        P(f"s_lshl_b32 {sWL}, {sW}, 12")
        P(f"v_lshlrev_b32 v{VL16}, 4, v{VLANE}\nv_and_b32 v{VC4}, 31, v{VLANE}")
        hh, f, row = T + 11, T + 12, T + 13
        P(f"""v_lshrrev_b32 v{hh}, 5, v{VLANE}
              v_bfe_u32 v{f}, v{VLANE}, 1, 3
              v_xor_b32 v{f}, v{f}, v{hh}
              v_lshlrev_b32 v{f}, 4, v{f}
              v_and_b32 v{row}, 7, v{VLANE}
              v_lshlrev_b32 v{row}, 7, v{row}
              v_bfe_u32 v{T+14}, v{VLANE}, 3, 2
              v_lshl_add_u32 v{T+15}, v{T+14}, 10, v{row}
              v_add_u32 v{T+15}, {sWL}, v{T+15}""")
        for s in range(4):
            P(f"v_xor_b32 v{T+17}, {32*s}, v{f}\nv_add_u32 v{AX[s]}, v{T+15}, v{T+17}")
        p2_scalars(P)
        early = early_loads()
    wl = list(early) + [w_load(wi) for wi in range(24, 56)]
    setup = [f"v_lshrrev_b32 v{T+1}, 3, v{VLANE}", f"v_and_b32 v{T+2}, 7, v{VLANE}", f"v_lshrrev_b32 v{T+3}, 1, v{T+1}",
             f"v_xor_b32 v{T+3}, v{T+2}, v{T+3}", f"v_lshlrev_b32 v{T+3}, 4, v{T+3}",
             f"v_lshl_add_u32 v{VC[0]}, v{T+1}, 10, v{T+3}", f"v_xor_b32 v{VC[1]}, 64, v{VC[0]}",
             f"v_add_u32 v{VC[2]}, {2*7168}, v{VC[0]}", f"v_add_u32 v{VC[3]}, {3*7168}, v{VC[1]}", f"v_add_u32 v{VC[1]}, 7168, v{VC[1]}",
             f"v_lshrrev_b32 v{T+4}, 5, v{VLANE}", f"v_lshlrev_b32 v{T+5}, 1, v{VC4}",
             f"v_lshl_add_u32 v{VXO}, v{T+4}, 14, v{T+5}", f"v_lshlrev_b32 v{VOO}, 1, v{VXO}", f"v_lshlrev_b32 v{VSO}, 7, v{T+4}",
             f"v_add_u32 v{T+5}, {sCOL}, v{T+5}", f"v_mov_b32 v{T+6}, {sPF}", f"v_mov_b32 v{S1}, 2"]
    setup += [f"v_add_u32 v{AXH[s]}, 0x10000, v{AX[s]}" for s in range(4)]
    NA = OPT.get("na", 6)
    for k in range(NA):
        emit(wl.pop(0))
        emit(setup[:4]); setup = setup[4:]
    emit(setup)
    if not standalone:
        P("@waitvm pubH\ns_barrier")
        P(f"buffer_store_byte v{S1}, v{S2}, {SDB}, 0 offen sc0 sc1", tag="flag")
        stamp(P, 5)
    P(f"global_load_ushort v{DK}, v{T+5}, s[{pDSK}:{pDSK+1}]")
    for g in range(4):
        P(f"s_add_u32 {sT0}, {sRB}, {g*4096}")
        for q in range(4):
            P(f"buffer_load_ushort v{XV+4*g+q}, v{VXO}, {SX}, {sT0} offen offset:{q*1024}")
    for k in range(8):
        P(f"buffer_load_dwordx4 {vr(STV+4*k,4)}, v{VSO}, {SWS}, {sSTB} offen offset:{16*k} sc1")
    big = []
    for cc in range(2):
        for mat in range(2):
            for ntl in range(2):
                rho = ntl * 4 + mat * 2 + cc
                grp = [f"s_add_u32 m0, {sWL}, {rho*16384}", f"s_add_u32 {sSO}, {sCB[ntl]}, {cc*128}"]
                for sb in range(4):
                    grp.append((f"buffer_load_dwordx4 v{VC[sb]}, {SCIM if mat else SCRE}, {sSO} offen offset:{sb*1024} lds", f"C{rho}"))
                    big.append(grp); grp = []
    big += wl
    base = [f"v_lshlrev_b32 v{DK}, 16, v{DK}"]
    for q in range(16):
        m_, d_ = STV + 2 * q, STV + 2 * q + 1
        x = XV + q
        t0, t1 = T + 9 + 2 * (q & 1), T + 10 + 2 * (q & 1)
        bf = lambda r: [f"v_cvt_pk_bf16_f32 v{r}, v{r}, v{r}", f"v_and_b32 v{r}, 0xffff0000, v{r}"]
        base += [f"v_lshlrev_b32 v{x}, 16, v{x}", f"v_rcp_f32 v{t1}, v{d_}", f"v_sub_f32 v{t0}, v{x}, v{m_}"] + bf(t0)
        base += [f"v_mul_f32 v{m_}, v{t0}, v{t1}", f"v_fma_f32 v{t0}, -v{m_}, v{d_}, v{t0}", f"v_fma_f32 v{t0}, v{t0}, v{t1}, v{m_}"] + bf(t0)
        base += [f"v_mul_f32 v{t0}, v{t0}, v{DK}"] + bf(t0) + [f"v_add_f32 v{ACC[0]+q}, v{t0}, v{x}"]
    NB0 = OPT.get("nb0", 10)
    NPOLL = OPT.get("npoll", 6)
    per = (len(base) + max(1, len(big) - NB0 - NPOLL) - 1) // max(1, len(big) - NB0 - NPOLL)
    nbig = len(big)
    for k in range(nbig):
        if not standalone and k == nbig - NPOLL:
            emit(base); base = []
            P(f"buffer_load_dword v{T+7}, v{T+6}, {SDB}, 0 offen sc1", tag="poll")
        emit(big[k])
        if k >= NB0:
            emit(base[:per]); base = base[per:]
    emit(base)
    stamp(P, 8)
    if standalone: stamp_entry(P, 7)
    if not standalone:
        P(f"s_mov_b32 {sT2}, 0x02020202")
        P(f"v_cmp_eq_u32 vcc, {sT2}, v{T+7}")
        P("s_cmp_eq_u64 vcc, exec\ns_cbranch_scc1 Lp2_ok")
        P("@opaque_begin")
        P(f"s_mov_b32 {sT3}, 0")
        P(f"Lp2_spin:\ns_sleep 1\ns_add_u32 {sT3}, {sT3}, 1\ns_cmp_gt_u32 {sT3}, 0x40000\ns_cbranch_scc1 Lp2_ok")
        P(f"buffer_load_dword v{T+7}, v{T+6}, {SDB}, 0 offen sc1\ns_waitcnt vmcnt(0)")
        P(f"v_cmp_eq_u32 vcc, {sT2}, v{T+7}\ns_nop 4")
        P("s_cmp_eq_u64 vcc, exec\ns_cbranch_scc0 Lp2_spin")
        P("@opaque_end")
        P("Lp2_ok:")
    stamp(P, 9)

    def h_load(si):
        jj, u = STEPS[si]
        off = (jj * 11 + u) * 1024
        r = []
        for tl in range(2):
            r += [f"s_add_u32 {sSO}, {sHA[tl]}, {off}", f"buffer_load_dwordx4 {vr(HR+8*(si%NH)+4*tl,4)}, v{VL16}, {SWS}, {sSO} offen sc1"]
        return r
    for si in range(NH - 1):
        emit(h_load(si))
    cpos = [0]
    def c_reads(si):
        jj, u = STEPS[si]
        mat, up = u >> 1, u & 1
        cc, sp = jj >> 1, 2 * (jj & 1) + up
        regs = []
        for ntl in range(2):
            rho = ntl * 4 + mat * 2 + cc
            P(f"@waitvm C{rho}")
            r = ARING + 4 * (cpos[0] % NRING); cpos[0] += 1
            a = AX[sp] if rho < 4 else AXH[sp]
            P(f"ds_read_b128 {ar(r,4)}, v{a} offset:{(rho&3)*16384}")
            regs.append(r)
        return regs
    creg = {}
    CL = 2
    for si in range(CL):
        creg[si] = c_reads(si)
    AW, ARD = T + 9, T + 12
    first = [False, True, True, True]
    for si, (jj, u) in enumerate(STEPS):
        hl = h_load(si + NH - 1) if si + NH - 1 < 44 else []
        for tl in range(2):
            for ntl in range(2):
                a = 2 * tl + ntl
                bw = ar(creg[si][ntl], 4) if u < 4 else ar(wreg((jj * 7 + u - 4) * 2 + ntl), 4)
                acc = vr(ACC[a], 16)
                P(f"v_mfma_f32_32x32x16_bf16 {acc}, {vr(HR+8*(si%NH)+4*tl,4)}, {bw}, {'0' if first[a] else acc}")
                first[a] = False
                if a == 0: emit(hl[:2])
                if a == 1: emit(hl[2:])
                if a == 2:
                    nx = si + CL
                    if nx < 44 and STEPS[nx][1] < 4:
                        creg[nx] = c_reads(nx)
        if si == 40:
            P(f"v_add_u32 v{AW}, {sWL}, v{VL16}")
            for a in range(1, 4):
                P(f"s_xor_b32 {sT0}, {sWL}, {a*4096}\nv_add_u32 v{ARD+a}, {sT0}, v{VL16}")
            P(f"s_lshl_b32 {sRB}, {sRB}, 1")
    stamp(P, 10)
    if OPT.get("failif"):
        P("@waitlg0\ns_memrealtime s[100:101]\ns_waitcnt lgkmcnt(0)\ns_sub_u32 s100, s100, s3")
        P(f"s_cmp_gt_u32 s100, {OPT['failif']}\ns_cselect_b32 s100, 0x7fc00000, 0\ns_nop 15\nv_add_f32 v0, s100, v0")
    if OPT.get("padto"):
        P("@waitlg0\n@opaque_begin")
        P(f"Lpad:\ns_memrealtime s[100:101]\ns_waitcnt lgkmcnt(0)\ns_sub_u32 s100, s100, s3\ns_cmp_lt_u32 s100, {OPT['padto']}\ns_cbranch_scc1 Lpad\n@opaque_end")
    if OPT.get("spin"):
        P("@waitlg0\n@opaque_begin\ns_memtime s[100:101]\ns_waitcnt lgkmcnt(0)\ns_mov_b32 s3, s100")
        P(f"Lspin:\ns_memtime s[100:101]\ns_waitcnt lgkmcnt(0)\ns_sub_u32 s100, s100, s3\ns_cmp_lt_u32 s100, {OPT['spin']}\ns_cbranch_scc1 Lspin\n@opaque_end")
    for a in range(1, 4):
        for k in range(4):
            P(f"ds_write_b128 v{AW}, {vr(ACC[a]+4*k,4)} offset:{a*16384+k*1024}")
    P("@waitlg0\ns_barrier")
    for k in range(4):
        for a in range(1, 4):
            P(f"ds_read_b128 {vr(HR+16*(a-1)+4*k,4)}, v{ARD+a} offset:{a*16384+k*1024}")
    for k in range(4):
        for a in range(1, 4):
            for r in range(4):
                q = 4 * k + r
                P(f"v_add_f32 v{ACC[0]+q}, v{ACC[0]+q}, v{HR+16*(a-1)+q}")
        for pr in range(2):
            P(f"s_add_u32 {sT0}, {sRB}, {(4*k+2*pr)*2048}")
            for r in range(2):
                P(f"buffer_store_dword v{ACC[0]+4*k+2*pr+r}, v{VOO}, {SOUT}, {sT0} offen offset:{r*2048}")
    if OPT["stamps"]:
        P("@waitall")
        stamp(P, 11)


def finalize(P):
    st = {}
    l = auto_wait(P.l)
    l = pad_hazards(l, st)
    return l, st


def kd(name, nv=512):
    return f""".amdhsa_kernel {name}
  .amdhsa_next_free_vgpr {nv}
  .amdhsa_next_free_sgpr 102
  .amdhsa_accum_offset 256
  .amdhsa_group_segment_fixed_size 0
  .amdhsa_kernarg_size 128
  .amdhsa_user_sgpr_count 2
  .amdhsa_user_sgpr_kernarg_segment_ptr 1
  .amdhsa_system_sgpr_workgroup_id_x 1
.end_amdhsa_kernel"""


def main():
    from collections import Counter
    ref = open(f"cdna_kernels/{NAME}.s.ref").read().split("\n")
    head = [l for l in ref if l.startswith(";") and "@launch" not in l and "Override launch" not in l and "grid=ceil" not in l]
    out = list(head)
    progs = []
    if FUSED:
        k1 = NAME + "_kernel"
        out.append("; @launch grid=(256,1,1) block=(256,1,1) lds=163840")
        out.append('.amdgcn_target "amdgcn-amd-amdhsa--gfx950"\n.text')
        P = Prog()
        common_head(P, k1, "k1_exit")
        early = phase1(P)
        print("early W2 loads left over:", len(early))
        phase2(P, False, early)
        l1, st1 = finalize(P)
        progs.append(("fused", l1, st1))
        out.append(f".globl {k1}\n.p2align 8\n.type {k1},@function\n{k1}:\nk1_start:")
        out.append(render(l1))
        out.append("k1_exit:\n    s_endpgm\nk1_end:")
        out.append('.section .rodata,"a"\n.p2align 6')
        out.append(kd(k1))
    else:
        k1, k2 = "s5glu_p1_kernel", "s5glu_p2_kernel"
        out.append(f"; @launch kernel={k1} grid=(256,1,1) block=(256,1,1) lds=163840")
        out.append(f"; @launch kernel={k2} grid=(256,1,1) block=(256,1,1) lds=131072")
        out.append('.amdgcn_target "amdgcn-amd-amdhsa--gfx950"\n.text')
        P = Prog()
        common_head(P, k1, "k1_exit")
        phase1(P)
        P("@waitall")
        stamp(P, 5)
        l1, st1 = finalize(P)
        out.append(f".globl {k1}\n.p2align 8\n.type {k1},@function\n{k1}:\nk1_start:")
        out.append(render(l1))
        out.append("k1_exit:\n    s_endpgm\nk1_end:")
        P = Prog()
        common_head(P, k2, "k2_exit")
        phase2(P, True, None)
        l2, st2 = finalize(P)
        out.append(f".globl {k2}\n.p2align 8\n.type {k2},@function\n{k2}:\nk2_start:")
        out.append(render(l2))
        out.append("k2_exit:\n    s_endpgm\nk2_end:")
        out.append('.section .rodata,"a"\n.p2align 6')
        out.append(kd(k1))
        out.append(".p2align 6")
        out.append(kd(k2))
        progs += [("p1", l1, st1), ("p2", l2, st2)]
    open(sys.argv[1], "w").write("\n".join(out) + "\n")
    for nm, l, st in progs:
        c = Counter(i.kind for i in l)
        print(nm, dict(c), "slots", sum(i.cost for i in l), st)

main()
```

```python
import sys, struct, math
sys.path.insert(0, "work")
from asmlib import *

NAME = "parallel_sum__ssm_conv_s5__glu_gated_glu__prompt"
OPT = dict(to1=4, to2=2, look=6, dmagap=2, vgap=3, stamps=0, codepf=1, budget=7, ebudget=9, xlook=2,
           pa=80, pad=12, el=130, eld=24, pb=190, pbd=12, la=5, exbar=1, tailgap=22)
SOPT = {}
for a in sys.argv[2:]:
    k, v = a.split("=")
    if k == "ord": SOPT[k] = v
    else: OPT[k] = int(v)

def f2u(x):
    return struct.unpack("<I", struct.pack("<f", x))[0]
LOG2E = f2u(1.4426950408889634)
INV2PI = f2u(0.15915494309189535)

W2_OFF = 12 << 20
E_OFF = 15 << 20
ST_OFF = E_OFF + 131072
FL_OFF = E_OFF + 196608
EP_OFF = E_OFF + 229376
STAMP_OFF = E_OFF + 262144
WS_WIN = 16 << 20
OOB = 0x40000000
SPIN_MAX = 0x40000

SCR = 131072
EXZ = SCR
CSB = SCR + 4096
CSG = SCR + 5120
RS = SCR + 7168
HT = SCR + 8192

SX, SBR, SBI, SW, SWD, SWS, SDB, SE, SCRE, SCIM, SOUT, SCD = [f"s[{4+4*i}:{7+4*i}]" for i in range(12)]
iSX, iSBR, iSBI, iSW, iSWD, iSWS, iSDB, iSE, iSCRE, iSCIM, iSOUT, iSCD = [4 + 4 * i for i in range(12)]
pLRE, pLIM, pLDT, pDSK, pWU = 52, 54, 56, 20, 60
sW, sM, sJ, sJ4, sROT = "s62", "s63", "s64", "s65", "s66"
sT0, sT1, sT2, sT3 = "s67", "s76", "s77", "s78"
KB = [f"s{68+i}" for i in range(8)]
sXB, sBB, sPB, sWL = "s79", "s80", "s81", "s82"
sONE, sHB = "s83", "s84"
sHT = [f"s{85+i}" for i in range(7)]
sSO = "s92"
sL2E, sI2P = "s93", "s94"
sFL = "s95"
TB = ["s96", "s97", "s98"]
sNON = "s99"
sWA = [["s52", "s28"], ["s53", "s29"]]; sHA = [["s54", "s30"], ["s55", "s31"]]; sCB = ["s56", "s57"]
sMU = "s58"
sRB, sSTB = "s60", "s61"
sCOL = "s48"
sWQ = [sL2E, sI2P]
sRP2 = sFL
sPW, sPH = "s49", "s3"

ACC_S = 0
ACC_G = [32 + 16 * t for t in range(7)]
CSBR, CSBI, CSGA = 144, 148, 152
SEL, XE, CE0, CE1 = 156, 160, 164, 168
AX = [172, 173, 174, 175]
AB = [176, 177, 178, 179]
ABC = 180
AP = [181, 182, 183, 184]
APH = [185, 186, 187, 188]
VX = [189, 190, 191, 192]
VB, VL16 = 193, 194
C1, SIG = 195, 196
L1R, L1I, L16R, L16I, L128R, L128I, LSR, LSI, KR, KI, PR, PI = range(197, 209)
S1, S2 = 209, 210
VEW, VER, AEXW, AEXR, ARS, AHW, AHR, ACSB_W, ACSB_R, ACSG_W, VST, VC4 = range(211, 223)
VLANE = 223
T = 224
L256R, L256I = T + 28, T + 29
VSTMP = T + 31
AXF, ARING, NRING = 0, 128, 8
P0R = 208
VWD, VCT = ACC_G[4] + 9, ACC_G[4] + 11
RPW, RPT = ACC_G[4], ACC_G[4] + 8
VP = [ACC_G[6] + 8 + k for k in range(4)]
PK_SSW, PK_TRB, PK_VQ, ARPR = ACC_G[6] + 12, ACC_G[6] + 13, ACC_G[6] + 14, ACC_G[6] + 15
VFLA, VNON = T + 30, T + 23
HR, NH = 48, 6
ACC2 = [96, 112, 128, 144]
BX, BST, BD, BASE = 0, 8, 16, 20

def vr(a, n=1): return f"v{a}" if n == 1 else f"v[{a}:{a+n-1}]"
def ar(a, n=1): return f"a{a}" if n == 1 else f"a[{a}:{a+n-1}]"
def isvm(x): return isinstance(x, tuple) and x[0].startswith(("buffer_", "global_"))


class Prog:
    def __init__(self):
        self.l = []
        self.ool = []
    def __call__(self, text, tag=None):
        for t in text.split("\n"):
            t = t.strip()
            if t:
                self.l.append(Ins(t, tag))
    def emit(self, lst):
        for x in lst:
            if isinstance(x, tuple):
                self(x[0], tag=x[1])
            else:
                self(x)

P = Prog()

def stamp(idx):
    if not OPT["stamps"]:
        return
    P("@opaque_begin")
    P(("s_memrealtime" if OPT["stamps"] == 2 else "s_memtime") + " s[100:101]\ns_waitcnt lgkmcnt(0)")
    P("@opaque_end")
    P(f"v_writelane_b32 v{VSTMP}, s100, {idx}")

def bfr(dst, src):
    return [f"v_cvt_pk_bf16_f32 v{dst}, v{src}, v{src}", f"v_and_b32 v{dst}, 0xffff0000, v{dst}"]

def set_srd(i, nbytes):
    P(f"s_mov_b32 s{i+2}, {nbytes}\ns_mov_b32 s{i+3}, 0x20000")

def cpow(n_expr, dr, di, A, Bq, t0, t1):
    if n_expr is None:
        P(f"v_exp_f32 v{t0}, v{A}\nv_fract_f32 v{t1}, v{Bq}")
    else:
        P(f"v_mul_f32 v{t0}, {n_expr}, v{A}\nv_mul_f32 v{t1}, {n_expr}, v{Bq}\nv_exp_f32 v{t0}, v{t0}\nv_fract_f32 v{t1}, v{t1}")
    P(f"v_cos_f32 v{dr}, v{t1}\nv_sin_f32 v{di}, v{t1}\nv_mul_f32 v{dr}, v{t0}, v{dr}\nv_mul_f32 v{di}, v{t0}, v{di}")

def cstep(nx, L, cur, u):
    return [f"v_fma_f32 v{nx[0]}, v{L[0]}, v{cur[0]}, v{u[0]}", f"v_fma_f32 v{nx[1]}, v{L[0]}, v{cur[1]}, v{u[1]}",
            f"v_fma_f32 v{nx[0]}, -v{L[1]}, v{cur[1]}, v{nx[0]}", f"v_fma_f32 v{nx[1]}, v{L[1]}, v{cur[0]}, v{nx[1]}"]

retry_id = [0]
def retry_check(ev, reload, sleep=2):
    k = retry_id[0]; retry_id[0] += 1
    o = [f"Lretry{k}:", f"s_mov_b32 {sT3}, 0", f"Lspin{k}:", f"s_sleep {sleep}", f"s_add_u32 {sT3}, {sT3}, 1",
         f"s_cmp_gt_u32 {sT3}, {SPIN_MAX}", f"s_cbranch_scc1 Lback{k}"]
    o += [x[0] if isinstance(x, tuple) else x for x in reload]
    o += ["s_waitcnt vmcnt(0)"] + ev + ["s_nop 4", f"s_cbranch_vccnz Lspin{k}", f"s_branch Lback{k}"]
    P.ool += o
    return [f"s_cbranch_vccnz Lretry{k}", f"Lback{k}:"]

def poll(d, addr, so):
    ld = (f"buffer_load_dword v{d}, v{addr}, {SWS}, {so} offen sc1", "poll")
    ev = [f"v_cmp_ne_u32 vcc, {sNON}, v{d}"]
    return ld, ev + retry_check(ev, [ld], 4)

def flag_store(kind):
    return (f"buffer_store_dword v{VNON}, v{VFLA}, {SWS}, 0 offen offset:0 sc1" if kind == 0 else
            f"buffer_store_dword v{VNON}, v{VFLA}, {SWS}, {sK8 if kind == 1 else sK16} offen sc1", "flag")
sK8, sK16 = "s50", "s51"

PSET = lambda jj: [jj + t for t in range(4)]
QSET = lambda jj: [g for g in range(7) if g not in PSET(jj)]
STEPS = [(jj, 4 + g) for t in range(4) for jj in range(4) for g in [PSET(jj)[t]]] + \
        [(jj, u) for jj in range(4) for u in range(4)] + \
        [(jj, 4 + g) for t in range(3) for jj in range(4) for g in [QSET(jj)[t]]]
GSTEP = [s for s, (jj, u) in enumerate(STEPS) if u >= 4]
def wreg(s, ntl):
    wi = 2 * GSTEP.index(s) + ntl
    return ((160 + 4 * wi) if wi < 24 else 4 * (wi - 24)), wi
VO4 = [AEXW, AEXR, ARS, ACSB_R]
def adv(base, idx, last):
    r = []
    if idx % 4 == 0 and idx >= 8:
        b = base[(idx >> 2) & 1]
        if idx == last:
            r.append(f"s_sub_u32 {b}, {b}, {sMU}")
        r.append(f"s_add_u32 {b}, {b}, 8192")
    return r
def w_load(s, ntl):
    g = GSTEP.index(s)
    b = sWA[ntl][(g >> 2) & 1] if g < 24 else sWQ[ntl]
    off = (g >> 3) * 8192
    pre = [f"s_add_u32 {sSO}, {b}, {off}"] if off else []
    return pre + [(f"buffer_load_dwordx4 {ar(wreg(s, ntl)[0],4)}, v{VO4[g&3]}, {SWS}, {sSO if off else b} offen sc1", f"w{g}")]
HLEAD = {8: 160, 16: 36, 24: 160, 32: 36, 40: 160}
def is_lead(s): return OPT.get("hlead", 1) and s in HLEAD
RIDX = {}
for _s in range(44):
    if not is_lead(_s): RIDX[_s] = len(RIDX)
def hreg(s): return HLEAD[s] if is_lead(s) else HR + 8 * (RIDX[s] % NH)
def h_load(s, tl):
    b = sHA[tl][(s >> 2) & 1]
    off = (s >> 3) * 8192
    pre = [f"s_add_u32 {sSO}, {b}, {off}"] + ([f"s_sub_u32 {sSO}, {sSO}, {sMU}"] if s >= 40 else []) if off else []
    return pre + [(f"buffer_load_dwordx4 {vr(hreg(s)+4*tl,4)}, v{VO4[s&3]}, {SWS}, {sSO if off else b} offen sc1", "h")]
CREG = [(cc, mat, ntl) for cc in range(2) for mat in range(2) for ntl in range(2)]
def c_slot(cc, mat, ntl): return (CREG.index((cc, mat, ntl)) + 2) % 8
VC = [AB[0], AB[1], AB[2], AB[3]]
AXH = [ABC, VB, S1, S2]
def c_dma(r):
    cc, mat, ntl = CREG[r]
    g = [f"s_add_u32 m0, {sWL}, {c_slot(cc, mat, ntl)*16384}", f"s_add_u32 {sSO}, {sCB[ntl]}, {cc*128}"]
    return g + [(f"buffer_load_dwordx4 v{VC[sb]}, {SCIM if mat else SCRE}, {sSO} offen offset:{sb*1024} lds", f"C{r}") for sb in range(4)]


GRP = dict(
    x=lambda: dma_X(1) + dma_B(1),
    a=lambda: [(f"global_load_ushort v{T+8+k}, v{T+6}, s[{p}:{p+1}]", "par") for k, p in enumerate((pLRE, pLIM, pLDT))],
    p=lambda: [f"s_mul_i32 {sSO}, {KB[0]}, 1792", f"s_add_u32 {sSO}, {sSO}, {sPB}"] +
              [(f"buffer_load_dwordx4 {ar(P0R+4*ks,4)}, v{VP[ks]}, {SW}, {sSO} offen offset:{ks*1024}", "p0") for ks in range(4)],
    w=lambda: [(f"buffer_load_dwordx4 {vr(RPW+4*g,4)}, v{VWD+g}, {SWD}, 0 offen", "wd") for g in range(2)],
    c=lambda: [(f"buffer_load_dwordx4 {ar(240,4)}, v{VCT}, {SCRE}, 0 offen", "ct"), (f"buffer_load_dwordx4 {ar(244,4)}, v{VCT+1}, {SCIM}, 0 offen", "ct")],
)
ORDER = [list(x) for x in SOPT.get("ord", "a_px_....wc").split("_")[:2]] + [SOPT.get("ord", "a_px_....wc").split("_")[2].split(".")]
DEFER = []
LATE = []
def pop_defer(n):
    k = 0
    while DEFER and k < n:
        g = DEFER.pop(0); P.l.extend(g); k += sum(i.cost for i in g)

def prologue():
    P("s_cmp_ge_u32 s2, 256\ns_cbranch_scc1 k_exit")
    if OPT["stamps"]:
        P(("s_memrealtime" if OPT["stamps"] == 2 else "s_memtime") + " s[100:101]\ns_waitcnt lgkmcnt(0)")
        P(f"v_mov_b32 v{VSTMP}, 0\ns_nop 1\nv_writelane_b32 v{VSTMP}, s100, 0")
    for off, s in [(0, iSX), (24, iSBR), (32, iSBI)]:
        P(f"s_load_dwordx2 s[{s}:{s+1}], s[0:1], {off}")
    rr, p, q, t3 = T + 1, T + 2, T + 3, T + 4
    P(f"""v_lshrrev_b32 v{T}, 6, v0
          v_and_b32 v{VLANE}, 63, v0
          v_readfirstlane_b32 {sW}, v{T}
          s_and_b32 {sT0}, s2, 7
          s_lshr_b32 {sT1}, s2, 3
          s_and_b32 {sM}, {sT0}, 1
          s_lshl_b32 {sM}, {sM}, 3
          s_and_b32 {sT2}, {sT1}, 7
          s_add_u32 {sM}, {sM}, {sT2}
          s_lshr_b32 {sJ4}, {sT1}, 3
          s_lshr_b32 {sJ}, {sT0}, 1
          s_lshl_b32 {sJ}, {sJ}, 2
          s_add_u32 {sJ}, {sJ}, {sJ4}""")
    P(f"s_add_u32 {sROT}, {sJ}, {sM}" if OPT.get("rot", 1) == 1 else f"s_lshl_b32 {sROT}, {sJ}, 1\ns_add_u32 {sROT}, {sROT}, {sM}")
    P(f"""s_lshl_b32 {sROT}, {sROT}, 7
          s_and_b32 {KB[0]}, {sROT}, 0x380
          v_lshrrev_b32 v{rr}, 3, v{VLANE}
          v_and_b32 v{p}, 7, v{VLANE}
          v_lshrrev_b32 v{q}, 1, v{rr}
          v_xor_b32 v{q}, v{p}, v{q}
          v_lshlrev_b32 v{q}, 4, v{q}
          v_lshrrev_b32 v{t3}, 2, v{rr}
          v_lshlrev_b32 v{t3}, 4, v{t3}
          v_and_b32 v{T+5}, 3, v{rr}
          v_add_u32 v{t3}, v{t3}, v{T+5}
          v_lshl_add_u32 v{VX[0]}, v{t3}, 10, v{q}
          v_xor_b32 v{VX[1]}, 64, v{VX[0]}
          v_add_u32 v{VX[2]}, {2*3072}, v{VX[0]}
          v_add_u32 v{VX[3]}, {3*3072}, v{VX[1]}
          v_add_u32 v{VX[1]}, 3072, v{VX[1]}
          s_lshl_b32 {sWL}, {sW}, 12
          s_lshl_b32 {sXB}, {sM}, 17
          s_lshl_b32 {sT0}, {sW}, 15
          s_add_u32 {sXB}, {sXB}, {sT0}""")
    set_srd(iSX, 2048 * 1024)
    P.emit(dma_X(0))
    stamp(1)
    for off, s in [(8, pLRE), (16, pLIM), (56, pLDT), (96, iSWD), (80, iSW), (88, pWU),
                   (120, iSWS), (40, iSCRE), (48, iSCIM), (104, iSOUT)]:
        P(f"s_load_dwordx2 s[{s}:{s+1}], s[0:1], {off}")
    P(f"""s_lshl_b32 {sBB}, {sJ}, 15
          s_lshl_b32 {sT0}, {sW}, 13
          s_add_u32 {sBB}, {sBB}, {sT0}
          s_and_b32 {sT0}, {sW}, 1
          s_lshl_b32 {sT0}, {sT0}, 6
          v_xor_b32 v{VB}, {sT0}, v{q}
          v_lshl_add_u32 v{VB}, v{rr}, 10, v{VB}""")
    set_srd(iSBR, 524288); set_srd(iSBI, 524288)
    P.emit(dma_B(0))
    if OPT["codepf"]:
        P(f"""s_getpc_b64 s[{iSCD}:{iSCD+1}]
              Lpc0:
              s_sub_u32 s{iSCD}, s{iSCD}, Lpc0-k_start
              s_subb_u32 s{iSCD+1}, s{iSCD+1}, 0
              s_mov_b32 s{iSCD+2}, k_all_end-k_start
              s_mov_b32 s{iSCD+3}, 0x20000
              s_lshr_b32 {sT0}, s2, 3
              s_and_b32 {sT0}, {sT0}, 31
              s_lshl_b32 {sT0}, {sT0}, 10
              v_lshlrev_b32 v{T+7}, 2, v0
              buffer_load_dword a255, v{T+7}, {SCD}, {sT0} offen""")
    for n in range(1, 8):
        P(f"s_add_u32 {sT0}, {sROT}, {n*128}\ns_and_b32 {KB[n]}, {sT0}, 0x380")
    PLRE, PLIM, PLDT = T + 8, T + 9, T + 10
    hh, f, row = T + 11, T + 12, T + 13
    P(f"""v_and_b32 v{VC4}, 31, v{VLANE}
          v_lshlrev_b32 v{T+6}, 1, v{VC4}
          s_lshl_b32 {sT1}, {sJ}, 6
          v_add_u32 v{T+6}, {sT1}, v{T+6}
          s_add_u32 s100, s{iSWS}, {EP_OFF}
          s_addc_u32 s101, s{iSWS+1}, 0
          s_load_dword {sNON}, s[100:101], 0""")
    for g in ORDER[0]:
        P.emit(GRP[g]())
    set_srd(iSW, 1835008); set_srd(iSCRE, 524288); set_srd(iSCIM, 524288)
    P(f"""s_bitcmp1_b32 {sW}, 0
          s_cselect_b32 s{iSW}, s{pWU}, s{iSW}
          s_cselect_b32 s{iSW+1}, s{pWU+1}, s{iSW+1}""")
    if OPT.get("touch", 0):
        set_srd(iSWS, WS_WIN); set_srd(iSOUT, 4 << 20)
        P(f"""v_lshlrev_b32 v{T+7}, {OPT.get("tsh", 20)}, v{VLANE}
              buffer_load_dword a250, v{T+7}, {SW}, 0 offen
              buffer_load_dword a251, v{T+7}, {SWS}, 0 offen
              buffer_load_dword a252, v{T+7}, {SCRE}, 0 offen
              buffer_load_dword a253, v{T+7}, {SCIM}, 0 offen
              buffer_load_dword a254, v{T+7}, {SOUT}, 0 offen""")
    set_srd(iSWD, 1835008)
    P(f"""s_mul_i32 {sT0}, {sJ}, 112
          s_lshl_b32 {sT1}, {sW}, 4
          s_add_u32 {sT0}, {sT0}, {sT1}
          s_lshl_b32 {sT0}, {sT0}, 10
          s_lshl_b32 {sT1}, {sM}, 6
          s_add_u32 {sT0}, {sT0}, {sT1}
          s_add_u32 {sT1}, {sT0}, 65536
          v_lshrrev_b32 v{T+14}, 2, v{VLANE}
          v_and_b32 v{T+21}, 3, v{VLANE}
          v_lshlrev_b32 v{T+15}, 4, v{T+21}
          v_lshl_add_u32 v{T+14}, v{T+14}, 10, v{T+15}
          v_add_u32 v{VWD}, {sT0}, v{T+14}
          v_add_u32 v{VWD+1}, {sT1}, v{T+14}
          s_mov_b32 {sONE}, 0x3f803f80
          v_lshrrev_b32 v{hh}, 5, v{VLANE}
          v_bfe_u32 v{f}, v{VLANE}, 1, 3
          v_xor_b32 v{f}, v{f}, v{hh}
          v_lshlrev_b32 v{f}, 4, v{f}
          v_and_b32 v{row}, 7, v{VLANE}
          v_lshlrev_b32 v{row}, 7, v{row}
          v_bfe_u32 v{T+14}, v{VLANE}, 3, 2
          v_lshl_add_u32 v{T+15}, v{T+14}, 10, v{row}
          v_add_u32 v{T+15}, {sWL}, v{T+15}
          v_lshl_add_u32 v{T+16}, v{T+14}, 12, v{row}
          v_add_u32 v{T+16}, {SCR}, v{T+16}""")
    for s_ in range(4):
        P(f"v_xor_b32 v{T+17}, {32*s_}, v{f}\nv_add_u32 v{AX[s_]}, v{T+15}, v{T+17}\nv_add_u32 v{AB[s_]}, v{T+16}, v{T+17}")
    P(f"""s_lshl_b32 {sT0}, {sW}, 5
          v_xor_b32 v{T+17}, {sT0}, v{f}
          v_add_u32 v{ABC}, v{T+16}, v{T+17}
          v_bfe_u32 v{T+17}, v{VLANE}, 2, 1
          v_bfe_u32 v{T+22}, v{VLANE}, 4, 1
          v_xor_b32 v{T+17}, v{T+17}, v{T+22}
          v_or_b32 v{T+17}, v{T+17}, v{T+21}
          v_cmp_eq_u32 vcc, 0, v{T+17}
          v_mov_b32 v{T+18}, {sONE}
          v_mov_b32 v{S1}, 0
          v_cndmask_b32 v{SEL}, 0, v{T+18}, vcc
          v_mov_b32 v{S2}, 0
          v_mov_b32 v{SEL+1}, v{SEL}
          v_mov_b32 v{SEL+2}, v{SEL}
          v_mov_b32 v{SEL+3}, v{SEL}""")
    P(f"""v_lshlrev_b32 v{VL16}, 4, v{VLANE}
          v_mov_b32 v{T+24}, {OOB}
          s_and_b32 {sT0}, {sW}, 1
          s_lshl_b32 {sT0}, {sT0}, 1
          v_add_u32 v{T+26}, {sT0}, v{T+22}
          v_bfe_u32 v{T+27}, v{VLANE}, 1, 2
          v_xor_b32 v{T+26}, v{T+26}, v{T+27}
          v_and_b32 v{T+27}, 1, v{VLANE}
          v_lshlrev_b32 v{T+27}, 4, v{T+27}
          s_movk_i32 {sT1}, 3584
          v_mad_u32_u24 v{T+27}, v{rr}, {sT1}, v{T+27}
          v_add_u32 v{T+5}, {sJ4}, v{T+26}
          v_cmp_gt_u32 vcc, {sJ4}, v{T+26}
          v_lshl_add_u32 v{VP[0]}, v{T+5}, 5, v{T+27}
          v_add_u32 v{T+5}, 4, v{T+26}
          v_cndmask_b32 v{T+5}, v{T+5}, v{T+26}, vcc
          v_cmp_eq_u32 vcc, 3, v{T+26}
          v_lshl_add_u32 v{PK_VQ}, v{T+5}, 5, v{T+27}
          v_add_u32 v{VP[1]}, 56320, v{VP[0]}
          v_cndmask_b32 v{PK_VQ}, v{PK_VQ}, v{T+24}, vcc
          v_add_u32 v{VP[2]}, {2*56320}, v{VP[0]}
          v_add_u32 v{VP[3]}, {3*56320}, v{VP[0]}""")
    P(f"""s_mul_i32 {sPB}, {sJ}, 224
          s_lshr_b32 {sT0}, {sW}, 1
          s_mul_i32 {sT0}, {sT0}, {8*3584}
          s_add_u32 {sPB}, {sPB}, {sT0}""")
    P(f"""s_lshl_b32 {sT0}, s2, 1
          s_lshr_b32 {sT1}, {sW}, 1
          s_add_u32 {sT0}, {sT0}, {sT1}
          s_lshl_b32 {sT0}, {sT0}, 10
          s_bitcmp1_b32 {sW}, 0
          s_cselect_b32 {sT1}, {OOB}, {sT0}
          s_cselect_b32 {sT0}, {sT0}, {OOB}
          v_add_u32 v{VCT}, {sT0}, v{VL16}
          v_add_u32 v{VCT+1}, {sT1}, v{VL16}""")
    for g in ORDER[1]:
        P.emit(GRP[g]())
    if OPT["xlook"] >= 3:
        P.emit(dma_X(2) + dma_B(2))
    NPRE = OPT.get("npre", 140)
    mark0 = len(P.l)
    set_srd(iSWS, WS_WIN); set_srd(iSOUT, 4 << 20)
    P(f"""s_lshl_b32 {sFL}, {sM}, 9
          s_lshr_b32 {sT0}, {sJ}, 2
          s_lshl_b32 {sT0}, {sT0}, 7
          s_add_u32 {sFL}, {sFL}, {sT0}
          s_lshl_b32 {sT0}, {sJ4}, 2
          s_add_u32 {sFL}, {sFL}, {sT0}
          s_add_u32 {sFL}, {sFL}, {FL_OFF}
          s_add_u32 {sNON}, {sNON}, 1
          s_cmp_eq_u32 {sW}, 3
          s_cselect_b32 {sFL}, {sFL}, {OOB}
          v_mov_b32 v{VFLA}, {sFL}
          v_cmp_eq_u32 vcc, 0, v{VLANE}""")
    for r in (XE + 1, XE + 2, XE + 3, CE0 + 1, CE0 + 2, CE0 + 3, CE1 + 1, CE1 + 2, CE1 + 3):
        P(f"v_mov_b32 v{r}, 0")
    P(f"v_cndmask_b32 v{VFLA}, v{T+24}, v{VFLA}, vcc")
    P(f"""s_lshl_b32 {sT2}, {sM}, 2
          s_lshr_b32 {sT3}, {sJ}, 2
          s_add_u32 {sT2}, {sT2}, {sT3}
          s_mul_i32 {sT2}, {sT2}, 28
          s_add_u32 {sT2}, {sT2}, {sJ4}
          s_sub_u32 {sT3}, {sW}, {sJ4}
          s_add_u32 {sT1}, {sW}, 4
          s_sub_u32 {sT0}, {sT1}, {sJ4}
          s_cmp_lt_u32 {sW}, {sJ4}
          s_cselect_b32 {sT3}, {sT1}, {sT3}
          s_cselect_b32 {sT0}, {sT0}, {sT1}
          s_lshl_b32 {sT3}, {sT3}, 2
          s_add_u32 {sT3}, {sT3}, {sT2}
          s_lshl_b32 {sT3}, {sT3}, 10
          s_add_u32 {sROT}, {sT3}, {W2_OFF}
          s_lshl_b32 {sT0}, {sT0}, 2
          s_add_u32 {sT0}, {sT0}, {sT2}
          s_lshl_b32 {sT0}, {sT0}, 10
          s_add_u32 {sT0}, {sT0}, {W2_OFF}
          s_cmp_eq_u32 {sW}, 3
          s_cselect_b32 {sRP2}, {OOB}, {sT0}
          s_mov_b32 {sL2E}, {LOG2E}
          s_mov_b32 {sI2P}, {INV2PI}
          s_lshl_b32 {sT0}, {sJ}, 13
          s_add_u32 {sT0}, {sT0}, {E_OFF}
          s_add_u32 s{iSE}, s{iSWS}, {sT0}
          s_addc_u32 s{iSE+1}, s{iSWS+1}, 0""")
    set_srd(iSE, 8192)
    P(f"""v_lshrrev_b32 v{T+17}, 4, v{VLANE}
          v_bfe_u32 v{T+20}, v{VLANE}, 2, 2
          v_lshlrev_b32 v{PK_TRB}, 7, v{T+20}
          v_lshl_add_u32 v{PK_TRB}, v{T+17}, 12, v{PK_TRB}
          v_lshl_add_u32 v{PK_TRB}, v{T+21}, 3, v{PK_TRB}
          v_bfe_u32 v{PK_SSW}, v{VLANE}, 3, 1
          v_lshl_add_u32 v{PK_SSW}, v{T+22}, 1, v{PK_SSW}
          v_lshlrev_b32 v{PK_SSW}, 5, v{PK_SSW}""")
    P.emit(set_ap("P", sT0))
    seg = T + 23
    P(f"""s_mul_i32 {sT0}, {sW}, 5120
          s_add_u32 {sT0}, {sT0}, {HT}
          v_mul_u32_u24 v{AHW}, 80, v{VC4}
          v_lshl_add_u32 v{AHW}, v{hh}, 5, v{AHW}
          v_add_u32 v{AHW}, {sT0}, v{AHW}
          v_lshl_add_u32 v{AHR}, v{hh}, 3, v{T+20}
          v_mul_u32_u24 v{AHR}, 80, v{AHR}
          v_and_b32 v{T+23}, 1, v{VLANE}
          v_lshl_add_u32 v{AHR}, v{T+23}, 5, v{AHR}
          v_lshl_add_u32 v{AHR}, v{T+22}, 4, v{AHR}
          v_bfe_u32 v{T+23}, v{VLANE}, 1, 1
          v_lshl_add_u32 v{AHR}, v{T+23}, 3, v{AHR}
          v_add_u32 v{AHR}, {sT0}, v{AHR}
          v_lshl_add_u32 v{ARPR}, v{hh}, 2, v{T+20}
          v_lshlrev_b32 v{ARPR}, 6, v{ARPR}
          v_lshl_add_u32 v{ARPR}, v{T+22}, 5, v{ARPR}
          v_lshl_add_u32 v{ARPR}, v{T+21}, 3, v{ARPR}
          v_add_u32 v{ARPR}, {sT0}, v{ARPR}
          v_add_u32 v{RPT}, {sT0}, v{VL16}
          s_lshl_b32 {sT0}, {sW}, 1
          v_add_u32 v{seg}, {sT0}, v{hh}
          v_lshlrev_b32 v{AEXR}, 8, v{seg}
          v_lshl_add_u32 v{AEXR}, v{VC4}, 3, v{AEXR}
          v_add_u32 v{AEXR}, {EXZ}, v{AEXR}
          v_add_u32 v{AEXW}, 1792, v{AEXR}
          s_sub_u32 {sT0}, 15, {sM}
          s_lshl_b32 {sT0}, {sT0}, 9
          v_lshlrev_b32 v{VEW}, 4, v{VC4}
          v_add_u32 v{VEW}, {sT0}, v{VEW}
          v_cmp_eq_u32 vcc, 7, v{seg}
          v_lshlrev_b32 v{T+25}, 9, v{hh}
          v_sub_u32 v{VER}, v{VEW}, v{T+25}
          v_add_u32 v{VER}, 1024, v{VER}
          v_cndmask_b32 v{VEW}, v{T+24}, v{VEW}, vcc""")
    tau = T + 25
    P(f"""v_bfe_u32 v{tau}, v{VLANE}, 2, 1
          v_lshlrev_b32 v{tau}, 4, v{tau}
          v_lshl_add_u32 v{tau}, v{T+14}, 2, v{tau}
          v_add_u32 v{tau}, v{tau}, v{T+21}
          s_lshr_b32 {sT0}, {sXB}, 7
          s_lshl_b32 {sT1}, {sJ}, 12
          s_add_u32 {sT0}, {sT0}, {sT1}
          s_add_u32 {sT0}, {sT0}, {ST_OFF}
          s_cmp_eq_u32 {sJ4}, 0
          s_cselect_b32 {sT0}, {sT0}, {OOB}
          v_lshrrev_b32 v{VST}, 2, v{row}
          v_lshl_add_u32 v{VST}, v{T+14}, 3, v{VST}
          v_add_u32 v{VST}, {sT0}, v{VST}
          s_lshl_b32 {sT0}, {sW}, 7
          s_add_u32 {sT0}, {sT0}, {RS}
          v_lshlrev_b32 v{PR}, 2, v{tau}
          v_add_u32 v{PR}, {sT0}, v{PR}
          v_lshlrev_b32 v{ARS}, 6, v{hh}
          v_add_u32 v{ARS}, {sT0}, v{ARS}
          s_lshl_b32 {sT0}, {sW}, 2
          v_lshlrev_b32 v{ACSB_R}, 4, v{VC4}
          v_add_u32 v{ACSB_R}, {CSB}, v{ACSB_R}
          v_add_u32 v{ACSB_W}, {sT0}, v{ACSB_R}
          v_lshlrev_b32 v{ACSG_W}, 2, v{VC4}
          v_add_u32 v{ACSG_W}, {CSG}, v{ACSG_W}""")
    a_, b_, t0, t1 = T + 26, T + 27, T + 1, T + 2
    P(f"""v_lshlrev_b32 v{PLRE}, 16, v{PLRE}
          v_lshlrev_b32 v{PLIM}, 16, v{PLIM}
          v_lshlrev_b32 v{PLDT}, 16, v{PLDT}
          v_mul_f32 v{PLDT}, {sL2E}, v{PLDT}
          v_exp_f32 v{PLDT}, v{PLDT}
          v_cvt_f32_u32 v{T+3}, v{seg}""")
    P.emit(bfr(PLDT, PLDT))
    P(f"""v_mul_f32 v{a_}, v{PLDT}, v{PLRE}
          v_mul_f32 v{b_}, v{PLDT}, v{PLIM}
          v_mul_f32 v{a_}, {sL2E}, v{a_}
          v_mul_f32 v{b_}, {sI2P}, v{b_}
          v_mul_f32 v{T+3}, {hex(f2u(16.0))}, v{T+3}""")
    cpow(None, L1R, L1I, a_, b_, t0, t1)
    cpow(hex(f2u(16.0)), L16R, L16I, a_, b_, t0, t1)
    cpow(hex(f2u(128.0)), L128R, L128I, a_, b_, t0, t1)
    cpow(hex(f2u(256.0)), L256R, L256I, a_, b_, t0, t1)
    cpow(f"v{T+3}", LSR, LSI, a_, b_, t0, t1)
    P(f"""v_mul_f32 v{t1}, v{PLRE}, v{PLRE}
          v_fma_f32 v{t1}, v{PLIM}, v{PLIM}, v{t1}
          v_rcp_f32 v{t1}, v{t1}
          v_add_f32 v{t0}, -1.0, v{L1R}
          v_mul_f32 v{KR}, v{t0}, v{PLRE}
          v_fma_f32 v{KR}, v{L1I}, v{PLIM}, v{KR}
          v_mul_f32 v{KI}, v{L1I}, v{PLRE}
          v_fma_f32 v{KI}, -v{t0}, v{PLIM}, v{KI}
          v_add_f32 v{t1}, v{t1}, v{t1}
          v_mul_f32 v{KR}, v{KR}, v{t1}
          v_mul_f32 v{KI}, v{KI}, v{t1}
          v_mov_b32 v{VNON}, {sNON}""")
    mark1 = len(P.l)
    P(f"""s_lshl_b32 {sT3}, {sM}, 2
          s_add_u32 {sT3}, {sT3}, {sW}
          s_mul_i32 {sT2}, {sT3}, 176
          s_lshr_b32 {sT0}, {sJ}, 2
          s_mul_i32 {sT0}, {sT0}, 44
          s_add_u32 {sT2}, {sT2}, {sT0}
          s_add_u32 {sT2}, {sT2}, {sJ4}
          s_lshl_b32 {sT2}, {sT2}, 10
          s_mul_i32 {sT0}, {sJ4}, 3072
          s_add_u32 {sHB}, {sT2}, {sT0}
          s_add_u32 {sHB}, {sHB}, 16384""")
    for t in range(4):
        P(f"s_add_u32 {sT0}, {sW}, {t}\ns_and_b32 {sT0}, {sT0}, 3\ns_lshl_b32 {sT0}, {sT0}, 12\ns_add_u32 {sHT[t]}, {sT2}, {sT0}")
    P(f"s_add_u32 {sT2}, {sT2}, 32768")
    for t in range(3):
        tab = sum((((w + t) % 3) << (4 * w)) for w in range(4))
        P(f"""s_lshl_b32 {sT0}, {sW}, 2
              s_lshr_b32 {sT0}, {tab}, {sT0}
              s_and_b32 {TB[t]}, {sT0}, 3
              s_lshl_b32 {sT0}, {TB[t]}, 12
              s_add_u32 {sHT[4+t]}, {sT2}, {sT0}""")

    mp, nn, a, b = "s50", "s51", sT0, sT1
    P(f"""s_and_b32 {a}, s2, 7
          s_lshr_b32 {b}, s2, 3
          s_lshl_b32 {mp}, {a}, 2
          s_and_b32 {a}, {b}, 3
          s_add_u32 {mp}, {mp}, {a}
          s_lshr_b32 {nn}, {b}, 2
          s_lshl_b32 {mp}, {mp}, 1
          s_lshr_b32 {a}, {sW}, 1
          s_add_u32 {mp}, {mp}, {a}
          s_lshl_b32 {nn}, {nn}, 1
          s_and_b32 {a}, {sW}, 1
          s_add_u32 {nn}, {nn}, {a}
          s_mul_i32 {sT2}, {sW}, 44
          s_lshl_b32 {sT3}, {sW}, 8""")
    P(f"""s_lshr_b32 {a}, {nn}, 1
          s_lshr_b32 {b}, {mp}, 1
          s_add_u32 {b}, {b}, {a}
          s_and_b32 s59, {b}, {3 if OPT.get("mu", 1) else 0}
          s_and_b32 {sMU}, {a}, {4 if OPT.get("mu", 1) else 0}
          s_lshl_b32 {sMU}, {sMU}, 10
          s_xor_b32 {b}, {sMU}, 4096""")
    for k in range(2):
        P(f"""s_xor_b32 {a}, {mp}, {k}
              s_mul_i32 {a}, {a}, 176
              s_add_u32 {a}, {a}, {sT2}
              s_lshl_b32 {a}, {a}, 10
              s_add_u32 {sHA[k][0]}, {a}, {sMU}
              s_add_u32 {sHA[k][1]}, {a}, {b}
              s_xor_b32 {a}, {nn}, {k}
              s_lshl_b32 {sCB[k]}, {a}, 15
              s_add_u32 {sCB[k]}, {sCB[k]}, {sT3}
              s_lshl_b32 {a}, {a}, 2
              s_add_u32 {a}, {a}, {sW}
              s_mul_i32 {a}, {a}, {28*1024}
              s_add_u32 {a}, {a}, {W2_OFF}
              s_add_u32 {sWA[k][0]}, {a}, {sMU}
              s_add_u32 {sWA[k][1]}, {a}, {b}""")
    P(f"""s_bitcmp1_b32 s59, 1
          s_cselect_b64 s[100:101], s[{iSCIM}:{iSCIM+1}], s[{iSCRE}:{iSCRE+1}]
          s_cselect_b64 s[{iSCIM}:{iSCIM+1}], s[{iSCRE}:{iSCRE+1}], s[{iSCIM}:{iSCIM+1}]
          s_mov_b64 s[{iSCRE}:{iSCRE+1}], s[100:101]""")
    P(f"""s_lshl_b32 {sCOL}, {nn}, 6
          s_lshl_b32 {sRB}, {mp}, 15
          s_add_u32 {sRB}, {sRB}, {sCOL}
          s_lshl_b32 {sSTB}, {mp}, 8
          s_lshl_b32 {a}, {sW}, 14
          s_add_u32 {sSTB}, {sSTB}, {a}
          s_add_u32 {sSTB}, {sSTB}, {ST_OFF}
          s_lshl_b32 {a}, {sW}, 7
          s_add_u32 {a}, {a}, {FL_OFF}
          s_lshr_b32 {sPW}, {nn}, 1
          s_lshl_b32 {sPW}, {sPW}, 10
          s_add_u32 {sPW}, {sPW}, {a}
          s_lshr_b32 {sPH}, {mp}, 2
          s_lshl_b32 {sPH}, {sPH}, 9
          s_add_u32 {sPH}, {sPH}, {a}
          s_add_u32 {sPH}, {sPH}, 8192
          s_movk_i32 {sK8}, 8192
          s_movk_i32 {sK16}, 16384""")
    nlate = len(P.l) - mark1
    rest = P.l[mark0:]
    del P.l[mark0:]
    groups, cur = [], []
    for k, ins in enumerate(rest):
        cur.append(ins)
        live = False
        for r in ("scc", "s100", "s101"):
            for nx in rest[k + 1:k + 8]:
                if r in nx.rd: live = True; break
                if r in nx.wr: break
        if not live:
            groups.append(cur); cur = []
    assert not cur
    k = 0
    while k < nlate:
        g = groups.pop(); LATE.insert(0, g); k += len(g)
    assert k == nlate
    n = 0
    while groups and n < NPRE:
        g = groups.pop(0); P.l.extend(g); n += len(g)
    DEFER.extend(groups)
    stamp(2)
    P('Lmark0:')


def dma_B(n):
    base = (SCR + (n >> 1) * 16384 if n < 4 else ((n - 4) >> 1) * 16384) + (n & 1) * 2048
    return [f"s_add_u32 m0, {sWL}, {base}", f"s_add_u32 {sSO}, {sBB}, {KB[n]}",
            (f"buffer_load_dwordx4 v{VB}, {SBR}, {sSO} offen lds", f"B{n}"),
            f"s_add_u32 m0, {sWL}, {base+1024}",
            (f"buffer_load_dwordx4 v{VB}, {SBI}, {sSO} offen lds", f"B{n}")]

def dma_X(n):
    return [f"s_add_u32 m0, {sWL}, {n*16384}", f"s_add_u32 {sSO}, {sXB}, {KB[n]}"] + \
           [(f"buffer_load_dwordx4 v{VX[sb]}, {SX}, {sSO} offen offset:{sb*1024} lds", f"X{n}") for sb in range(4)]

def dma_pass(ps, b):
    vp = VP if ps == "P" else VX
    r = [f"s_add_u32 m0, {sWL}, {((b+2)%8)*16384}", f"s_mul_i32 {sSO}, {KB[b]}, 1792", f"s_add_u32 {sSO}, {sSO}, {sPB}"]
    return r + [(f"buffer_load_dwordx4 v{vp[ks]}, {SW}, {sSO} offen offset:{ks*1024} lds", f"{ps}{b}") for ks in range(4)]

def set_ap(ps, tmp):
    r = []
    for t in range(4 if ps == "P" else 3):
        if ps == "P":
            r += [f"s_add_u32 {tmp}, {sW}, {t}", f"s_and_b32 {tmp}, {tmp}, 3", f"s_lshl_b32 {tmp}, {tmp}, 5"]
        else:
            r += [f"s_lshl_b32 {tmp}, {TB[t]}, 5"]
        r += [f"v_xor_b32 v{AP[t]}, {tmp}, v{PK_SSW}", f"v_add_u32 v{AP[t]}, v{PK_TRB}, v{AP[t]}", f"v_add_u32 v{APH[t]}, 0x10000, v{AP[t]}"]
    return r

ringpos = [0]
def ring():
    r = ARING + 4 * (ringpos[0] % NRING)
    ringpos[0] += 1
    return r

def pop_vm(q):
    n = 0
    while q:
        x = q.pop(0)
        P.emit([x]); n += 1
        if isvm(x):
            break
    return n


REPACK = [(f"buffer_store_dwordx4 {vr(RPW,4)}, v{VL16}, {SWS}, {sROT} offen sc1", "pub1"),
          (f"buffer_store_dwordx4 {vr(RPW+4,4)}, v{VL16}, {SWS}, {sRP2} offen sc1", "pub1")]

def landing():
    XL = OPT["xlook"]
    npass = [1]
    XT = [ACC_G[1], ACC_G[0]]
    BF = [128, 168]
    def reads(n):
        off = (n & 3) * 16384 + (0x10000 if False else 0)
        boff = ((n & 3) >> 1) * 16384 + (n & 1) * 2048
        r = [(f"ds_read_b128 {vr(XT[n&1]+4*s_,4)}, v{AX[s_]} offset:{off}", f"r{n}") for s_ in range(4)]
        r += [(f"ds_read_b128 {ar(BF[n&1]+8*s_+4*mat,4)}, v{AB[s_]} offset:{boff+mat*1024}", f"r{n}") for s_ in range(4) for mat in range(2)]
        r += [(f"ds_read_b128 {ar(BF[n&1]+32+4*mat,4)}, v{ABC} offset:{boff+mat*1024}", f"r{n}") for mat in range(2)]
        return r
    def sync(n):
        if n == 4:
            for s_ in range(4):
                P(f"v_add_u32 v{AX[s_]}, 0x10000, v{AX[s_]}\nv_add_u32 v{AB[s_]}, {(-SCR) & 0xffffffff}, v{AB[s_]}")
            P(f"v_add_u32 v{ABC}, {(-SCR) & 0xffffffff}, v{ABC}")
        P(f"@waitvm X{n},B{n}\ns_barrier")
        if OPT.get("fine"): stamp(48 + n)
    def vmq(n):
        nn = n + 1 + XL
        q = []
        if nn < 8:
            q += dma_X(nn) + dma_B(nn)
        else:
            for _ in range(OPT.get("pper", 1)):
                if npass[0] < min(6, n - 1):
                    q += dma_pass("P", npass[0]); npass[0] += 1
        if n < len(ORDER[2]):
            for g in ORDER[2][n]: q += GRP[g]()
        if n == OPT.get("rpn", 7):
            q += REPACK
        return q
    sync(0)
    P.emit(reads(0))
    P.emit(dma_X(XL) + dma_B(XL))
    for n in range(8):
        P(f"@waitlg r{n}")
        q = vmq(n)
        for kk in range(16):
            P(f"v_dot2_f32_bf16 v{S1}, v{XT[n&1]+kk}, {sONE}, v{S1}\nv_dot2_f32_bf16 v{S2}, v{XT[n&1]+kk}, v{XT[n&1]+kk}, v{S2}")
            if kk in (1, 9): pop_vm(q)
        rd = []
        if n < 7:
            sync(n + 1)
            rd = reads(n + 1)
        if n == OPT.get('p0w', 5):
            rd += [f"v_add_u32 v{T}, {sWL}, v{VL16}"] + [(f"ds_write_b128 v{T}, {ar(P0R+4*ks,4)} offset:{2*16384+ks*1024}", f"r{n+1}") for ks in range(4)]
        if n == OPT.get('rpn', 7) - 1:
            rd += [f"ds_write_b128 v{RPT}, {vr(RPW,4)}", f"ds_write_b128 v{RPT}, {vr(RPW+4,4)} offset:1024"]
            rd += [(f"ds_read_b64_tr_b16 {vr(RPW+4*g+2*a,2)}, v{ARPR} offset:{g*1024+a*512}", f"r{n+1}") for g in range(2) for a in range(2)]
        for k in range(8):
            s_, mat = k >> 1, k & 1
            acc = vr(ACC_S + 16 * mat, 16)
            P(f"v_mfma_f32_32x32x16_bf16 {acc}, {vr(XT[n&1]+4*s_,4)}, {ar(BF[n&1]+8*s_+4*mat,4)}, {'0' if (n == 0 and s_ == 0) else acc}")
            nr = 3 if len(rd) > 2 * (8 - k) else 2
            P.emit(rd[:nr]); rd = rd[nr:]
            P(f"v_accvgpr_write_b32 a{AXF+16*n+2*k}, v{XT[n&1]+2*k}\nv_accvgpr_write_b32 a{AXF+16*n+2*k+1}, v{XT[n&1]+2*k+1}")
            nb = pop_vm(q) if k >= 2 or len(q) > 12 else 0
            pop_defer(OPT.get('dfill', 2) - nb)
        for mat in range(2):
            d = vr(CSBR + 4 * mat, 4)
            P(f"v_mfma_f32_16x16x32_bf16 {d}, {vr(SEL,4)}, {ar(BF[n&1]+32+4*mat,4)}, {'0' if n == 0 else d}")
        P.emit(rd + q)
    print('deferred left after landing:', sum(len(g) for g in DEFER))
    pop_defer(9999)
    P('Lmark1:')
    stamp(3)
    return npass[0]


def split_cs(src, ce, t0, t1):
    return bfr(t0, src) + [f"v_sub_f32 v{t1}, v{src}, v{t0}", f"v_cvt_pk_bf16_f32 v{ce}, v{t0}, v{t1}"]


def passes(npass):
    NT = {"P": 4, "Q": 3}
    GI = lambda ps, t: t if ps == "P" else 4 + t
    def order(nt, nto):
        o = [(t, b, ks) for b in range(8 - nto) for ks in range(4) for t in range(nt)]
        return o + [(t, b, ks) for t in range(nt) for b in range(8 - nto, 8) for ks in range(4)]
    frs = [("P",) + x for x in order(4, OPT["to1"])] + [("Q",) + x for x in order(3, OPT["to2"])]
    last_use, tile_last = {}, {}
    for k, (ps, t, b, ks) in enumerate(frs):
        last_use[(ps, b)] = k
        tile_last[(ps, t)] = k
    NF = len(frs)
    last1 = 127
    st = dict(done=-1, bars=0, marks={}, gap=0, lastvm=-9, lastdma=-9)
    released = {"free": True}
    pending = [("P", b) for b in range(npass, 8)] + [("Q", b) for b in range(8)]
    prev_occ = {}
    for b in range(8):
        prev_occ[("P", b)] = "free" if b < 6 else "S"
        prev_occ[("Q", b)] = ("P", b)
    dma_q, opened = [], set()
    early_w = [w_load(GSTEP[g], ntl) for g in sorted(range(12), key=lambda g: ((g & 3) if OPT.get('lead', 0) else 0, g)) for ntl in range(2)]
    early_c = list(range(8))
    h_done = [0]

    def barrier(tagwait=None):
        if tagwait:
            P(f"@waitvm {tagwait}")
        P("@waitlg xch")
        if OPT.get("fine"): stamp(16 + st["bars"])
        P("s_barrier")
        st["bars"] += 1
        released["S"] = True
        for key, lu in last_use.items():
            if lu <= st["done"]:
                released[key] = True

    gate_done = lambda k: ("gate", lambda: st["done"] >= k)
    gate_bar = lambda name: ("gate", lambda: name in st["marks"] and st["bars"] > st["marks"][name])
    mark = lambda name: ("mark", name)
    gate_mark = lambda name: ("gate", lambda: name in st["marks"])
    call = lambda f: ("call", f)

    P(f"v_mov_b32 v{T+8}, 0\nv_mov_b32 v{T+9}, 0\ns_lshl_b32 {sT2}, {sW}, 9\ns_add_u32 {sT2}, {sT2}, {EXZ}")
    P(f"v_lshrrev_b32 v{T+10}, 1, v{VL16}\nv_add_u32 v{T+10}, {sT2}, v{T+10}")
    P(f"ds_write_b64 v{T+10}, {vr(T+8,2)}", tag="xch")
    u0, u1, mean, mb, den = T, T + 1, T + 2, T + 4, T + 5
    P(f"v_mov_b32 v{u0}, v{S1}\nv_mov_b32 v{u1}, v{S2}")
    P(f"ds_write_b32 v{ACSB_W}, v{CSBR}\nds_write_b32 v{ACSB_W}, v{CSBI} offset:512", tag="xch")

    e1 = [f"ds_read_b128 {vr(T+12,4)}, v{ACSB_R}", f"ds_read_b128 {vr(T+16,4)}, v{ACSB_R} offset:512",
          f"v_permlane32_swap_b32 v{S1}, v{u0}", f"v_permlane32_swap_b32 v{S2}, v{u1}",
          f"v_add_f32 v{S1}, v{S1}, v{u0}", f"v_add_f32 v{S2}, v{S2}, v{u1}",
          f"v_mul_f32 v{mean}, {hex(f2u(1/512))}, v{S1}", f"v_mul_f32 v{S2}, {hex(f2u(1/512))}, v{S2}",
          f"v_fma_f32 v{S2}, -v{mean}, v{mean}, v{S2}", f"v_max_f32 v{S2}, 0, v{S2}"]
    e1 += bfr(S2, S2) + [f"v_add_f32 v{S2}, {hex(f2u(1e-5))}, v{S2}"] + bfr(S2, S2) + [f"v_sqrt_f32 v{S2}, v{S2}"]
    e1 += bfr(mb, mean) + bfr(den, S2)
    e1 += [f"v_rcp_f32 v{S1}, v{den}", f"v_xor_b32 v{u0}, 0x80000000, v{mb}", f"v_lshrrev_b32 v{u1}, 16, v{u0}",
           (f"ds_write_b32 v{PR}, v{S1}", "rsw"), f"v_or_b32 v{u0}, v{u0}, v{u1}",
           ("atomic", [f"v_cmp_gt_u32 vcc, 32, v{VLANE}", f"v_mov_b32 v{SIG}, v{den}", f"v_mul_f32 v{C1}, {sL2E}, v{S1}",
                       f"v_cndmask_b32 v{XE}, 0, v{u0}, vcc"])]
    for mat, b in ((0, T + 12), (1, T + 16)):
        e1 += [f"v_add_f32 v{b}, v{b}, v{b+1}", f"v_add_f32 v{b+2}, v{b+2}, v{b+3}", f"v_add_f32 v{b}, v{b}, v{b+2}"]
        e1 += split_cs(b, CE0 if mat == 0 else CE1, b + 1, b + 2)
    R16 = T + 6
    e1 += ["@waitlg rsw"] + [f"ds_read_b128 {vr(R16+4*k,4)}, v{ARS} offset:{16*k}" for k in range(4)]
    e1 += [f"v_mfma_f32_32x32x16_bf16 {vr(ACC_S,16)}, {vr(XE,4)}, {vr(CE0,4)}, {vr(ACC_S,16)}",
           f"v_mfma_f32_32x32x16_bf16 {vr(ACC_S+16,16)}, {vr(XE,4)}, {vr(CE1,4)}, {vr(ACC_S+16,16)}",
           f"v_sub_f32 v{C1}, 0, v{C1}",
           (f"buffer_store_dwordx2 {vr(mb,2)}, v{VST}, {SWS}, 0 offen sc1", "pubA")]
    e1 += [f"v_add_u32 v{AX[s_]}, 0xffff0000, v{AX[s_]}" for s_ in range(4)]
    e1 += [f"v_mov_b32 v{VX[0]}, v{PK_VQ}"] + [f"v_add_u32 v{VX[k]}, {k*56320}, v{PK_VQ}" for k in range(1, 4)] + [mark("vq")]
    for q in range(16):
        e1 += [f"v_mul_f32 v{ACC_S+q}, v{ACC_S+q}, v{R16+q}", f"v_mul_f32 v{ACC_S+16+q}, v{ACC_S+16+q}, v{R16+q}"]
    ea, eb = (T + 0, T + 1), (T + 2, T + 3)
    cur = (ACC_S, ACC_S + 16)
    for q in range(1, 16):
        nxt = ea if q % 2 else eb
        e1 += cstep(nxt, (L1R, L1I), cur, (ACC_S + q, ACC_S + 16 + q))
        cur = nxt
    assert cur == ea
    e1 += [(f"ds_write_b64 v{AEXW}, {vr(ea[0],2)}", "xch"), mark("ex")]
    e1 += [("delay", 1), call(barrier)] if OPT["exbar"] else [gate_bar("ex")]
    e1 += [f"ds_read_b64 {vr(T+8+2*k,2)}, v{AEXR} offset:{256*k}" for k in range(7)] + [("delay", 2)]
    cur = (T + 8, T + 9)
    for k in range(1, 7):
        u = (T + 8 + 2 * k, T + 9 + 2 * k)
        nx = (PR, PI) if k == 6 else u
        e1 += cstep(nx, (L16R, L16I), cur, u)
        cur = nx
    e1 += [f"v_mov_b32 v{T+5}, v{VNON}", f"v_mov_b32 v{T+7}, v{VNON}"] + cstep((T + 4, T + 6), (L16R, L16I), (PR, PI), ea)
    e1 += [(f"buffer_store_dwordx4 {vr(T+4,4)}, v{VEW}, {SE}, 0 offen sc1", "pubE"), call(lambda: stamp(4)), ("delay", 1), mark("e1")]

    cl = [gate_mark("epiP3"), ("delay", OPT.get("cld", 16)), "@waitvm pubA", mark("clr"), gate_bar("clr"), flag_store(1), call(lambda: stamp(5)), mark("flA")]
    lt = [("atomic", [i.text for i in g]) for g in LATE] + [mark("late")]
    ku = [gate_mark("e1"), gate_mark("late"), f"s_load_dwordx2 s[{pDSK}:{pDSK+1}], s[0:1], 64"]
    for q in list(range(16)) + [-1]:
        re_, im_ = (ACC_S + q, ACC_S + 16 + q) if q >= 0 else (PR, PI)
        t0, t1 = T + 4 + 2 * (q & 1), T + 5 + 2 * (q & 1)
        ku += [f"v_mul_f32 v{t0}, v{KI}, v{im_}", f"v_mul_f32 v{t1}, v{KI}, v{re_}",
               f"v_fma_f32 v{re_}, v{KR}, v{re_}, -v{t0}", f"v_fma_f32 v{im_}, v{KR}, v{im_}, v{t1}"]
    ku += [f"v_lshrrev_b32 v{T+4}, 3, v{VLANE}", f"v_and_b32 v{T+5}, 7, v{VLANE}", f"v_lshrrev_b32 v{T+6}, 1, v{T+4}",
           f"v_xor_b32 v{T+6}, v{T+5}, v{T+6}", f"v_lshlrev_b32 v{T+6}, 4, v{T+6}",
           f"v_lshl_add_u32 v{VC[0]}, v{T+4}, 10, v{T+6}", f"v_xor_b32 v{VC[1]}, 64, v{VC[0]}",
           f"v_add_u32 v{VC[2]}, {2*7168}, v{VC[0]}", f"v_add_u32 v{VC[3]}, {3*7168}, v{VC[1]}", f"v_add_u32 v{VC[1]}, 7168, v{VC[1]}"]
    ku += [("atomic", [f"s_and_b32 {sT2}, s59, 1", f"s_lshl_b32 {sT2}, {sT2}, 5", f"s_lshr_b32 {sT3}, {sMU}, 6", f"s_or_b32 {sT2}, {sT2}, {sT3}"] +
                      [f"v_xor_b32 v{AX[s_]}, {sT2}, v{AX[s_]}" for s_ in range(4)])]
    ku += [f"v_add_u32 v{AXH[s_]}, 0x10000, v{AX[s_]}" for s_ in range(4)]
    ku += [("atomic", [f"s_lshl_b32 {sT2}, s59, 10", f"v_add_u32 v{VO4[0]}, {sT2}, v{VL16}"])]
    ku += [f"s_sub_u32 {sWQ[k]}, {sWA[k][0]}, {sMU}" for k in range(2)]
    ku += [f"v_xor_b32 v{VO4[k]}, {k*1024}, v{VO4[0]}" for k in range(1, 4)]
    ku += [("atomic", [f"s_lshl_b32 {sT2}, {TB[0]}, 7", f"v_add_u32 v{ACSB_W}, {sT2}, v{ACSG_W}", f"s_lshl_b32 {sT2}, {sW}, 7", f"v_add_u32 v{ACSG_W}, {sT2}, v{ACSG_W}"]),
           f"v_and_b32 v{T+20}, 3, v{VLANE}", f"v_lshlrev_b32 v{T+20}, 2, v{T+20}", f"v_bfe_u32 v{T+21}, v{VLANE}, 2, 1",
           f"v_lshl_add_u32 v{T+21}, v{T+21}, 9, v{T+20}",
           ("atomic", [f"v_lshrrev_b32 v{VEW}, 5, v{VLANE}", f"v_add_u32 v{VEW}, {sM}, v{VEW}", f"v_and_b32 v{VEW}, -2, v{VEW}",
                       f"v_mul_lo_u32 v{VEW}, v{VEW}, {sNON}"]),
           f"v_add_u32 v{VST}, 4096, v{VER}", mark("vc")]
    fw = [gate_done(OPT.get("fw", 16)), "@waitvm pub1", mark("p1"), gate_bar("p1"), flag_store(0)]
    ld, chk = poll(T + 22, T + 21, sPW)
    pl = [gate_mark("vc"), gate_done(OPT["pa"]), ld, ("delay", OPT["pad"]), ("atomic", chk), call(lambda: stamp(6)), mark("pollW")]
    lda = (f"buffer_load_dword v{T+22}, v{T+21}, {SWS}, {sXB} offen sc1", "poll")
    eva = [f"v_cmp_ne_u32 vcc, {sBB}, v{T+22}"]
    pl += [gate_done(OPT.get("pe", 150)), f"v_lshrrev_b32 v{T+21}, 2, v{VLANE}", f"v_lshl_add_u32 v{T+21}, v{T+21}, 7, v{T+20}",
           ("atomic", [f"s_lshl_b32 {sXB}, {sW}, 11", f"s_add_u32 {sXB}, {sXB}, {FL_OFF}", "s_cmp_eq_u32 s2, 0",
                       f"s_cselect_b32 {sXB}, {sXB}, {OOB}", f"s_cselect_b32 {sBB}, {sNON}, 0", f"s_cselect_b32 {sROT}, {EP_OFF - FL_OFF}, {OOB}"]),
           lda, ("delay", OPT["pad"]), ("atomic", eva + retry_check(eva, [lda], 8)), mark("epok")]

    ce_flip = [0]
    def glu_epi(ps, t):
        gi = GI(ps, t)
        acc = ACC_G[gi]
        pso = 0 if ps == "P" else 512
        r = [gate_done(tile_last[(ps, t)])]
        ce = CE0 if ce_flip[0] % 2 == 0 else CE1
        ce_flip[0] += 1
        tt = T + 24
        acs = ACSG_W if ps == "P" else ACSB_W
        pso = 0 if ps == "P" else 1024
        if t == 0:
            r += [("delay", 2), (f"ds_write_b32 v{acs}, v{CSGA} offset:{pso}", "xch"),
                  (f"ds_write_b32 v{acs}, v{CSGA} offset:{pso + 128*NT[ps]}", "xch"), mark(f"csg{ps}")]
            r += split_cs(CSGA, ce, tt + 1, tt + 2) + [mark(f"csgfree{ps}")]
        else:
            pre = ([call(barrier)] if t == 1 and OPT.get("csbar", 1) else []) + [gate_bar(f"csg{ps}"),
                   f"ds_read_b32 v{tt+3}, v{acs} offset:{pso + 128*t}", ("delay", 2)] + split_cs(tt + 3, ce, tt + 1, tt + 2)
            r = pre + r
        r += [f"v_mfma_f32_32x32x16_bf16 {vr(acc,16)}, {vr(ce,4)}, {vr(XE,4)}, {vr(acc,16)}", ("delay", 2)]
        for hf in range(2):
            es = range(4 * hf, 4 * hf + 4)
            r += [f"v_mul_f32 v{acc+e}, v{C1}, v{acc+e}" for e in es]
            r += [f"v_exp_f32 v{acc+e}, v{acc+e}" for e in es]
            r += [f"v_fma_f32 v{acc+e}, v{acc+e}, v{SIG}, v{SIG}" for e in es]
            r += [f"v_rcp_f32 v{acc+e}, v{acc+e}" for e in es]
            r += [f"v_mul_f32 v{acc+8+e}, v{acc+8+e}, v{acc+e}" for e in es]
        r += [f"v_cvt_pk_bf16_f32 v{acc+k}, v{acc+8+2*k}, v{acc+9+2*k}" for k in range(4)]
        r += [(f"buffer_store_dwordx4 {vr(acc,4)}, v{VL16}, {SWS}, {sHT[gi]} offen sc1", "pubA" if ps == "P" else "pubB"), mark(f"epi{ps}{t}")]
        return r
    epi = [gate_mark("vc")]
    for t in range(4):
        epi += glu_epi("P", t)
    epiq = [gate_mark("epiP3")]
    for t in range(3):
        epiq += glu_epi("Q", t)

    EL = ACC_G[0]
    eloads = [(f"buffer_load_dwordx4 {vr(EL+4*i,4)}, v{VST if (14-2*i)*512 >= 4096 else VER}, {SE}, 0 offen offset:{((14-2*i)*512) & 4095} sc1", "el") for i in range(8)]
    l1 = [gate_mark("epiP1"), gate_done(OPT["el"])] + eloads + [("delay", OPT["eld"])]
    ev = [f"v_add_u32 v{T+16}, v{EL+1}, v{EL+3}"] + [f"v_add3_u32 v{T+16}, v{T+16}, v{EL+4*i+1}, v{EL+4*i+3}" for i in range(1, 8)]
    ev += [f"v_cmp_ne_u32 vcc, v{VEW}, v{T+16}"]
    l1 += ev[:-1] + [("atomic", ev[-1:] + retry_check(ev, eloads)), call(lambda: stamp(7))]
    cur = (EL, EL + 2)
    for i in range(1, 8):
        u = (EL + 4 * i, EL + 4 * i + 2)
        l1 += cstep(u, (L256R, L256I), cur, u)
        cur = u
    sa, sb_ = (T + 16, T + 17), (T + 18, T + 19)
    l1 += [f"v_mov_b32 v{sa[0]}, v{cur[0]}", f"v_mov_b32 v{sa[1]}, v{cur[1]}", f"s_nop 0",
           f"v_permlane32_swap_b32 v{cur[0]}, v{sa[0]}", f"v_permlane32_swap_b32 v{cur[1]}, v{sa[1]}"]
    l1 += cstep(sa, (L128R, L128I), cur, sa)
    l1 += [f"v_mul_f32 v{sb_[0]}, v{KI}, v{sa[1]}", f"v_mul_f32 v{sb_[1]}, v{KI}, v{sa[0]}",
           f"v_fma_f32 v{sa[0]}, v{KR}, v{sa[0]}, -v{sb_[0]}", f"v_fma_f32 v{sa[1]}, v{KR}, v{sa[1]}, v{sb_[1]}"]
    l1 += cstep((PR, PI), (LSR, LSI), sa, (PR, PI))
    cur = (PR, PI)
    for q in range(16):
        nxt = (ACC_S + q, ACC_S + 16 + q)
        l1 += cstep(nxt, (L1R, L1I), cur, nxt)
        cur = nxt
        if q % 2 == 1:
            l1 += [f"v_cvt_pk_bf16_f32 v{T+(q>>1)}, v{ACC_S+q-1}, v{ACC_S+q}",
                   f"v_cvt_pk_bf16_f32 v{T+8+(q>>1)}, -v{ACC_S+16+q-1}, -v{ACC_S+16+q}"]
    l1 += [(f"ds_write_b128 v{AHW}, {vr(T,4)}", "htw"), (f"ds_write_b128 v{AHW}, {vr(T+4,4)} offset:16", "htw"),
           (f"ds_write_b128 v{AHW}, {vr(T+8,4)} offset:{32*80}", "htw"), (f"ds_write_b128 v{AHW}, {vr(T+12,4)} offset:{32*80+16}", "htw"),
           ("delay", 2), "@waitlg htw"]
    l1 += [f"ds_read_b64_tr_b16 {vr(EL+4*u+2*a,2)}, v{AHR} offset:{(16*u+4*a)*80}" for u in range(4) for a in range(2)]
    l1 += [("delay", 2)]
    l1 += [(f"buffer_store_dwordx4 {vr(EL+4*u,4)}, v{VL16}, {SWS}, {sHB} offen offset:{u*1024} sc1", "pubB") for u in range(4)]
    l1 += [call(lambda: stamp(8)), mark("l1")]

    tasks = {0: [fw, e1, lt, cl, pl, ku, epi, l1, epiq], 1: [fw, e1, lt, cl, pl, ku, l1, epi, epiq], 2: [fw, e1, lt, cl, pl, ku, epi, epiq, l1]}[OPT.get("prio", 0)]
    tpos = [0] * len(tasks)
    tdelay = [0] * len(tasks)

    def fill(budget, flush=False, maxn=10**9):
        progress = True
        cnt = 0
        while (budget > 0 or flush) and progress and cnt < maxn:
            progress = False
            for ti, tk in enumerate(tasks):
                while tpos[ti] < len(tk):
                    it = tk[tpos[ti]]
                    if isinstance(it, tuple) and it[0] == "gate":
                        if it[1]():
                            tpos[ti] += 1; continue
                        break
                    if isinstance(it, tuple) and it[0] == "mark":
                        st["marks"][it[1]] = st["bars"]; tpos[ti] += 1
                        if OPT.get("v"): print("  mark", it[1], "at frag", st["done"], "gap", st["gap"])
                        continue
                    if isinstance(it, tuple) and it[0] == "delay":
                        tdelay[ti] = st["gap"] + it[1]; tpos[ti] += 1; continue
                    break
                if tpos[ti] >= len(tk):
                    continue
                it = tk[tpos[ti]]
                if isinstance(it, tuple) and it[0] == "gate":
                    continue
                if tdelay[ti] > st["gap"] and not flush:
                    continue
                n0 = len(P.l)
                if isinstance(it, tuple) and it[0] == "call":
                    it[1]()
                elif isinstance(it, tuple) and it[0] == "atomic":
                    P.emit(it[1])
                elif isvm(it):
                    if (st["gap"] - st["lastvm"] < OPT["vgap"] or st["gap"] == st["lastdma"]) and not flush:
                        continue
                    P.emit([it]); st["lastvm"] = st["gap"]; budget -= OPT.get("vcost", 0)
                else:
                    P.emit([it])
                c = sum(i.cost for i in P.l[n0:])
                budget -= c; cnt += c
                if P.l[-1].kind == "mfma":
                    budget = OPT["budget"]; st["gap"] += 1
                tpos[ti] += 1
                progress = True
                break
        return progress if flush else budget

    fr_ring = {}
    def issue_reads(k):
        ps, t, b, ks = frs[k]
        n = 0
        if (ps, b) not in opened:
            assert (ps, b) not in pending and not any(isinstance(x, tuple) and x[1] == f"{ps}{b}" for x in dma_q), f"block {ps}{b} not issued in time"
            barrier(f"{ps}{b}")
            opened.add((ps, b))
            n += 2
        if k == last1 + 1:
            sa_ = set_ap("Q", sT1)
            P.emit(sa_); n += len(sa_)
        sl = (b + 2) % 8
        a = AP[t] if sl < 4 else APH[t]
        off = (sl & 3) * 16384 + ks * 1024
        r = ring()
        fr_ring[k] = r
        P(f"ds_read_b64_tr_b16 {ar(r,2)}, v{a} offset:{off}\nds_read_b64_tr_b16 {ar(r+2,2)}, v{a} offset:{off+512}", tag=f"f{k}")
        return n + 2

    LOOK = OPT["look"]
    for k in range(LOOK):
        issue_reads(k)
    seen = set()
    for k, (ps, t, b, ks) in enumerate(frs):
        acc = vr(ACC_G[GI(ps, t)], 16)
        budget = OPT["budget"] if "e1" in st["marks"] else OPT["ebudget"]
        if k % 2 == 0:
            P(f"@waitlg f{k},f{min(k+1, NF-1)}")
            budget -= 1
        if ps == "Q" and (ps, t) not in seen:
            assert all(m in st["marks"] for m in ("e1", "csgfreeP")), st["marks"]
        P(f"v_mfma_f32_32x32x16_bf16 {acc}, {ar(fr_ring[k],4)}, {ar(AXF+16*b+4*ks,4)}, {acc if (ps, t) in seen else '0'}")
        pend_cs = None
        if t == 0:
            d = vr(CSGA, 4)
            pend_cs = f"v_mfma_f32_16x16x32_bf16 {d}, {vr(SEL,4)}, {ar(fr_ring[k],4)}, {d if (ps, t) in seen else '0'}"
        else:
            st["done"] = k
        seen.add((ps, t))
        if not dma_q:
            if pending and released.get(prev_occ[pending[0]]) and (pending[0][0] == "P" or "vq" in st["marks"]):
                dma_q.extend(dma_pass(*pending.pop(0)))
            elif early_w and "pollW" in st["marks"]:
                dma_q.extend(early_w.pop(0))
            elif not pending and early_c and "vc" in st["marks"] and released.get(("Q", early_c[0])):
                dma_q.extend(c_dma(early_c.pop(0)))
        if dma_q and st["gap"] - st["lastdma"] >= OPT["dmagap"]:
            budget -= pop_vm(dma_q) + OPT.get("vcost", 0); st["lastdma"] = st["gap"]
        if k + LOOK < NF:
            budget -= issue_reads(k + LOOK)
        budget = fill(budget)
        st["gap"] += 1
        if pend_cs:
            P(pend_cs)
            st["done"] = k
            fill(2 + min(budget, 0))
    assert not pending
    P('Lmark2:')
    stamp(9)
    print("left after spine: early_w", len(early_w), "early_c", len(early_c), "h", h_done[0], "tasks", [len(tasks[i]) - tpos[i] for i in range(len(tasks))])
    barrier()
    stream = p2_stream(early_w, early_c, h_done[0])
    if OPT.get("lead", 0):
        ws_ = sorted([it for it in stream if it[1] == "w"], key=lambda it: (int(it[2][-1][1][1:]) & 3, int(it[2][-1][1][1:])))
        lead = [it for it in ws_ if int(it[2][-1][1][1:]) & 3 == 0]
        stream = lead + [it for it in stream if it[1] == "c"] + [it for it in ws_ if it not in lead] + [it for it in stream if it[1] not in "cw"]
    while True:
        prog = fill(0, flush=True, maxn=OPT["tailgap"])
        if all(tpos[i] >= len(tasks[i]) for i in range(len(tasks))):
            break
        assert prog, [(tpos[i], len(tasks[i])) for i in range(len(tasks))]
        if not dma_q:
            for i, it in enumerate(stream):
                if it[1] in "cw":
                    dma_q.extend(stream.pop(i)[2]); break
        pop_vm(dma_q)
    P.emit(dma_q)
    stamp(10)
    return stream


def p2_stream(early_w, early_c, h_done):
    left_w = {x[-1][0] for x in early_w}
    items = []
    cneed = {}
    for s, (jj, u) in enumerate(STEPS):
        if u < 4:
            for ntl in range(2):
                cneed.setdefault(CREG.index((jj >> 1, u >> 1, ntl)), s)
    for s, (jj, u) in enumerate(STEPS):
        for r in early_c:
            if max(cneed[r] - 8, 0) == s:
                items.append((s, "c", c_dma(r)))
        if u >= 4:
            for ntl in range(2):
                g = w_load(s, ntl)
                if wreg(s, ntl)[1] >= 24 or g[-1][0] in left_w:
                    items.append((s, "w", g))
        for tl in range(2):
            if not is_lead(s):
                items.append((s, "h", h_load(s, tl)))
        for sl in HLEAD:
            if is_lead(sl) and s == {8: 0, 16: 16, 24: 17, 32: 24, 40: 32}[sl]:
                items += [(s, "h", h_load(sl, tl)) for tl in range(2)]
        if s == 5:
            items.append((s, "b", None))
    return items


def phase2(stream):
    VXO, VOO, VSO, VDO = AP[0], AP[1], AP[2], AP[3]
    AWR, ARD = APH, [T + 12, T + 13, T + 14, T + 15]
    setup = [f"v_lshrrev_b32 v{T+1}, 3, v{VLANE}", f"v_and_b32 v{T+2}, 7, v{VLANE}",
             f"v_lshrrev_b32 v{T+3}, 2, v{T+1}", f"v_and_b32 v{T+4}, 3, v{T+1}", f"v_lshl_add_u32 v{T+3}, v{T+3}, 4, v{T+4}",
             f"v_lshlrev_b32 v{VDO}, 3, v{T+2}", f"v_lshl_add_u32 v{VXO}, v{T+3}, 10, v{VDO}", f"v_lshlrev_b32 v{VOO}, 1, v{VXO}",
             f"v_lshlrev_b32 v{VSO}, 5, v{T+1}", f"v_add_u32 v{VDO}, {sCOL}, v{VDO}"]
    sloads = [(f"buffer_load_dwordx4 {vr(BST+4*k,4)}, v{VSO}, {SWS}, {sSTB} offen offset:{16*k} sc1", "b") for k in range(2)]
    bl = setup + [(f"global_load_dwordx2 {vr(BD,2)}, v{VDO}, s[{pDSK}:{pDSK+1}]", "b")] + sloads
    for it in range(4):
        bl += [f"s_add_u32 {sSO}, {sRB}, {it*4096}", (f"buffer_load_dwordx2 {vr(BX+2*it,2)}, v{VXO}, {SX}, {sSO} offen", "b")]
    post = [f"v_xor_b32 v{T+5}, v{T+1}, v{T+2}", f"v_lshlrev_b32 v{T+5}, 4, v{T+5}", f"v_lshl_add_u32 v{T+5}, v{T+1}, 7, v{T+5}"]
    for a in range(4):
        post += [f"s_xor_b32 {sT0}, {sWL}, {a*4096}", f"v_add_u32 v{ARD[a]}, {sT0}, v{T+5}"]
    post += [f"v_lshrrev_b32 v{T+6}, 5, v{VLANE}", f"v_xor_b32 v{T+6}, v{T+6}, v{T+2}", f"v_lshlrev_b32 v{T+6}, 4, v{T+6}",
             f"v_lshl_add_u32 v{T+7}, v{VC4}, 7, {sWL}"]
    for g in range(4):
        post += [f"v_xor_b32 v{AWR[g]}, {32*g}, v{T+6}", f"v_add_u32 v{AWR[g]}, v{T+7}, v{AWR[g]}"]
    base = list(post)
    base += [f"v_and_b32 v{BD+3}, 0xffff0000, v{BD+1}", f"v_lshlrev_b32 v{BD+2}, 16, v{BD+1}",
             f"v_and_b32 v{BD+1}, 0xffff0000, v{BD}", f"v_lshlrev_b32 v{BD}, 16, v{BD}"]
    for it in range(4):
        m_, d_, rc = BST + 2 * it, BST + 2 * it + 1, T + 8
        base += [f"v_rcp_f32 v{rc}, v{d_}"]
        for k in range(4):
            x, t0, t1 = BASE + 4 * it + k, T + 9, T + 10
            src = BX + 2 * it + (k >> 1)
            base += [f"v_and_b32 v{x}, 0xffff0000, v{src}" if k & 1 else f"v_lshlrev_b32 v{x}, 16, v{src}",
                     f"v_sub_f32 v{t0}, v{x}, v{m_}"] + bfr(t0, t0)
            base += [f"v_mul_f32 v{t1}, v{t0}, v{rc}", f"v_fma_f32 v{t0}, -v{t1}, v{d_}, v{t0}", f"v_fma_f32 v{t0}, v{t0}, v{rc}, v{t1}"] + bfr(t0, t0)
            base += [f"v_mul_f32 v{t0}, v{t0}, v{BD+k}"] + bfr(t0, t0) + [f"v_add_f32 v{x}, v{t0}, v{x}"]
    base += [f"s_lshl_b32 {sRB}, {sRB}, 1"]
    stream = [(s, k, (bl if k == "b" else g)) for (s, k, g) in stream]

    cpos = [0]
    def c_reads(s):
        jj, u = STEPS[s]
        cc, mat, sp = jj >> 1, u >> 1, 2 * (jj & 1) + (u & 1)
        regs = []
        for ntl in range(2):
            P(f"@waitvm C{CREG.index((cc, mat, ntl))}")
            sl = c_slot(cc, mat, ntl)
            r = ARING + 4 * (cpos[0] % NRING); cpos[0] += 1
            P(f"ds_read_b128 {ar(r,4)}, v{AX[sp] if sl < 4 else AXH[sp]} offset:{(sl&3)*16384}")
            regs.append(r)
        return regs
    creg = {}
    LA = OPT["la"]
    assert LA <= NH - 1
    q = []
    def top_up(s):
        while stream and stream[0][0] <= s + LA - 1 + (1 if stream[0][1] != "h" else 0):
            q.extend(stream.pop(0)[2])
    ldA, chkA = poll(T + 22, T + 20, sPH)
    ldB, chkB = poll(T + 22, T + 20, sPH)
    if True:
        stat = [it for it in stream if it[1] in "cw"]
        for it in stat: stream.remove(it)
        npa = min(OPT.get("npa", 4), len(stat))
        for it in stat[:len(stat) - npa]: P.emit(it[2])
        P.emit([ldA])
        for it in stat[len(stat) - npa:]: P.emit(it[2])
    if OPT["stamps"]:
        stamp(44)
        P(f"s_mov_b32 {sT3}, 0")
        P(f"v_mov_b32 v{T+11}, v{T+22}")
        stamp(45)
    P.emit(chkA + [f"s_add_u32 {sPH}, {sPH}, 8192"])
    if OPT["stamps"]: P(f"v_writelane_b32 v{VSTMP}, {sT3}, 46")
    stamp(14)
    top_up(0)
    P.emit(q); q.clear()
    first = [True] * 4
    SB = 16 - LA
    NL = OPT.get("nl", 2)
    for s, (jj, u) in enumerate(STEPS[:44 - NL]):
        if s == OPT.get("fb", 2):
            P("@waitvm pubB\ns_barrier")
            P.emit([flag_store(2), (f"buffer_store_dword v{VNON}, v{VFLA}, {SWS}, {sROT} offen sc1", "ep")])
        if s == SB - OPT.get("pbl", 3):
            P.emit([ldB])
        if s == SB:
            if OPT["stamps"]:
                P(f"s_mov_b32 {sT3}, 0\nv_mov_b32 v{T+11}, v{T+22}")
                stamp(43)
            P.emit(chkB)
            if OPT["stamps"]: P(f"v_writelane_b32 v{VSTMP}, {sT3}, 47")
            stamp(15)
        top_up(s + 1)
        pop_vm(q)
        if OPT.get("fine") and s % 4 == 0: stamp(32 + s // 4)
        for tl in range(2):
            for ntl in range(2):
                a = 2 * tl + ntl
                bw = ar(creg[s][ntl], 4) if u < 4 else ar(wreg(s, ntl)[0], 4)
                acc = vr(ACC2[a], 16)
                P(f"v_mfma_f32_32x32x16_bf16 {acc}, {bw}, {vr(hreg(s)+4*tl,4)}, {'0' if first[a] else acc}")
                first[a] = False
                if a < 3: pop_vm(q)
                if a == 2:
                    nx = s + 2
                    if nx < 44 and STEPS[nx][1] < 4:
                        creg[nx] = c_reads(nx)
                if s >= 12 and base:
                    for _ in range(3):
                        if base:
                            x = base.pop(0)
                            P.emit(x[1] if isinstance(x, tuple) and x[0] == "atomic" else [x])
        P.emit(q); q.clear()
    assert not base and not stream
    wr = []
    for a in (3, 2, 1, 0):
        for s in range(44 - NL, 44):
            acc = vr(ACC2[a], 16)
            P(f"v_mfma_f32_32x32x16_bf16 {acc}, {ar(wreg(s, a & 1)[0], 4)}, {vr(hreg(s)+4*(a>>1),4)}, {acc}")
            if s > 44 - NL and len(wr) > 4:
                for _ in range(4): P(wr.pop(0))
        wr += [f"ds_write_b128 v{AWR[g]}, {vr(ACC2[a]+4*g,4)} offset:{a*16384}" for g in range(4)]
    P('Lmark3:')
    stamp(11)
    P.emit(wr)
    P("@waitlg0\ns_barrier")
    RD = 36
    for it in range(4):
        for a in range(4):
            P(f"ds_read_b128 {vr(RD+16*it+4*a,4)}, v{ARD[a]} offset:{a*16384+it*1024}")
    for it in range(4):
        b = BASE + 4 * it
        for a in range(4):
            for k in range(4):
                P(f"v_add_f32 v{b+k}, v{b+k}, v{RD+16*it+4*a+k}")
        P(f"s_add_u32 {sT0}, {sRB}, {it*8192}")
        P(f"buffer_store_dwordx4 {vr(b,4)}, v{VOO}, {SOUT}, {sT0} offen" + (" nt" if OPT.get("ont") else "") + (" sc1" if OPT.get("osc1") else ""))
    if OPT["stamps"]:
        stamp(12)
        P("@waitall")
        stamp(13)
        P(f"s_lshl_b32 s100, s2, 2\ns_add_u32 s100, s100, {sW}\ns_lshl_b32 s100, s100, 8\ns_add_u32 s100, s100, {STAMP_OFF}")
        P(f"v_lshlrev_b32 v{T}, 2, v{VLANE}\nbuffer_store_dword v{VSTMP}, v{T}, {SWS}, s100 offen")


def main():
    from collections import Counter
    ref = open(f"cdna_kernels/{NAME}.s.ref").read().split("\n")
    out = [l for l in ref if l.startswith(";") and "@launch" not in l and "Override launch" not in l and "grid=ceil" not in l]
    k1 = NAME + "_kernel"
    out.append("; @launch grid=(256,1,1) block=(256,1,1) lds=163840")
    out.append('.amdgcn_target "amdgcn-amd-amdhsa--gfx950"\n.text')
    prologue()
    stream = passes(landing())
    phase2(stream)
    st = {}
    ab = OPT.get("ablate", 0)
    if ab:
        nl = []; inside = False
        reg = OPT.get("abreg", 0)
        for i in P.l:
            if i.kind == "label" and i.text == f"Lmark{reg}:": inside = True
            if i.kind == "label" and i.text == f"Lmark{reg+1}:": inside = False
            if inside:
                if ab & 1 and i.kind == "dma": continue
                if ab & 2 and i.kind == "valu" and any(x in i.text for x in ("dot2", "v_fma", "v_mul_f32", "v_exp", "v_rcp", "v_cvt_pk")): continue
                if ab & 4 and i.kind == "barrier": continue
                if ab & 8 and i.kind == "dsr": continue
                if ab & 16 and i.kind in ("vst", "vld") and i.tag not in ("flag", "poll", "el", "pubE", "ep"): continue
                if ab & 32 and i.kind == "mfma": continue
            nl.append(i)
        P.l = nl
    l = pad_hazards(auto_wait(P.l), st)
    defined = {"s0", "s1", "s2", "v0", "exec", "scc", "vcc", "m0"}
    for i in l:
        bad = [r for r in i.rd if r not in defined]
        assert not bad, f"use before def: {i.text} {bad}"
        defined |= set(i.wr)
    ool = pad_hazards([Ins(x) for x in P.ool])
    out.append(f".globl {k1}\n.p2align 8\n.type {k1},@function\n{k1}:\nk_start:")
    out.append(render(l))
    out.append("k_exit:\n    s_endpgm\nk_main_end:")
    out.append(render(ool))
    out.append("    s_endpgm\nk_all_end:")
    out.append(f""".section .rodata,"a"
.p2align 6
.amdhsa_kernel {k1}
  .amdhsa_next_free_vgpr 512
  .amdhsa_next_free_sgpr 102
  .amdhsa_accum_offset 256
  .amdhsa_group_segment_fixed_size 0
  .amdhsa_kernarg_size 128
  .amdhsa_user_sgpr_count 2
  .amdhsa_user_sgpr_kernarg_segment_ptr 1
  .amdhsa_system_sgpr_workgroup_id_x 1
.end_amdhsa_kernel""")
    open(sys.argv[1], "w").write("\n".join(out) + "\n")
    c = Counter(i.kind for i in l)
    print(dict(c), "slots", sum(i.cost for i in l), st)

main()
```

```python
import sys, struct, math
sys.path.insert(0, "work")
from asmlib import *

NAME = "parallel_sum__ssm_conv_s5__glu_gated_glu__prompt"
OPT = dict(to1=2, to2=1, look=4, dmagap=2, vgap=3, stamps=0, codepf=1, budget=7, ebudget=9, xlook=2,
           pa=40, pad=12, el=130, eld=24, pb=190, pbd=12, la=5, exbar=1, tailgap=22)
SOPT = {}
for a in sys.argv[2:]:
    k, v = a.split("=")
    if k in ("ord", "opP", "opQ"): SOPT[k] = v
    else: OPT[k] = int(v)

def f2u(x):
    return struct.unpack("<I", struct.pack("<f", x))[0]
LOG2E = f2u(1.4426950408889634)
INV2PI = f2u(0.15915494309189535)

W2_OFF = 12 << 20
E_OFF = 15 << 20
ST_OFF = E_OFF + 131072
FL_OFF = E_OFF + 196608
EP_OFF = E_OFF + 229376
STAMP_OFF = E_OFF + 262144
WS_WIN = 16 << 20
OOB = 0x40000000
SPIN_MAX = 0x40000

SCR = 131072
EXZ = SCR
CSB = SCR + 4096
CSG = SCR + 5120
RS = SCR + 7168
HT = SCR + 8192

SX, SBR, SBI, SW, SWD, SWS, SDB, SE, SCRE, SCIM, SOUT, SCD = [f"s[{4+4*i}:{7+4*i}]" for i in range(12)]
iSX, iSBR, iSBI, iSW, iSWD, iSWS, iSDB, iSE, iSCRE, iSCIM, iSOUT, iSCD = [4 + 4 * i for i in range(12)]
pLRE, pLIM, pLDT, pDSK, pWU = 52, 54, 56, 20, 60
sW, sM, sJ, sJ4, sROT = "s62", "s63", "s64", "s65", "s66"
sT0, sT1, sT2, sT3 = "s67", "s76", "s77", "s78"
KB = [f"s{68+i}" for i in range(8)]
sXB, sBB, sPB, sWL = "s79", "s80", "s81", "s82"
sONE, sHB = "s83", "s84"
sHT = [f"s{85+i}" for i in range(7)]
sSO = "s92"
sL2E, sI2P = "s93", "s94"
sFL = "s95"
TB = ["s96", "s97", "s98"]
sNON = "s99"
sWA = [["s52", "s28"], ["s53", "s29"]]; sHA = [["s54", "s30"], ["s55", "s31"]]; sCB = ["s56", "s57"]
sMU = "s58"
sRB, sSTB = "s60", "s61"
sCOL = "s48"
sWQ = [sL2E, sI2P]
sPW, sPH = "s49", "s3"

ACC_S = 0
ACC_G = [32 + 16 * t for t in range(7)]
CSBR, CSBI, CSGA = 144, 148, 152
SEL, XE, CE0, CE1 = 156, 160, 164, 168
AX = [172, 173, 174, 175]
AB = [176, 177, 178, 179]
ABC = 180
AP = [181, 182, 183, 184]
APH = [185, 186, 187, 188]
VX = [189, 190, 191, 192]
VB, VL16 = 193, 194
C1, SIG = 195, 196
L1R, L1I, L16R, L16I, L128R, L128I, LSR, LSI, KR, KI, PR, PI = range(197, 209)
S1, S2 = 209, 210
VEW, VER, AEXW, AEXR, ARS, AHW, AHR, ACSB_W, ACSB_R, ACSG_W, VST, VC4 = range(211, 223)
VLANE = 223
T = 224
L256R, L256I = T + 28, T + 29
PRW = CSBR
VSTMP = T + 31
AXF, ARING, NRING = 0, 128, 8
P0R = 208
VWD, VCT, VRS = ACC_G[5], ACC_G[5] + 4, ACC_G[5] + 8
RPW, RPT = ACC_G[4], ACC_G[5] + 12
VP = [ACC_G[6] + 8 + k for k in range(4)]
PK_SSW, PK_TRB, PK_VQ, ARPR = ACC_G[6] + 12, ACC_G[6] + 13, ACC_G[6] + 14, ACC_G[6] + 15
VFLA, VNON = T + 30, T + 23
HR, NH = 48, 6
ACC2 = [96, 112, 128, 144]
BX, BST, BD, BASE = 0, 8, 16, 20

def vr(a, n=1): return f"v{a}" if n == 1 else f"v[{a}:{a+n-1}]"
def ar(a, n=1): return f"a{a}" if n == 1 else f"a[{a}:{a+n-1}]"
def isvm(x): return isinstance(x, tuple) and x[0].startswith(("buffer_", "global_"))


class Prog:
    def __init__(self):
        self.l = []
        self.ool = []
    def __call__(self, text, tag=None):
        for t in text.split("\n"):
            t = t.strip()
            if t:
                self.l.append(Ins(t, tag))
    def emit(self, lst):
        for x in lst:
            if isinstance(x, tuple):
                self(x[0], tag=x[1])
            else:
                self(x)

P = Prog()

def stamp(idx):
    if not OPT["stamps"] or (OPT["stamps"] == 3 and idx != 13):
        return
    P("@opaque_begin")
    P(("s_memrealtime" if OPT["stamps"] >= 2 else "s_memtime") + " s[100:101]\ns_waitcnt lgkmcnt(0)")
    P("@opaque_end")
    P(f"v_writelane_b32 v{VSTMP}, s100, {idx}")

def bfr(dst, src):
    return [f"v_cvt_pk_bf16_f32 v{dst}, v{src}, v{src}", f"v_and_b32 v{dst}, 0xffff0000, v{dst}"]

def set_srd(i, nbytes):
    P(f"s_mov_b32 s{i+2}, {nbytes}\ns_mov_b32 s{i+3}, 0x20000")

def cpow(n_expr, dr, di, A, Bq, t0, t1):
    if n_expr is None:
        P(f"v_exp_f32 v{t0}, v{A}\nv_fract_f32 v{t1}, v{Bq}")
    else:
        P(f"v_mul_f32 v{t0}, {n_expr}, v{A}\nv_mul_f32 v{t1}, {n_expr}, v{Bq}\nv_exp_f32 v{t0}, v{t0}\nv_fract_f32 v{t1}, v{t1}")
    P(f"v_cos_f32 v{dr}, v{t1}\nv_sin_f32 v{di}, v{t1}\nv_mul_f32 v{dr}, v{t0}, v{dr}\nv_mul_f32 v{di}, v{t0}, v{di}")

def cstep(nx, L, cur, u):
    return [f"v_fma_f32 v{nx[0]}, v{L[0]}, v{cur[0]}, v{u[0]}", f"v_fma_f32 v{nx[1]}, v{L[0]}, v{cur[1]}, v{u[1]}",
            f"v_fma_f32 v{nx[0]}, -v{L[1]}, v{cur[1]}, v{nx[0]}", f"v_fma_f32 v{nx[1]}, v{L[1]}, v{cur[0]}, v{nx[1]}"]

retry_id = [0]
def retry_check(ev, reload, sleep=2):
    k = retry_id[0]; retry_id[0] += 1
    o = [f"Lretry{k}:", f"s_mov_b32 s101, 0", f"Lspin{k}:", f"s_sleep {sleep}", f"s_add_u32 s101, s101, 1",
         f"s_cmp_gt_u32 s101, {SPIN_MAX}", f"s_cbranch_scc1 Lback{k}"]
    o += [x[0] if isinstance(x, tuple) else x for x in reload]
    o += ["s_waitcnt vmcnt(0)"] + ev + ["s_nop 4", f"s_cbranch_vccnz Lspin{k}", f"s_branch Lback{k}"]
    P.ool += o
    return [f"s_cbranch_vccnz Lretry{k}", f"Lback{k}:"]

def poll(d, addr, so):
    ld = (f"buffer_load_dword v{d}, v{addr}, {SWS}, {so} offen sc1", "poll")
    ev = [f"v_cmp_ne_u32 vcc, {sNON}, v{d}"]
    return ld, ev + retry_check(ev, [ld], 4)

def flag_store(kind):
    return (f"buffer_store_dword v{VNON}, v{VFLA}, {SWS}, 0 offen offset:0 sc1" if kind == 0 else
            f"buffer_store_dword v{VNON}, v{VFLA}, {SWS}, {sK8 if kind == 1 else sK16} offen sc1", "flag")
sK8, sK16 = "s50", "s51"

PSET = lambda jj: [jj + t for t in range(4)]
QSET = lambda jj: [g for g in range(7) if g not in PSET(jj)]
STEPS = [(jj, 4 + g) for t in range(4) for jj in range(4) for g in [PSET(jj)[t]]] + \
        [(jj, u) for jj in range(4) for u in range(4)] + \
        [(jj, 4 + g) for t in range(3) for jj in range(4) for g in [QSET(jj)[t]]]
GSTEP = [s for s, (jj, u) in enumerate(STEPS) if u >= 4]
def wreg(s, ntl):
    wi = 2 * GSTEP.index(s) + ntl
    return ((160 + 4 * wi) if wi < 24 else 4 * (wi - 24)), wi
VO4 = [AEXW, AEXR, ARS, ACSB_R]
def adv(base, idx, last):
    r = []
    if idx % 4 == 0 and idx >= 8:
        b = base[(idx >> 2) & 1]
        if idx == last:
            r.append(f"s_sub_u32 {b}, {b}, {sMU}")
        r.append(f"s_add_u32 {b}, {b}, 8192")
    return r
def w_load(s, ntl):
    g = GSTEP.index(s)
    b = sWA[ntl][(g >> 2) & 1] if g < 24 else sWQ[ntl]
    off = (g >> 3) * 8192
    pre = [f"s_add_u32 {sSO}, {b}, {off}"] if off else []
    return pre + [(f"buffer_load_dwordx4 {ar(wreg(s, ntl)[0],4)}, v{VO4[g&3]}, {SWS}, {sSO if off else b} offen sc1", f"w{g}")]
HLEAD = {8: 160, 16: 36, 24: 160, 32: 36, 40: 160}
def is_lead(s): return OPT.get("hlead", 0) and s in HLEAD
RIDX = {}
for _s in range(44):
    if not is_lead(_s): RIDX[_s] = len(RIDX)
def hreg(s): return HLEAD[s] if is_lead(s) else HR + 8 * (RIDX[s] % NH)
def h_load(s, tl):
    b = sHA[tl][(s >> 2) & 1]
    off = (s >> 3) * 8192
    pre = [f"s_add_u32 {sSO}, {b}, {off}"] + ([f"s_sub_u32 {sSO}, {sSO}, {sMU}"] if s >= 40 else []) if off else []
    return pre + [(f"buffer_load_dwordx4 {vr(hreg(s)+4*tl,4)}, v{VO4[s&3]}, {SWS}, {sSO if off else b} offen sc1", "h")]
CREG = [(cc, mat, ntl) for cc in range(2) for mat in range(2) for ntl in range(2)]
def c_slot(cc, mat, ntl): return (CREG.index((cc, mat, ntl)) + 2) % 8
VC = [AB[0], AB[1], AB[2], AB[3]]
AXH = [ABC, VB, S1, S2]
def c_dma(r):
    cc, mat, ntl = CREG[r]
    g = [f"s_add_u32 m0, {sWL}, {c_slot(cc, mat, ntl)*16384}", f"s_add_u32 {sSO}, {sCB[ntl]}, {cc*128}"]
    return g + [(f"buffer_load_dwordx4 v{VC[sb]}, {SCIM if mat else SCRE}, {sSO} offen offset:{sb*1024} lds", f"C{r}") for sb in range(4)]


GRP = dict(
    x=lambda: dma_X(1) + dma_B(1),
    a=lambda: [(f"global_load_ushort v{T+8+k}, v{T+6}, s[{p}:{p+1}]", "par") for k, p in enumerate((pLRE, pLIM, pLDT))],
    p=lambda: [f"s_mul_i32 {sSO}, {KB[0]}, 1792", f"s_add_u32 {sSO}, {sSO}, {sPB}"] +
              [(f"buffer_load_dwordx4 {ar(P0R+4*ks,4)}, v{VP[ks]}, {SW}, {sSO} offen offset:{ks*1024}", "p0") for ks in range(4)],
    w=lambda: [(f"buffer_load_dwordx4 {vr(RPW+4*g,4)}, v{VWD+g}, {SWD}, 0 offen", "wd") for g in range(2)],
    c=lambda: [(f"buffer_load_dwordx4 {ar(240,4)}, v{VCT}, {SCRE}, 0 offen", "ct"), (f"buffer_load_dwordx4 {ar(244,4)}, v{VCT+1}, {SCIM}, 0 offen", "ct")],
)
ORDER = [list(x) for x in SOPT.get("ord", "a_px_....wc").split("_")[:2]] + [SOPT.get("ord", "a_px_....wc").split("_")[2].split(".")]
DEFER = []
LATE = []
def pop_defer(n):
    k = 0
    while DEFER and k < n:
        g = DEFER.pop(0); P.l.extend(g); k += sum(i.cost for i in g)

def p2scal():
    mp, nn, a, b = "s50", "s51", sT0, sT1
    P(f"""s_and_b32 {a}, s2, 7
          s_lshr_b32 {b}, s2, 3
          s_lshl_b32 {mp}, {a}, 2
          s_and_b32 {a}, {b}, 3
          s_add_u32 {mp}, {mp}, {a}
          s_lshr_b32 {nn}, {b}, 2
          s_lshl_b32 {mp}, {mp}, 1
          s_lshr_b32 {a}, {sW}, 1
          s_add_u32 {mp}, {mp}, {a}
          s_lshl_b32 {nn}, {nn}, 1
          s_and_b32 {a}, {sW}, 1
          s_add_u32 {nn}, {nn}, {a}
          s_mul_i32 {sT2}, {sW}, 44
          s_lshl_b32 {sT3}, {sW}, 8""")
    P(f"""s_lshr_b32 {a}, {nn}, 1
          s_lshr_b32 {b}, {mp}, 1
          s_add_u32 {b}, {b}, {a}
          s_and_b32 s59, {b}, {3 if OPT.get("mu", 1) else 0}
          s_and_b32 {sMU}, {a}, {4 if OPT.get("mu", 1) else 0}
          s_lshl_b32 {sMU}, {sMU}, 10
          s_xor_b32 {b}, {sMU}, 4096""")
    for k in range(2):
        P(f"""s_xor_b32 {a}, {mp}, {k}
              s_mul_i32 {a}, {a}, 176
              s_add_u32 {a}, {a}, {sT2}
              s_lshl_b32 {a}, {a}, 10
              s_add_u32 {sHA[k][0]}, {a}, {sMU}
              s_add_u32 {sHA[k][1]}, {a}, {b}
              s_xor_b32 {a}, {nn}, {k}
              s_lshl_b32 {sCB[k]}, {a}, 15
              s_add_u32 {sCB[k]}, {sCB[k]}, {sT3}
              s_lshl_b32 {a}, {a}, 2
              s_add_u32 {a}, {a}, {sW}
              s_mul_i32 {a}, {a}, {28*1024}
              s_add_u32 {a}, {a}, {W2_OFF}
              s_add_u32 {sWA[k][0]}, {a}, {sMU}
              s_add_u32 {sWA[k][1]}, {a}, {b}""")
    P(f"""s_bitcmp1_b32 s59, 1
          s_cselect_b64 s[100:101], s[{iSCIM}:{iSCIM+1}], s[{iSCRE}:{iSCRE+1}]
          s_cselect_b64 s[{iSCIM}:{iSCIM+1}], s[{iSCRE}:{iSCRE+1}], s[{iSCIM}:{iSCIM+1}]
          s_mov_b64 s[{iSCRE}:{iSCRE+1}], s[100:101]""")
    P(f"""s_lshl_b32 {sCOL}, {nn}, 6
          s_lshl_b32 {sRB}, {mp}, 15
          s_add_u32 {sRB}, {sRB}, {sCOL}
          s_lshl_b32 {sSTB}, {mp}, 8
          s_lshl_b32 {a}, {sW}, 14
          s_add_u32 {sSTB}, {sSTB}, {a}
          s_add_u32 {sSTB}, {sSTB}, {ST_OFF}
          s_lshl_b32 {a}, {sW}, 7
          s_add_u32 {a}, {a}, {FL_OFF}
          s_lshr_b32 {sPW}, {nn}, 1
          s_lshl_b32 {sPW}, {sPW}, 10
          s_add_u32 {sPW}, {sPW}, {a}
          s_lshr_b32 {sPH}, {mp}, 2
          s_lshl_b32 {sPH}, {sPH}, 9
          s_add_u32 {sPH}, {sPH}, {a}
          s_add_u32 {sPH}, {sPH}, 8192
          s_movk_i32 {sK8}, 8192
          s_movk_i32 {sK16}, 16384""")


def prologue():
    P("s_cmp_ge_u32 s2, 256\ns_cbranch_scc1 k_exit")
    if OPT["stamps"]:
        P(("s_memrealtime" if OPT["stamps"] >= 2 else "s_memtime") + " s[100:101]\ns_waitcnt lgkmcnt(0)")
        P(f"v_mov_b32 v{VSTMP}, 0\ns_nop 1\nv_writelane_b32 v{VSTMP}, s100, 0")
    for off, s in [(0, iSX), (24, iSBR), (32, iSBI)]:
        P(f"s_load_dwordx2 s[{s}:{s+1}], s[0:1], {off}")
    rr, p, q, t3 = T + 1, T + 2, T + 3, T + 4
    LM = OPT.get('lm', 3)
    P(f"""v_lshrrev_b32 v{T}, 6, v0
          v_and_b32 v{VLANE}, 63, v0
          v_readfirstlane_b32 {sW}, v{T}
          s_and_b32 {sT0}, s2, 7
          s_lshr_b32 {sT1}, s2, 3
          s_and_b32 {sM}, {sT0}, {(16 >> LM) - 1}
          s_lshl_b32 {sM}, {sM}, {LM}
          s_and_b32 {sT2}, {sT1}, {(1 << LM) - 1}
          s_add_u32 {sM}, {sM}, {sT2}
          s_lshr_b32 {sT1}, {sT1}, {LM}
          s_lshr_b32 {sJ}, {sT0}, {4 - LM}
          s_lshl_b32 {sJ}, {sJ}, {5 - LM}
          s_add_u32 {sJ}, {sJ}, {sT1}
          s_and_b32 {sJ4}, {sJ}, 3""")
    P({1: f"s_add_u32 {sROT}, {sJ}, {sM}", 2: f"s_lshl_b32 {sROT}, {sJ}, 1\ns_add_u32 {sROT}, {sROT}, {sM}",
       3: f"s_lshl_b32 {sROT}, {sM}, 1\ns_add_u32 {sROT}, {sROT}, {sJ}", 0: f"s_mov_b32 {sROT}, 0", 4: f"s_mov_b32 {sROT}, {sM}", 5: f"s_mov_b32 {sROT}, {sJ}"}[OPT.get("rot", 1)])
    P(f"""s_lshl_b32 {sROT}, {sROT}, 7
          s_and_b32 {KB[0]}, {sROT}, 0x380
          v_lshrrev_b32 v{rr}, 3, v{VLANE}
          v_and_b32 v{p}, 7, v{VLANE}
          v_lshrrev_b32 v{q}, 1, v{rr}
          v_xor_b32 v{q}, v{p}, v{q}
          v_lshlrev_b32 v{q}, 4, v{q}
          v_lshrrev_b32 v{t3}, 2, v{rr}
          v_lshlrev_b32 v{t3}, 4, v{t3}
          v_and_b32 v{T+5}, 3, v{rr}
          v_add_u32 v{t3}, v{t3}, v{T+5}
          v_lshl_add_u32 v{VX[0]}, v{t3}, 10, v{q}
          v_xor_b32 v{VX[1]}, 64, v{VX[0]}
          v_add_u32 v{VX[2]}, {2*3072}, v{VX[0]}
          v_add_u32 v{VX[3]}, {3*3072}, v{VX[1]}
          v_add_u32 v{VX[1]}, 3072, v{VX[1]}
          s_lshl_b32 {sWL}, {sW}, 12
          s_lshl_b32 {sXB}, {sM}, 17
          s_lshl_b32 {sT0}, {sW}, 15
          s_add_u32 {sXB}, {sXB}, {sT0}""")
    set_srd(iSX, 2048 * 1024)
    P.emit(dma_X(0))
    stamp(1)
    for off, s in [(8, pLRE), (16, pLIM), (56, pLDT), (96, iSWD), (80, iSW), (88, pWU),
                   (120, iSWS), (40, iSCRE), (48, iSCIM), (104, iSOUT)]:
        P(f"s_load_dwordx2 s[{s}:{s+1}], s[0:1], {off}")
    P(f"""s_lshl_b32 {sBB}, {sJ}, 15
          s_lshl_b32 {sT0}, {sW}, 13
          s_add_u32 {sBB}, {sBB}, {sT0}
          s_and_b32 {sT0}, {sW}, 1
          s_lshl_b32 {sT0}, {sT0}, 6
          v_xor_b32 v{VB}, {sT0}, v{q}
          v_lshl_add_u32 v{VB}, v{rr}, 10, v{VB}""")
    set_srd(iSBR, 524288); set_srd(iSBI, 524288)
    P.emit(dma_B(0))
    if OPT["codepf"]:
        P(f"""s_getpc_b64 s[{iSCD}:{iSCD+1}]
              Lpc0:
              s_sub_u32 s{iSCD}, s{iSCD}, Lpc0-k_start
              s_subb_u32 s{iSCD+1}, s{iSCD+1}, 0
              s_mov_b32 s{iSCD+2}, k_all_end-k_start
              s_mov_b32 s{iSCD+3}, 0x20000
              s_lshr_b32 {sT0}, s2, 3
              s_and_b32 {sT0}, {sT0}, 31
              s_lshl_b32 {sT0}, {sT0}, 10
              v_lshlrev_b32 v{T+7}, 2, v0
              buffer_load_dword a255, v{T+7}, {SCD}, {sT0} offen""")
    for n in range(1, 8):
        P(f"s_add_u32 {sT0}, {sROT}, {n*128}\ns_and_b32 {KB[n]}, {sT0}, 0x380")
    PLRE, PLIM, PLDT = T + 8, T + 9, T + 10
    hh, f, row = T + 11, T + 12, T + 13
    P(f"""v_and_b32 v{VC4}, 31, v{VLANE}
          v_lshlrev_b32 v{T+6}, 1, v{VC4}
          s_lshl_b32 {sT1}, {sJ}, 6
          v_add_u32 v{T+6}, {sT1}, v{T+6}
          s_add_u32 s100, s{iSWS}, {EP_OFF}
          s_addc_u32 s101, s{iSWS+1}, 0
          s_load_dword {sNON}, s[100:101], 0""")
    for g in ORDER[0]:
        P.emit(GRP[g]())
    set_srd(iSW, 1835008); set_srd(iSCRE, 524288); set_srd(iSCIM, 524288)
    P(f"""s_bitcmp1_b32 {sW}, 0
          s_cselect_b32 s{iSW}, s{pWU}, s{iSW}
          s_cselect_b32 s{iSW+1}, s{pWU+1}, s{iSW+1}""")
    if OPT.get("touch", 0):
        set_srd(iSWS, WS_WIN); set_srd(iSOUT, 4 << 20)
        P(f"""v_lshlrev_b32 v{T+7}, {OPT.get("tsh", 20)}, v{VLANE}
              buffer_load_dword a250, v{T+7}, {SW}, 0 offen
              buffer_load_dword a251, v{T+7}, {SWS}, 0 offen
              buffer_load_dword a252, v{T+7}, {SCRE}, 0 offen
              buffer_load_dword a253, v{T+7}, {SCIM}, 0 offen
              buffer_load_dword a254, v{T+7}, {SOUT}, 0 offen""")
    set_srd(iSWD, 1835008)
    P(f"""s_mul_i32 {sT0}, {sJ}, 112
          s_lshl_b32 {sT1}, {sW}, 4
          s_add_u32 {sT0}, {sT0}, {sT1}
          s_lshl_b32 {sT0}, {sT0}, 10
          s_lshl_b32 {sT1}, {sM}, 6
          s_add_u32 {sT0}, {sT0}, {sT1}
          v_lshrrev_b32 v{T+14}, 2, v{VLANE}
          v_and_b32 v{T+21}, 3, v{VLANE}
          v_lshlrev_b32 v{T+15}, 4, v{T+21}
          v_lshl_add_u32 v{T+14}, v{T+14}, 10, v{T+15}
          v_add_u32 v{VWD}, {sT0}, v{T+14}
          v_add_u32 v{VWD+1}, 0x10000, v{VWD}
          s_mov_b32 {sONE}, 0x3f803f80
          v_lshrrev_b32 v{hh}, 5, v{VLANE}
          v_bfe_u32 v{f}, v{VLANE}, 1, 3
          v_xor_b32 v{f}, v{f}, v{hh}
          v_lshlrev_b32 v{f}, 4, v{f}
          v_and_b32 v{row}, 7, v{VLANE}
          v_lshlrev_b32 v{row}, 7, v{row}
          v_bfe_u32 v{T+14}, v{VLANE}, 3, 2
          v_lshl_add_u32 v{T+15}, v{T+14}, 10, v{row}
          v_add_u32 v{T+15}, {sWL}, v{T+15}
          v_lshl_add_u32 v{T+16}, v{T+14}, 12, v{row}
          v_add_u32 v{T+16}, {SCR}, v{T+16}""")
    for s_ in range(4):
        P(f"v_xor_b32 v{T+17}, {32*s_}, v{f}\nv_add_u32 v{AX[s_]}, v{T+15}, v{T+17}\nv_add_u32 v{AB[s_]}, v{T+16}, v{T+17}")
    P(f"""s_lshl_b32 {sT0}, {sW}, 5
          v_xor_b32 v{T+17}, {sT0}, v{f}
          v_add_u32 v{ABC}, v{T+16}, v{T+17}
          v_bfe_u32 v{T+17}, v{VLANE}, 2, 1
          v_bfe_u32 v{T+22}, v{VLANE}, 4, 1
          v_xor_b32 v{T+17}, v{T+17}, v{T+22}
          v_or_b32 v{T+17}, v{T+17}, v{T+21}
          v_cmp_eq_u32 vcc, 0, v{T+17}
          v_mov_b32 v{T+18}, {sONE}
          v_mov_b32 v{S1}, 0
          v_cndmask_b32 v{SEL}, 0, v{T+18}, vcc
          v_mov_b32 v{S2}, 0
          v_mov_b32 v{SEL+1}, v{SEL}
          v_mov_b32 v{SEL+2}, v{SEL}
          v_mov_b32 v{SEL+3}, v{SEL}""")
    P(f"""v_lshlrev_b32 v{VL16}, 4, v{VLANE}
          v_mov_b32 v{T+24}, {OOB}
          s_and_b32 {sT0}, {sW}, 1
          s_lshl_b32 {sT0}, {sT0}, 1
          v_add_u32 v{T+26}, {sT0}, v{T+22}
          v_bfe_u32 v{T+27}, v{VLANE}, 1, 2
          v_xor_b32 v{T+26}, v{T+26}, v{T+27}
          v_and_b32 v{T+27}, 1, v{VLANE}
          v_lshlrev_b32 v{T+27}, 4, v{T+27}
          s_movk_i32 {sT1}, 3584
          v_mad_u32_u24 v{T+27}, v{rr}, {sT1}, v{T+27}
          v_add_u32 v{T+5}, {sJ4}, v{T+26}
          v_cmp_gt_u32 vcc, {sJ4}, v{T+26}
          v_lshl_add_u32 v{VP[0]}, v{T+5}, 5, v{T+27}
          v_add_u32 v{T+5}, 4, v{T+26}
          v_cndmask_b32 v{T+5}, v{T+5}, v{T+26}, vcc
          v_cmp_eq_u32 vcc, 3, v{T+26}
          v_lshl_add_u32 v{PK_VQ}, v{T+5}, 5, v{T+27}
          v_add_u32 v{VP[1]}, 56320, v{VP[0]}
          v_cndmask_b32 v{PK_VQ}, v{PK_VQ}, v{T+24}, vcc
          v_add_u32 v{VP[2]}, {2*56320}, v{VP[0]}
          v_add_u32 v{VP[3]}, {3*56320}, v{VP[0]}""")
    P(f"""s_mul_i32 {sPB}, {sJ}, 224
          s_lshr_b32 {sT0}, {sW}, 1
          s_mul_i32 {sT0}, {sT0}, {8*3584}
          s_add_u32 {sPB}, {sPB}, {sT0}""")
    if OPT.get("cfast", 0):
        P(f"""s_lshl_b32 {sT0}, {sM}, 3
              s_lshr_b32 {sT1}, {sJ}, 1
              s_add_u32 {sT0}, {sT0}, {sT1}
              s_lshl_b32 {sT0}, {sT0}, 2
              s_add_u32 {sT0}, {sT0}, {sW}
              s_lshl_b32 {sT0}, {sT0}, 10
              s_add_u32 {sT1}, {sJ4}, 1
              s_bitcmp1_b32 {sT1}, 1
              s_cselect_b32 {sT0}, {OOB}, {sT0}
              v_add_u32 v{VCT}, {sT0}, v{VL16}
              v_mov_b32 v{VCT+1}, v{VCT}""")
    else:
        P(f"""s_lshl_b32 {sT0}, s2, 1
              s_lshr_b32 {sT1}, {sW}, 1
              s_add_u32 {sT0}, {sT0}, {sT1}
              s_lshl_b32 {sT0}, {sT0}, 10
              s_bitcmp1_b32 {sW}, 0
              s_cselect_b32 {sT1}, {OOB}, {sT0}
              s_cselect_b32 {sT0}, {sT0}, {OOB}
              v_add_u32 v{VCT}, {sT0}, v{VL16}
              v_add_u32 v{VCT+1}, {sT1}, v{VL16}""")
    for g in ORDER[1]:
        P.emit(GRP[g]())
    if OPT["xlook"] >= 3:
        P.emit(dma_X(2) + dma_B(2))
    NPRE = OPT.get("npre", 200)
    mark0 = len(P.l)
    set_srd(iSWS, WS_WIN); set_srd(iSOUT, 4 << 20)
    P(f"""s_lshl_b32 {sFL}, {sM}, 9
          s_lshr_b32 {sT0}, {sJ}, 2
          s_lshl_b32 {sT0}, {sT0}, 7
          s_add_u32 {sFL}, {sFL}, {sT0}
          s_lshl_b32 {sT0}, {sJ4}, 2
          s_add_u32 {sFL}, {sFL}, {sT0}
          s_add_u32 {sFL}, {sFL}, {FL_OFF}
          s_add_u32 {sNON}, {sNON}, 1
          s_cmp_eq_u32 {sW}, 3
          s_cselect_b32 {sFL}, {sFL}, {OOB}
          v_mov_b32 v{VFLA}, {sFL}
          v_cmp_eq_u32 vcc, 0, v{VLANE}""")
    for r in (XE + 1, XE + 2, XE + 3, CE0 + 1, CE0 + 2, CE0 + 3, CE1 + 1, CE1 + 2, CE1 + 3):
        P(f"v_mov_b32 v{r}, 0")
    P(f"v_cndmask_b32 v{VFLA}, v{T+24}, v{VFLA}, vcc")
    P(f"""s_lshl_b32 {sT2}, {sM}, 2
          s_lshr_b32 {sT3}, {sJ}, 2
          s_add_u32 {sT2}, {sT2}, {sT3}
          s_mul_i32 {sT2}, {sT2}, {28*1024}
          s_add_u32 {sT2}, {sT2}, {W2_OFF}""")
    for pz in range(1):
        P(f"""s_xor_b32 {sROT}, {sJ4}, {pz}
              s_sub_u32 {sT3}, {sW}, {sROT}
              s_add_u32 {sT1}, {sW}, 4
              s_sub_u32 {sT0}, {sT1}, {sROT}
              s_cmp_lt_u32 {sW}, {sROT}
              s_cselect_b32 {sT3}, {sT1}, {sT3}
              s_cselect_b32 {sT0}, {sT0}, {sT1}
              s_lshl_b32 {sT3}, {sT3}, 2
              s_add_u32 {sT3}, {sT3}, {sROT}
              s_lshl_b32 {sT3}, {sT3}, 10
              s_add_u32 {sT3}, {sT3}, {sT2}
              v_add_u32 v{VRS+2*pz}, {sT3}, v{VL16}
              s_lshl_b32 {sT0}, {sT0}, 2
              s_add_u32 {sT0}, {sT0}, {sROT}
              s_lshl_b32 {sT0}, {sT0}, 10
              s_add_u32 {sT0}, {sT0}, {sT2}
              s_cmp_eq_u32 {sW}, 3
              s_cselect_b32 {sT0}, {OOB}, {sT0}
              v_add_u32 v{VRS+2*pz+1}, {sT0}, v{VL16}""")
    P(f"""s_mov_b32 {sL2E}, {LOG2E}
          s_mov_b32 {sI2P}, {INV2PI}
          s_lshl_b32 {sT0}, {sJ}, 13
          s_add_u32 {sT0}, {sT0}, {E_OFF}
          s_add_u32 s{iSE}, s{iSWS}, {sT0}
          s_addc_u32 s{iSE+1}, s{iSWS+1}, 0""")
    set_srd(iSE, 8192)
    P(f"""v_lshrrev_b32 v{T+17}, 4, v{VLANE}
          v_bfe_u32 v{T+20}, v{VLANE}, 2, 2
          v_lshlrev_b32 v{PK_TRB}, 7, v{T+20}
          v_lshl_add_u32 v{PK_TRB}, v{T+17}, 12, v{PK_TRB}
          v_lshl_add_u32 v{PK_TRB}, v{T+21}, 3, v{PK_TRB}
          v_bfe_u32 v{PK_SSW}, v{VLANE}, 3, 1
          v_lshl_add_u32 v{PK_SSW}, v{T+22}, 1, v{PK_SSW}
          v_lshlrev_b32 v{PK_SSW}, 5, v{PK_SSW}""")
    P.emit(set_ap("P", sT0))
    seg = T + 23
    P(f"""s_mul_i32 {sT0}, {sW}, 5120
          s_add_u32 {sT0}, {sT0}, {HT}
          v_mul_u32_u24 v{AHW}, 80, v{VC4}
          v_lshl_add_u32 v{AHW}, v{hh}, 5, v{AHW}
          v_add_u32 v{AHW}, {sT0}, v{AHW}
          v_lshl_add_u32 v{AHR}, v{hh}, 3, v{T+20}
          v_mul_u32_u24 v{AHR}, 80, v{AHR}
          v_and_b32 v{T+23}, 1, v{VLANE}
          v_lshl_add_u32 v{AHR}, v{T+23}, 5, v{AHR}
          v_lshl_add_u32 v{AHR}, v{T+22}, 4, v{AHR}
          v_bfe_u32 v{T+23}, v{VLANE}, 1, 1
          v_lshl_add_u32 v{AHR}, v{T+23}, 3, v{AHR}
          v_add_u32 v{AHR}, {sT0}, v{AHR}
          v_lshl_add_u32 v{ARPR}, v{hh}, 2, v{T+20}
          v_lshlrev_b32 v{ARPR}, 6, v{ARPR}
          v_lshl_add_u32 v{ARPR}, v{T+22}, 5, v{ARPR}
          v_lshl_add_u32 v{ARPR}, v{T+21}, 3, v{ARPR}
          v_add_u32 v{ARPR}, {sT0}, v{ARPR}
          v_add_u32 v{RPT}, {sT0}, v{VL16}
          s_lshl_b32 {sT0}, {sW}, 1
          v_add_u32 v{seg}, {sT0}, v{hh}
          v_lshlrev_b32 v{AEXR}, 8, v{seg}
          v_lshl_add_u32 v{AEXR}, v{VC4}, 3, v{AEXR}
          v_add_u32 v{AEXR}, {EXZ}, v{AEXR}
          v_add_u32 v{AEXW}, 1792, v{AEXR}
          s_sub_u32 {sT0}, 15, {sM}
          s_lshl_b32 {sT0}, {sT0}, 9
          v_lshlrev_b32 v{VEW}, 4, v{VC4}
          v_add_u32 v{VEW}, {sT0}, v{VEW}
          v_cmp_eq_u32 vcc, 7, v{seg}
          v_lshlrev_b32 v{T+25}, 9, v{hh}
          v_sub_u32 v{VER}, v{VEW}, v{T+25}
          s_lshl_b32 {sT0}, {sW}, 11
          s_sub_u32 {sT0}, {14*512}, {sT0}
          v_add_u32 v{VER}, {sT0}, v{VER}
          v_cndmask_b32 v{VEW}, v{T+24}, v{VEW}, vcc""")
    tau = T + 25
    P(f"""v_bfe_u32 v{tau}, v{VLANE}, 2, 1
          v_lshlrev_b32 v{tau}, 4, v{tau}
          v_lshl_add_u32 v{tau}, v{T+14}, 2, v{tau}
          v_add_u32 v{tau}, v{tau}, v{T+21}
          s_lshr_b32 {sT0}, {sXB}, 7
          s_lshl_b32 {sT1}, {sJ}, 12
          s_add_u32 {sT0}, {sT0}, {sT1}
          s_add_u32 {sT0}, {sT0}, {ST_OFF}
          s_cmp_eq_u32 {sJ4}, 0
          s_cselect_b32 {sT0}, {sT0}, {OOB}
          v_lshrrev_b32 v{VST}, 2, v{row}
          v_lshl_add_u32 v{VST}, v{T+14}, 3, v{VST}
          v_add_u32 v{VST}, {sT0}, v{VST}
          s_lshl_b32 {sT0}, {sW}, 7
          s_add_u32 {sT0}, {sT0}, {RS}
          v_lshlrev_b32 v{PR}, 2, v{tau}
          v_add_u32 v{PR}, {sT0}, v{PR}
          v_lshlrev_b32 v{ARS}, 6, v{hh}
          v_add_u32 v{ARS}, {sT0}, v{ARS}
          s_lshl_b32 {sT0}, {sW}, 2
          v_lshlrev_b32 v{ACSB_R}, 4, v{VC4}
          v_add_u32 v{ACSB_R}, {CSB}, v{ACSB_R}
          v_add_u32 v{ACSB_W}, {sT0}, v{ACSB_R}
          v_lshlrev_b32 v{ACSG_W}, 2, v{VC4}
          v_add_u32 v{ACSG_W}, {CSG}, v{ACSG_W}""")
    a_, b_, t0, t1 = T + 26, T + 27, T + 1, T + 2
    P(f"""v_lshlrev_b32 v{PLRE}, 16, v{PLRE}
          v_lshlrev_b32 v{PLIM}, 16, v{PLIM}
          v_lshlrev_b32 v{PLDT}, 16, v{PLDT}
          v_mul_f32 v{PLDT}, {sL2E}, v{PLDT}
          v_exp_f32 v{PLDT}, v{PLDT}
          v_cvt_f32_u32 v{T+3}, v{seg}""")
    P.emit(bfr(PLDT, PLDT))
    P(f"""v_mul_f32 v{a_}, v{PLDT}, v{PLRE}
          v_mul_f32 v{b_}, v{PLDT}, v{PLIM}
          v_mul_f32 v{a_}, {sL2E}, v{a_}
          v_mul_f32 v{b_}, {sI2P}, v{b_}
          v_mul_f32 v{T+3}, {hex(f2u(16.0))}, v{T+3}""")
    cpow(None, L1R, L1I, a_, b_, t0, t1)
    cpow(hex(f2u(16.0)), L16R, L16I, a_, b_, t0, t1)
    cpow(hex(f2u(128.0)), L128R, L128I, a_, b_, t0, t1)
    cpow(hex(f2u(256.0)), L256R, L256I, a_, b_, t0, t1)
    cpow(f"v{T+3}", LSR, LSI, a_, b_, t0, t1)
    P(f"""v_mul_f32 v{t1}, v{PLRE}, v{PLRE}
          v_fma_f32 v{t1}, v{PLIM}, v{PLIM}, v{t1}
          v_rcp_f32 v{t1}, v{t1}
          v_add_f32 v{t0}, -1.0, v{L1R}
          v_mul_f32 v{KR}, v{t0}, v{PLRE}
          v_fma_f32 v{KR}, v{L1I}, v{PLIM}, v{KR}
          v_mul_f32 v{KI}, v{L1I}, v{PLRE}
          v_fma_f32 v{KI}, -v{t0}, v{PLIM}, v{KI}
          v_add_f32 v{t1}, v{t1}, v{t1}
          v_mul_f32 v{KR}, v{KR}, v{t1}
          v_mul_f32 v{KI}, v{KI}, v{t1}
          v_mov_b32 v{VNON}, {sNON}""")
    if OPT.get('p2early', 1):
        p2scal()
    mark1 = len(P.l)
    P(f"""s_lshl_b32 {sT3}, {sM}, 2
          s_add_u32 {sT3}, {sT3}, {sW}
          s_mul_i32 {sT2}, {sT3}, 176
          s_lshr_b32 {sT0}, {sJ}, 2
          s_mul_i32 {sT0}, {sT0}, 44
          s_add_u32 {sT2}, {sT2}, {sT0}
          s_add_u32 {sT2}, {sT2}, {sJ4}
          s_lshl_b32 {sT2}, {sT2}, 10
          s_mul_i32 {sT0}, {sJ4}, 3072
          s_add_u32 {sHB}, {sT2}, {sT0}
          s_add_u32 {sHB}, {sHB}, 16384""")
    for t in range(4):
        P(f"s_add_u32 {sT0}, {sW}, {t}\ns_and_b32 {sT0}, {sT0}, 3\ns_lshl_b32 {sT0}, {sT0}, 12\ns_add_u32 {sHT[t]}, {sT2}, {sT0}")
    P(f"s_add_u32 {sT2}, {sT2}, 32768")
    for t in range(3):
        tab = sum((((w + t) % 3) << (4 * w)) for w in range(4))
        P(f"""s_lshl_b32 {sT0}, {sW}, 2
              s_lshr_b32 {sT0}, {tab}, {sT0}
              s_and_b32 {TB[t]}, {sT0}, 3
              s_lshl_b32 {sT0}, {TB[t]}, 12
              s_add_u32 {sHT[4+t]}, {sT2}, {sT0}""")

    if not OPT.get('p2early', 1):
        p2scal()
    nlate = len(P.l) - mark1
    rest = P.l[mark0:]
    del P.l[mark0:]
    groups, cur = [], []
    for k, ins in enumerate(rest):
        cur.append(ins)
        live = False
        for r in ("scc", "s100", "s101"):
            for nx in rest[k + 1:k + 8]:
                if r in nx.rd: live = True; break
                if r in nx.wr: break
        if not live:
            groups.append(cur); cur = []
    assert not cur
    k = 0
    while k < nlate:
        g = groups.pop(); LATE.insert(0, g); k += len(g)
    assert k == nlate
    n = 0
    while groups and n < NPRE:
        g = groups.pop(0); P.l.extend(g); n += len(g)
    DEFER.extend(groups)
    stamp(2)
    P('Lmark0:')


def dma_B(n):
    base = (SCR + (n >> 1) * 16384 if n < 4 else ((n - 4) >> 1) * 16384) + (n & 1) * 2048
    return [f"s_add_u32 m0, {sWL}, {base}", f"s_add_u32 {sSO}, {sBB}, {KB[n]}",
            (f"buffer_load_dwordx4 v{VB}, {SBR}, {sSO} offen lds", f"B{n}"),
            f"s_add_u32 m0, {sWL}, {base+1024}",
            (f"buffer_load_dwordx4 v{VB}, {SBI}, {sSO} offen lds", f"B{n}")]

def dma_X(n):
    return [f"s_add_u32 m0, {sWL}, {n*16384}", f"s_add_u32 {sSO}, {sXB}, {KB[n]}"] + \
           [(f"buffer_load_dwordx4 v{VX[sb]}, {SX}, {sSO} offen offset:{sb*1024} lds", f"X{n}") for sb in range(4)]

def dma_pass(ps, b):
    vp = VP if ps == "P" else VX
    r = [f"s_add_u32 m0, {sWL}, {((b+2)%8)*16384}", f"s_mul_i32 {sSO}, {KB[b]}, 1792", f"s_add_u32 {sSO}, {sSO}, {sPB}"]
    return r + [(f"buffer_load_dwordx4 v{vp[ks]}, {SW}, {sSO} offen offset:{ks*1024} lds", f"{ps}{b}") for ks in range(4)]

def set_ap(ps, tmp):
    r = []
    for t in range(4 if ps == "P" else 3):
        if ps == "P":
            r += [f"s_add_u32 {tmp}, {sW}, {t}", f"s_and_b32 {tmp}, {tmp}, 3", f"s_lshl_b32 {tmp}, {tmp}, 5"]
        else:
            r += [f"s_lshl_b32 {tmp}, {TB[t]}, 5"]
        r += [f"v_xor_b32 v{AP[t]}, {tmp}, v{PK_SSW}", f"v_add_u32 v{AP[t]}, v{PK_TRB}, v{AP[t]}", f"v_add_u32 v{APH[t]}, 0x10000, v{AP[t]}"]
    return r

ringpos = [0]
def ring():
    r = ARING + 4 * (ringpos[0] % NRING)
    ringpos[0] += 1
    return r

def pop_vm(q):
    n = 0
    while q:
        x = q.pop(0)
        P.emit([x]); n += 1
        if isvm(x):
            break
    return n


REPACK = [(f"buffer_store_dwordx4 {vr(RPW+4*g,4)}, v{VRS+g}, {SWS}, 0 offen sc1", "pub1") for g in range(2)]

def landing():
    XL = OPT["xlook"]
    npass = [1]
    XT = [ACC_G[1], ACC_G[0]]
    BF = [128, 168]
    def reads(n):
        off = (n & 3) * 16384 + (0x10000 if False else 0)
        boff = ((n & 3) >> 1) * 16384 + (n & 1) * 2048
        r = [(f"ds_read_b128 {vr(XT[n&1]+4*s_,4)}, v{AX[s_]} offset:{off}", f"r{n}") for s_ in range(4)]
        r += [(f"ds_read_b128 {ar(BF[n&1]+8*s_+4*mat,4)}, v{AB[s_]} offset:{boff+mat*1024}", f"r{n}") for s_ in range(4) for mat in range(2)]
        r += [(f"ds_read_b128 {ar(BF[n&1]+32+4*mat,4)}, v{ABC} offset:{boff+mat*1024}", f"r{n}") for mat in range(2)]
        return r
    def sync(n):
        if n == 4:
            for s_ in range(4):
                P(f"v_add_u32 v{AX[s_]}, 0x10000, v{AX[s_]}\nv_add_u32 v{AB[s_]}, {(-SCR) & 0xffffffff}, v{AB[s_]}")
            P(f"v_add_u32 v{ABC}, {(-SCR) & 0xffffffff}, v{ABC}")
        P(f"@waitvm X{n},B{n}\ns_barrier")
        if OPT.get("fine"): stamp(48 + n)
    def vmq(n):
        nn = n + 1 + XL
        q = []
        if nn < 8:
            q += dma_X(nn) + dma_B(nn)
        else:
            for _ in range(OPT.get("pper", 1)):
                if npass[0] < min(6, n - 1):
                    q += dma_pass("P", npass[0]); npass[0] += 1
        if n < len(ORDER[2]):
            for g in ORDER[2][n]: q += GRP[g]()
        if n == OPT.get("rpn", 7):
            q += REPACK
        return q
    sync(0)
    P.emit(reads(0))
    P.emit(dma_X(XL) + dma_B(XL))
    for n in range(8):
        P(f"@waitlg r{n}")
        q = vmq(n)
        for kk in range(16):
            P(f"v_dot2_f32_bf16 v{S1}, v{XT[n&1]+kk}, {sONE}, v{S1}\nv_dot2_f32_bf16 v{S2}, v{XT[n&1]+kk}, v{XT[n&1]+kk}, v{S2}")
            if kk in (1, 9): pop_vm(q)
        rd = []
        if n < 7:
            sync(n + 1)
            rd = reads(n + 1)
        if n == OPT.get('p0w', 5):
            rd += [f"v_add_u32 v{T}, {sWL}, v{VL16}"] + [(f"ds_write_b128 v{T}, {ar(P0R+4*ks,4)} offset:{2*16384+ks*1024}", f"r{n+1}") for ks in range(4)]
        if n == OPT.get('rpn', 7) - 1:
            rd += [f"ds_write_b128 v{RPT}, {vr(RPW+4*g,4)} offset:{g*1024}" for g in range(2)]
            rd += [(f"ds_read_b64_tr_b16 {vr(RPW+4*g+2*a,2)}, v{ARPR} offset:{g*1024+a*512}", f"r{n+1}") for g in range(2) for a in range(2)]
        for k in range(8):
            s_, mat = k >> 1, k & 1
            acc = vr(ACC_S + 16 * mat, 16)
            P(f"v_mfma_f32_32x32x16_bf16 {acc}, {vr(XT[n&1]+4*s_,4)}, {ar(BF[n&1]+8*s_+4*mat,4)}, {'0' if (n == 0 and s_ == 0) else acc}")
            nr = 3 if (len(rd) > 2 * (8 - k) or k < OPT.get('lquiet', 0)) else 2
            P.emit(rd[:nr]); rd = rd[nr:]
            LQ = OPT.get("lquiet", 0) if n < 7 else 0
            if k >= LQ:
                per = 16 // (8 - LQ)
                for z in range(per * (k - LQ), per * (k - LQ + 1)):
                    P(f"v_accvgpr_write_b32 a{AXF+16*n+z}, v{XT[n&1]+z}")
            nb = pop_vm(q) if k >= 2 or len(q) > 12 else 0
            pop_defer((OPT.get('dfill', 2) if k >= OPT.get('lquiet', 0) else 0) - nb)
        for mat in range(2):
            d = vr(CSBR + 4 * mat, 4)
            P(f"v_mfma_f32_16x16x32_bf16 {d}, {vr(SEL,4)}, {ar(BF[n&1]+32+4*mat,4)}, {'0' if n == 0 else d}")
        P.emit(rd + q)
    print('deferred left after landing:', sum(len(g) for g in DEFER))
    pop_defer(9999)
    P('Lmark1:')
    stamp(3)
    return npass[0]


def split_cs(src, ce, t0, t1):
    return bfr(t0, src) + [f"v_sub_f32 v{t1}, v{src}, v{t0}", f"v_cvt_pk_bf16_f32 v{ce}, v{t0}, v{t1}"]


def passes(npass):
    NT = {"P": 4, "Q": 3}
    GI = lambda ps, t: t if ps == "P" else 4 + t
    def order(nt, nto):
        o = [(t, b, ks) for b in range(8 - nto) for ks in range(4) for t in range(nt)]
        return o + [(t, b, ks) for t in range(nt) for b in range(8 - nto, 8) for ks in range(4)]
    frs = [("P",) + x for x in order(4, OPT["to1"])] + [("Q",) + x for x in order(3, OPT["to2"])]
    last_use, tile_last = {}, {}
    for k, (ps, t, b, ks) in enumerate(frs):
        last_use[(ps, b)] = k
        tile_last[(ps, t)] = k
    NF = len(frs)
    last1 = 127
    st = dict(done=-1, bars=0, marks={}, gap=0, lastvm=-9, lastdma=-9, quiet=-1)
    released = {"free": True}
    pending = [("P", b) for b in range(npass, 8)] + [("Q", b) for b in range(8)]
    prev_occ = {}
    for b in range(8):
        prev_occ[("P", b)] = "free" if b < 6 else "S"
        prev_occ[("Q", b)] = ("P", b)
    dma_q, opened = [], set()
    early_w = [w_load(GSTEP[g], ntl) for g in sorted(range(12), key=lambda g: ((g & 3) if OPT.get('lead', 0) else 0, g)) for ntl in range(2)]
    early_c = list(range(8))
    late_w = [((2 * (g - 12) + ntl) >> 2, w_load(GSTEP[g], ntl)) for g in range(12, 28) for ntl in range(2)]
    alt = [False]
    h_done = [0]

    def barrier(tagwait=None):
        if tagwait:
            P(f"@waitvm {tagwait}")
        P("@waitlg xch")
        if OPT.get("fine"): stamp(16 + st["bars"])
        P("s_barrier")
        st["quiet"] = st["gap"] + OPT.get("quiet", 0)
        st["bars"] += 1
        released["S"] = True
        for key, lu in last_use.items():
            if lu <= st["done"]:
                released[key] = True

    gate_done = lambda k: ("gate", lambda: st["done"] >= k)
    gate_bar = lambda name: ("gate", lambda: name in st["marks"] and st["bars"] > st["marks"][name])
    mark = lambda name: ("mark", name)
    gate_mark = lambda name: ("gate", lambda: name in st["marks"])
    call = lambda f: ("call", f)

    P(f"v_mov_b32 v{T+8}, 0\nv_mov_b32 v{T+9}, 0\ns_lshl_b32 {sT2}, {sW}, 9\ns_add_u32 {sT2}, {sT2}, {EXZ}")
    P(f"v_lshrrev_b32 v{T+10}, 1, v{VL16}\nv_add_u32 v{T+10}, {sT2}, v{T+10}")
    P(f"ds_write_b64 v{T+10}, {vr(T+8,2)}", tag="xch")
    u0, u1, mean, mb, den = T, T + 1, T + 2, T + 4, T + 5
    P(f"v_mov_b32 v{u0}, v{S1}\nv_mov_b32 v{u1}, v{S2}")
    P(f"ds_write_b32 v{ACSB_W}, v{CSBR}\nds_write_b32 v{ACSB_W}, v{CSBI} offset:512", tag="xch")

    e1 = [f"ds_read_b128 {vr(T+12,4)}, v{ACSB_R}", f"ds_read_b128 {vr(T+16,4)}, v{ACSB_R} offset:512",
          f"v_permlane32_swap_b32 v{S1}, v{u0}", f"v_permlane32_swap_b32 v{S2}, v{u1}",
          f"v_add_f32 v{S1}, v{S1}, v{u0}", f"v_add_f32 v{S2}, v{S2}, v{u1}",
          f"v_mul_f32 v{mean}, {hex(f2u(1/512))}, v{S1}", f"v_mul_f32 v{S2}, {hex(f2u(1/512))}, v{S2}",
          f"v_fma_f32 v{S2}, -v{mean}, v{mean}, v{S2}", f"v_max_f32 v{S2}, 0, v{S2}"]
    e1 += bfr(S2, S2) + [f"v_add_f32 v{S2}, {hex(f2u(1e-5))}, v{S2}"] + bfr(S2, S2) + [f"v_sqrt_f32 v{S2}, v{S2}"]
    e1 += bfr(mb, mean) + bfr(den, S2)
    e1 += [f"v_rcp_f32 v{S1}, v{den}", f"v_xor_b32 v{u0}, 0x80000000, v{mb}", f"v_lshrrev_b32 v{u1}, 16, v{u0}",
           (f"ds_write_b32 v{PR}, v{S1}", "rsw"), f"v_or_b32 v{u0}, v{u0}, v{u1}",
           ("atomic", [f"v_cmp_gt_u32 vcc, 32, v{VLANE}", f"v_mov_b32 v{SIG}, v{den}", f"v_mul_f32 v{C1}, {sL2E}, v{S1}",
                       f"v_cndmask_b32 v{XE}, 0, v{u0}, vcc"])]
    for mat, b in ((0, T + 12), (1, T + 16)):
        e1 += [f"v_add_f32 v{b}, v{b}, v{b+1}", f"v_add_f32 v{b+2}, v{b+2}, v{b+3}", f"v_add_f32 v{b}, v{b}, v{b+2}"]
        e1 += split_cs(b, CE0 if mat == 0 else CE1, b + 1, b + 2)
    R16 = T + 6
    e1 += ["@waitlg rsw"] + [f"ds_read_b128 {vr(R16+4*k,4)}, v{ARS} offset:{16*k}" for k in range(4)]
    e1 += [f"v_mfma_f32_32x32x16_bf16 {vr(ACC_S,16)}, {vr(XE,4)}, {vr(CE0,4)}, {vr(ACC_S,16)}",
           f"v_mfma_f32_32x32x16_bf16 {vr(ACC_S+16,16)}, {vr(XE,4)}, {vr(CE1,4)}, {vr(ACC_S+16,16)}",
           f"v_sub_f32 v{C1}, 0, v{C1}",
           (f"buffer_store_dwordx2 {vr(mb,2)}, v{VST}, {SWS}, 0 offen sc1", "pubA")]
    e1 += [f"v_add_u32 v{AX[s_]}, 0xffff0000, v{AX[s_]}" for s_ in range(4)]
    e1 += [f"v_mov_b32 v{VX[0]}, v{PK_VQ}"] + [f"v_add_u32 v{VX[k]}, {k*56320}, v{PK_VQ}" for k in range(1, 4)] + [mark("vq")]
    for q in range(16):
        e1 += [f"v_mul_f32 v{ACC_S+q}, v{ACC_S+q}, v{R16+q}", f"v_mul_f32 v{ACC_S+16+q}, v{ACC_S+16+q}, v{R16+q}"]
    ea, eb = (T + 0, T + 1), (T + 2, T + 3)
    cur = (ACC_S, ACC_S + 16)
    for q in range(1, 16):
        nxt = ea if q % 2 else eb
        e1 += cstep(nxt, (L1R, L1I), cur, (ACC_S + q, ACC_S + 16 + q))
        cur = nxt
    assert cur == ea
    e1 += [(f"ds_write_b64 v{AEXW}, {vr(ea[0],2)}", "xch"), mark("ex")]
    e1 += [("delay", 1), call(barrier)] if OPT["exbar"] else [gate_bar("ex")]
    e1 += [f"ds_read_b64 {vr(T+8+2*k,2)}, v{AEXR} offset:{256*k}" for k in range(7)] + [("delay", 2)]
    cur = (T + 8, T + 9)
    for k in range(1, 7):
        u = (T + 8 + 2 * k, T + 9 + 2 * k)
        nx = (PR, PI) if k == 6 else u
        e1 += cstep(nx, (L16R, L16I), cur, u)
        cur = nx
    e1 += [f"v_mov_b32 v{T+5}, v{VNON}", f"v_mov_b32 v{T+7}, v{VNON}"] + cstep((T + 4, T + 6), (L16R, L16I), (PR, PI), ea)
    e1 += [(f"buffer_store_dwordx4 {vr(T+4,4)}, v{VEW}, {SE}, 0 offen sc1", "pubE"), call(lambda: stamp(4)), ("delay", 1), mark("e1")]

    cl = [gate_mark("epiP3"), ("delay", OPT.get("cld", 16)), "@waitvm pubA", mark("clr"), gate_bar("clr"), flag_store(1), call(lambda: stamp(5)), mark("flA")]
    lt = [("atomic", [i.text for i in g]) for g in LATE] + [mark("late")]
    ku = [gate_mark("e1"), gate_mark("late"), f"s_load_dwordx2 s[{pDSK}:{pDSK+1}], s[0:1], 64"]
    for q in list(range(16)) + [-1]:
        re_, im_ = (ACC_S + q, ACC_S + 16 + q) if q >= 0 else (PR, PI)
        t0, t1 = T + 4 + 2 * (q & 1), T + 5 + 2 * (q & 1)
        ku += [f"v_mul_f32 v{t0}, v{KI}, v{im_}", f"v_mul_f32 v{t1}, v{KI}, v{re_}",
               f"v_fma_f32 v{re_}, v{KR}, v{re_}, -v{t0}", f"v_fma_f32 v{im_}, v{KR}, v{im_}, v{t1}"]
    ku += [f"v_lshrrev_b32 v{T+4}, 3, v{VLANE}", f"v_and_b32 v{T+5}, 7, v{VLANE}", f"v_lshrrev_b32 v{T+6}, 1, v{T+4}",
           f"v_xor_b32 v{T+6}, v{T+5}, v{T+6}", f"v_lshlrev_b32 v{T+6}, 4, v{T+6}",
           f"v_lshl_add_u32 v{VC[0]}, v{T+4}, 10, v{T+6}", f"v_xor_b32 v{VC[1]}, 64, v{VC[0]}",
           f"v_add_u32 v{VC[2]}, {2*7168}, v{VC[0]}", f"v_add_u32 v{VC[3]}, {3*7168}, v{VC[1]}", f"v_add_u32 v{VC[1]}, 7168, v{VC[1]}"]
    ku += [("atomic", [f"s_and_b32 {sT2}, s59, 1", f"s_lshl_b32 {sT2}, {sT2}, 5", f"s_lshr_b32 {sT3}, {sMU}, 6", f"s_or_b32 {sT2}, {sT2}, {sT3}"] +
                      [f"v_xor_b32 v{AX[s_]}, {sT2}, v{AX[s_]}" for s_ in range(4)])]
    ku += [f"v_add_u32 v{AXH[s_]}, 0x10000, v{AX[s_]}" for s_ in range(4)]
    ku += [("atomic", [f"s_lshl_b32 {sT2}, {TB[0]}, 7", f"v_add_u32 v{ACSB_W}, {sT2}, v{ACSG_W}", f"s_lshl_b32 {sT2}, {sW}, 7", f"v_add_u32 v{ACSG_W}, {sT2}, v{ACSG_W}"]),
           ("atomic", [f"s_lshl_b32 {sT2}, {sW}, 2", f"s_add_u32 {sT2}, {sT2}, {sM}", f"v_lshrrev_b32 v{VEW}, 5, v{VLANE}",
                       f"v_add_u32 v{VEW}, {sT2}, v{VEW}"]),
           f"v_add_u32 v{VEW}, -12, v{VEW}", f"v_max_i32 v{VEW}, 0, v{VEW}", f"v_min_i32 v{VEW}, 5, v{VEW}", f"v_and_b32 v{VEW}, 6, v{VEW}",
           f"v_mul_lo_u32 v{VEW}, v{VEW}, {sNON}",
           f"v_mul_f32 v{L16R}, v{L256I}, v{L256I}", f"v_mul_f32 v{L16I}, v{L256R}, v{L256I}",
           f"v_fma_f32 v{L16R}, v{L256R}, v{L256R}, -v{L16R}", f"v_add_f32 v{L16I}, v{L16I}, v{L16I}",
           ("atomic", [f"s_lshl_b32 {sT2}, {sW}, 8", f"s_add_u32 {sT2}, {sT2}, {EXZ}", f"v_lshlrev_b32 v{VST}, 3, v{VC4}", f"v_add_u32 v{PRW}, {sT2}, v{VST}"]),
           f"v_add_u32 v{VST}, {EXZ}, v{VST}", mark("vc")]
    vo = [gate_mark("e1")] + ([] if OPT.get('p2early', 1) else [gate_mark("late")])
    vo += [("atomic", [f"s_lshl_b32 {sXB}, s59, 10", f"v_add_u32 v{VO4[0]}, {sXB}, v{VL16}"])]
    vo += [f"s_sub_u32 {sWQ[k]}, {sWA[k][0]}, {sMU}" for k in range(2)]
    vo += [f"v_xor_b32 v{VO4[k]}, {k*1024}, v{VO4[0]}" for k in range(1, 4)]
    vo += [f"v_and_b32 v{T+20}, 3, v{VLANE}", f"v_lshlrev_b32 v{T+20}, 2, v{T+20}", f"v_bfe_u32 v{T+21}, v{VLANE}, 2, 1",
           f"v_lshl_add_u32 v{T+21}, v{T+21}, 9, v{T+20}", mark("vo")]
    fw = [gate_done(OPT.get("fw", 8)), "@waitvm pub1", mark("p1"), gate_bar("p1"), flag_store(0)]
    ld, chk = poll(T + 22, T + 21, sPW)
    pl = [gate_mark("vo"), gate_done(OPT["pa"]), ld, ("delay", OPT["pad"]), ("atomic", chk), call(lambda: stamp(6)), mark("pollW")]
    lda = (f"buffer_load_dword v{T+22}, v{T+21}, {SWS}, {sXB} offen sc1", "poll")
    eva = [f"v_cmp_ne_u32 vcc, {sBB}, v{T+22}"]
    pl += [gate_done(OPT.get("pe", 150)), f"v_lshrrev_b32 v{T+21}, 2, v{VLANE}", f"v_lshl_add_u32 v{T+21}, v{T+21}, 7, v{T+20}",
           ("atomic", [f"s_lshl_b32 {sXB}, {sW}, 11", f"s_add_u32 {sXB}, {sXB}, {FL_OFF}", "s_cmp_eq_u32 s2, 0",
                       f"s_cselect_b32 {sXB}, {sXB}, {OOB}", f"s_cselect_b32 {sBB}, {sNON}, 0", f"s_cselect_b32 {sROT}, {EP_OFF - FL_OFF}, {OOB}"]),
           lda, ("delay", OPT["pad"]), ("atomic", eva + retry_check(eva, [lda], 8)), mark("epok")]

    ce_flip = [0]
    def glu_epi(ps, t):
        gi = GI(ps, t)
        acc = ACC_G[gi]
        pso = 0 if ps == "P" else 512
        r = [gate_done(tile_last[(ps, t)])]
        ce = CE0 if ce_flip[0] % 2 == 0 else CE1
        ce_flip[0] += 1
        tt = T + 24
        acs = ACSG_W if ps == "P" else ACSB_W
        pso = 0 if ps == "P" else 1024
        if t == 0:
            r += [("delay", 2), (f"ds_write_b32 v{acs}, v{CSGA} offset:{pso}", "xch"),
                  (f"ds_write_b32 v{acs}, v{CSGA} offset:{pso + 128*NT[ps]}", "xch"), mark(f"csg{ps}")]
            r += split_cs(CSGA, ce, tt + 1, tt + 2) + [mark(f"csgfree{ps}")]
        else:
            pre = ([call(barrier)] if t == 1 and OPT.get("csbar", 1) else []) + [gate_bar(f"csg{ps}"),
                   f"ds_read_b32 v{tt+3}, v{acs} offset:{pso + 128*t}", ("delay", 2)] + split_cs(tt + 3, ce, tt + 1, tt + 2)
            r = pre + r
        r += [f"v_mfma_f32_32x32x16_bf16 {vr(acc,16)}, {vr(ce,4)}, {vr(XE,4)}, {vr(acc,16)}", ("delay", 2)]
        for hf in range(2):
            es = range(4 * hf, 4 * hf + 4)
            r += [f"v_mul_f32 v{acc+e}, v{C1}, v{acc+e}" for e in es]
            r += [f"v_exp_f32 v{acc+e}, v{acc+e}" for e in es]
            r += [f"v_fma_f32 v{acc+e}, v{acc+e}, v{SIG}, v{SIG}" for e in es]
            r += [f"v_rcp_f32 v{acc+e}, v{acc+e}" for e in es]
            r += [f"v_mul_f32 v{acc+8+e}, v{acc+8+e}, v{acc+e}" for e in es]
        r += [f"v_cvt_pk_bf16_f32 v{acc+k}, v{acc+8+2*k}, v{acc+9+2*k}" for k in range(4)]
        r += [(f"buffer_store_dwordx4 {vr(acc,4)}, v{VL16}, {SWS}, {sHT[gi]} offen sc1", "pubA" if ps == "P" else "pubB"), mark(f"epi{ps}{t}")]
        return r
    epi = [gate_mark("vc")]
    for t in range(4):
        epi += glu_epi("P", t)
    epiq = [gate_mark("epiP3")]
    for t in range(3):
        epiq += glu_epi("Q", t)

    EL = ACC_G[0]
    eloads = [(f"buffer_load_dwordx4 {vr(EL+4*i,4)}, v{VER}, {SE}, 0 offen offset:{(1-i)*1024} sc1", "el") for i in range(2)]
    l1 = [gate_mark("epiP0"), gate_done(OPT["el"])] + eloads + [("delay", OPT["eld"])]
    ev = [f"v_add_u32 v{T+16}, v{EL+1}, v{EL+3}", f"v_add3_u32 v{T+16}, v{T+16}, v{EL+5}, v{EL+7}", f"v_cmp_ne_u32 vcc, v{VEW}, v{T+16}"]
    l1 += ev[:-1] + [("atomic", ev[-1:] + retry_check(ev, eloads)), call(lambda: stamp(7))]
    cur = (EL + 4, EL + 6)
    l1 += cstep(cur, (L256R, L256I), (EL, EL + 2), cur)
    sa, sb_ = (T + 16, T + 17), (T + 18, T + 19)
    l1 += [f"v_mov_b32 v{sa[0]}, v{cur[0]}", f"v_mov_b32 v{sa[1]}, v{cur[1]}", f"s_nop 0",
           f"v_permlane32_swap_b32 v{cur[0]}, v{sa[0]}", f"v_permlane32_swap_b32 v{cur[1]}, v{sa[1]}"]
    l1 += cstep(sa, (L128R, L128I), cur, sa)
    l1 += [(f"ds_write_b64 v{PRW}, {vr(sa[0],2)}", "xch"), mark("xw"), (gate_bar("xw") if not OPT.get("xbar", 0) else call(barrier))]
    l1 += [f"ds_read_b64 {vr(EL+8+2*k,2)}, v{VST} offset:{256*k}" for k in range(4)] + [("delay", 2)]
    cur = (EL + 8, EL + 9)
    for k in range(1, 4):
        u = (EL + 8 + 2 * k, EL + 9 + 2 * k)
        nx = sa if k == 3 else u
        l1 += cstep(nx, (L16R, L16I), cur, u)
        cur = nx
    l1 += [f"v_mul_f32 v{sb_[0]}, v{KI}, v{sa[1]}", f"v_mul_f32 v{sb_[1]}, v{KI}, v{sa[0]}",
           f"v_fma_f32 v{sa[0]}, v{KR}, v{sa[0]}, -v{sb_[0]}", f"v_fma_f32 v{sa[1]}, v{KR}, v{sa[1]}, v{sb_[1]}"]
    l1 += cstep((PR, PI), (LSR, LSI), sa, (PR, PI))
    cur = (PR, PI)
    for q in range(16):
        nxt = (ACC_S + q, ACC_S + 16 + q)
        l1 += cstep(nxt, (L1R, L1I), cur, nxt)
        cur = nxt
        if q % 2 == 1:
            l1 += [f"v_cvt_pk_bf16_f32 v{T+(q>>1)}, v{ACC_S+q-1}, v{ACC_S+q}",
                   f"v_cvt_pk_bf16_f32 v{T+8+(q>>1)}, -v{ACC_S+16+q-1}, -v{ACC_S+16+q}"]
    l1 += [(f"ds_write_b128 v{AHW}, {vr(T,4)}", "htw"), (f"ds_write_b128 v{AHW}, {vr(T+4,4)} offset:16", "htw"),
           (f"ds_write_b128 v{AHW}, {vr(T+8,4)} offset:{32*80}", "htw"), (f"ds_write_b128 v{AHW}, {vr(T+12,4)} offset:{32*80+16}", "htw"),
           ("delay", 2), "@waitlg htw"]
    l1 += [f"ds_read_b64_tr_b16 {vr(EL+4*u+2*a,2)}, v{AHR} offset:{(16*u+4*a)*80}" for u in range(4) for a in range(2)]
    l1 += [("delay", 2)]
    l1 += [(f"buffer_store_dwordx4 {vr(EL+4*u,4)}, v{VL16}, {SWS}, {sHB} offen offset:{u*1024} sc1", "pubB") for u in range(4)]
    l1 += [call(lambda: stamp(8)), mark("l1")]

    tasks = {0: [fw, e1, vo, pl, lt, cl, ku, epi, l1, epiq], 1: [fw, e1, vo, pl, lt, cl, ku, l1, epi, epiq], 2: [fw, e1, vo, pl, lt, cl, ku, epi, epiq, l1]}[OPT.get("prio", 0)]
    tpos = [0] * len(tasks)
    tdelay = [0] * len(tasks)

    def fill(budget, flush=False, maxn=10**9):
        progress = True
        cnt = 0
        while (budget > 0 or flush) and progress and cnt < maxn:
            progress = False
            for ti, tk in enumerate(tasks):
                while tpos[ti] < len(tk):
                    it = tk[tpos[ti]]
                    if isinstance(it, tuple) and it[0] == "gate":
                        if it[1]():
                            tpos[ti] += 1; continue
                        break
                    if isinstance(it, tuple) and it[0] == "mark":
                        st["marks"][it[1]] = st["bars"]; tpos[ti] += 1
                        if OPT.get("v"): print("  mark", it[1], "at frag", st["done"], "gap", st["gap"])
                        continue
                    if isinstance(it, tuple) and it[0] == "delay":
                        tdelay[ti] = st["gap"] + it[1]; tpos[ti] += 1; continue
                    break
                if tpos[ti] >= len(tk):
                    continue
                it = tk[tpos[ti]]
                if isinstance(it, tuple) and it[0] == "gate":
                    continue
                if tdelay[ti] > st["gap"] and not flush:
                    continue
                if st["gap"] <= st["quiet"] and not flush:
                    txt = it if isinstance(it, str) else (" ".join(it[1]) if it[0] == "atomic" else it[0] if isinstance(it[0], str) else "")
                    if any(w.startswith("v_") and not w.startswith("v_mfma") for w in txt.split()):
                        continue
                n0 = len(P.l)
                if isinstance(it, tuple) and it[0] == "call":
                    it[1]()
                elif isinstance(it, tuple) and it[0] == "atomic":
                    P.emit(it[1])
                elif isvm(it):
                    if (st["gap"] - st["lastvm"] < OPT["vgap"] or st["gap"] == st["lastdma"]) and not flush:
                        continue
                    P.emit([it]); st["lastvm"] = st["gap"]; budget -= OPT.get("vcost", 0)
                else:
                    P.emit([it])
                c = sum(i.cost for i in P.l[n0:])
                budget -= c; cnt += c
                if P.l[-1].kind == "mfma":
                    budget = OPT["budget"]; st["gap"] += 1
                tpos[ti] += 1
                progress = True
                break
        return progress if flush else budget

    OPENS = {ps: [[int(c) for c in g] for g in SOPT.get("op" + ps, d).split(".")] for ps, d in (("P", "0.1"), ("Q", "0.1"))}
    fr_ring = {}
    def issue_reads(k):
        ps, t, b, ks = frs[k]
        n = 0
        if k == last1 + 1:
            sa_ = set_ap("Q", sT1)
            P.emit(sa_); n += len(sa_)
        if (ps, b) not in opened:
            grp = [b]
            for g_ in OPENS[ps]:
                if g_[0] == b: grp = g_
            for bb in grp:
                assert (ps, bb) not in pending and not any(isinstance(x, tuple) and x[1] == f"{ps}{bb}" for x in dma_q), f"block {ps}{bb} not issued in time"
                opened.add((ps, bb))
            barrier(",".join(f"{ps}{bb}" for bb in grp))
            n += 2
        sl = (b + 2) % 8
        a = AP[t] if sl < 4 else APH[t]
        off = (sl & 3) * 16384 + ks * 1024
        r = ring()
        fr_ring[k] = r
        P(f"ds_read_b64_tr_b16 {ar(r,2)}, v{a} offset:{off}\nds_read_b64_tr_b16 {ar(r+2,2)}, v{a} offset:{off+512}", tag=f"f{k}")
        return n + 2

    LOOK = OPT["look"]
    for k in range(LOOK):
        issue_reads(k)
    seen = set()
    for k, (ps, t, b, ks) in enumerate(frs):
        acc = vr(ACC_G[GI(ps, t)], 16)
        budget = OPT["budget"] if "e1" in st["marks"] else OPT["ebudget"]
        if k % 2 == 0:
            P(f"@waitlg f{k},f{min(k+1, NF-1)}")
            budget -= 1
        if ps == "Q" and (ps, t) not in seen:
            assert all(m in st["marks"] for m in ("e1", "csgfreeP")), st["marks"]
        P(f"v_mfma_f32_32x32x16_bf16 {acc}, {ar(fr_ring[k],4)}, {ar(AXF+16*b+4*ks,4)}, {acc if (ps, t) in seen else '0'}")
        pend_cs = None
        if t == 0:
            d = vr(CSGA, 4)
            pend_cs = f"v_mfma_f32_16x16x32_bf16 {d}, {vr(SEL,4)}, {ar(fr_ring[k],4)}, {d if (ps, t) in seen else '0'}"
        else:
            st["done"] = k
        seen.add((ps, t))
        if not dma_q:
            if pending and released.get(prev_occ[pending[0]]) and (pending[0][0] == "P" or "vq" in st["marks"]):
                dma_q.extend(dma_pass(*pending.pop(0)))
            elif early_w and "pollW" in st["marks"] and not OPT.get("now"):
                dma_q.extend(early_w.pop(0))
            elif late_w and not early_w and OPT.get("latew", 1) and st["done"] >= last_use[("Q", late_w[0][0])] and not (alt[0] and early_c and not pending and released.get(("Q", early_c[0]))):
                dma_q.extend(late_w.pop(0)[1]); alt[0] = OPT.get("alt", 1) and len(late_w) % 4 == 0
            elif not pending and early_c and not OPT.get("noc") and "vc" in st["marks"] and released.get(("Q", early_c[0])):
                dma_q.extend(c_dma(early_c.pop(0))); alt[0] = False
        if dma_q and st["gap"] - st["lastdma"] >= OPT["dmagap"]:
            budget -= pop_vm(dma_q) + OPT.get("vcost", 0); st["lastdma"] = st["gap"]
        if k + LOOK < NF:
            budget -= issue_reads(k + LOOK)
        budget = fill(budget)
        st["gap"] += 1
        if pend_cs:
            P(pend_cs)
            st["done"] = k
            fill(2 + min(budget, 0))
    assert not pending
    P('Lmark2:')
    stamp(9)
    print("left after spine: early_w", len(early_w), "late_w", len(late_w), "early_c", len(early_c), "h", h_done[0], "tasks", [len(tasks[i]) - tpos[i] for i in range(len(tasks))])
    barrier()
    stream = p2_stream(early_w + [x[1] for x in late_w], early_c, h_done[0])
    if OPT.get("lead", 0):
        ws_ = sorted([it for it in stream if it[1] == "w"], key=lambda it: (int(it[2][-1][1][1:]) & 3, int(it[2][-1][1][1:])))
        lead = [it for it in ws_ if int(it[2][-1][1][1:]) & 3 == 0]
        stream = lead + [it for it in stream if it[1] == "c"] + [it for it in ws_ if it not in lead] + [it for it in stream if it[1] not in "cw"]
    while True:
        prog = fill(0, flush=True, maxn=OPT["tailgap"])
        if all(tpos[i] >= len(tasks[i]) for i in range(len(tasks))):
            break
        assert prog, [(tpos[i], len(tasks[i])) for i in range(len(tasks))]
        if not dma_q:
            for i, it in enumerate(stream):
                if it[1] in "cw":
                    dma_q.extend(stream.pop(i)[2]); break
        pop_vm(dma_q)
    P.emit(dma_q)
    stamp(10)
    return stream


def p2_stream(early_w, early_c, h_done):
    left_w = {x[-1][0] for x in early_w}
    items = []
    cneed = {}
    for s, (jj, u) in enumerate(STEPS):
        if u < 4:
            for ntl in range(2):
                cneed.setdefault(CREG.index((jj >> 1, u >> 1, ntl)), s)
    for s, (jj, u) in enumerate(STEPS):
        for r in early_c:
            if max(cneed[r] - 8, 0) == s:
                items.append((s, "c", c_dma(r)))
        if u >= 4:
            for ntl in range(2):
                g = w_load(s, ntl)
                if g[-1][0] in left_w:
                    items.append((s, "w", g))
        for tl in range(2):
            if not is_lead(s):
                items.append((s, "h", h_load(s, tl)))
        for sl in HLEAD:
            if is_lead(sl) and s == {8: 0, 16: 16, 24: 17, 32: 24, 40: 32}[sl]:
                items += [(s, "h", h_load(sl, tl)) for tl in range(2)]
        if s == 5:
            items.append((s, "b", None))
    return items


def phase2(stream):
    VXO, VOO, VSO, VDO = AP[0], AP[1], AP[2], AP[3]
    AWR, ARD = APH, [T + 12, T + 13, T + 14, T + 15]
    setup = [f"v_lshrrev_b32 v{T+1}, 3, v{VLANE}", f"v_and_b32 v{T+2}, 7, v{VLANE}",
             f"v_lshrrev_b32 v{T+3}, 2, v{T+1}", f"v_and_b32 v{T+4}, 3, v{T+1}", f"v_lshl_add_u32 v{T+3}, v{T+3}, 4, v{T+4}",
             f"v_lshlrev_b32 v{VDO}, 3, v{T+2}", f"v_lshl_add_u32 v{VXO}, v{T+3}, 10, v{VDO}", f"v_lshlrev_b32 v{VOO}, 1, v{VXO}",
             f"v_lshlrev_b32 v{VSO}, 5, v{T+1}", f"v_add_u32 v{VDO}, {sCOL}, v{VDO}"]
    sloads = [(f"buffer_load_dwordx4 {vr(BST+4*k,4)}, v{VSO}, {SWS}, {sSTB} offen offset:{16*k} sc1", "b") for k in range(2)]
    bl = setup + [(f"global_load_dwordx2 {vr(BD,2)}, v{VDO}, s[{pDSK}:{pDSK+1}]", "b")] + sloads
    for it in range(4):
        bl += [f"s_add_u32 {sSO}, {sRB}, {it*4096}", (f"buffer_load_dwordx2 {vr(BX+2*it,2)}, v{VXO}, {SX}, {sSO} offen", "b")]
    post = [f"v_xor_b32 v{T+5}, v{T+1}, v{T+2}", f"v_lshlrev_b32 v{T+5}, 4, v{T+5}", f"v_lshl_add_u32 v{T+5}, v{T+1}, 7, v{T+5}"]
    for a in range(4):
        post += [f"s_xor_b32 {sT0}, {sWL}, {a*4096}", f"v_add_u32 v{ARD[a]}, {sT0}, v{T+5}"]
    post += [f"v_lshrrev_b32 v{T+6}, 5, v{VLANE}", f"v_xor_b32 v{T+6}, v{T+6}, v{T+2}", f"v_lshlrev_b32 v{T+6}, 4, v{T+6}",
             f"v_lshl_add_u32 v{T+7}, v{VC4}, 7, {sWL}"]
    for g in range(4):
        post += [f"v_xor_b32 v{AWR[g]}, {32*g}, v{T+6}", f"v_add_u32 v{AWR[g]}, v{T+7}, v{AWR[g]}"]
    base = list(post)
    base += [f"v_and_b32 v{BD+3}, 0xffff0000, v{BD+1}", f"v_lshlrev_b32 v{BD+2}, 16, v{BD+1}",
             f"v_and_b32 v{BD+1}, 0xffff0000, v{BD}", f"v_lshlrev_b32 v{BD}, 16, v{BD}"]
    for it in range(4):
        m_, d_, rc = BST + 2 * it, BST + 2 * it + 1, T + 8
        base += [f"v_rcp_f32 v{rc}, v{d_}"]
        for k in range(4):
            x, t0, t1 = BASE + 4 * it + k, T + 9, T + 10
            src = BX + 2 * it + (k >> 1)
            base += [f"v_and_b32 v{x}, 0xffff0000, v{src}" if k & 1 else f"v_lshlrev_b32 v{x}, 16, v{src}",
                     f"v_sub_f32 v{t0}, v{x}, v{m_}"] + bfr(t0, t0)
            base += [f"v_mul_f32 v{t1}, v{t0}, v{rc}", f"v_fma_f32 v{t0}, -v{t1}, v{d_}, v{t0}", f"v_fma_f32 v{t0}, v{t0}, v{rc}, v{t1}"] + bfr(t0, t0)
            base += [f"v_mul_f32 v{t0}, v{t0}, v{BD+k}"] + bfr(t0, t0) + [f"v_add_f32 v{x}, v{t0}, v{x}"]
    base += [f"s_lshl_b32 {sRB}, {sRB}, 1"]
    stream = [(s, k, (bl if k == "b" else g)) for (s, k, g) in stream]

    cpos = [0]
    def c_reads(s):
        jj, u = STEPS[s]
        cc, mat, sp = jj >> 1, u >> 1, 2 * (jj & 1) + (u & 1)
        regs = []
        for ntl in range(2):
            P(f"@waitvm C{CREG.index((cc, mat, ntl))}")
            sl = c_slot(cc, mat, ntl)
            r = ARING + 4 * (cpos[0] % NRING); cpos[0] += 1
            P(f"ds_read_b128 {ar(r,4)}, v{AX[sp] if sl < 4 else AXH[sp]} offset:{(sl&3)*16384}")
            regs.append(r)
        return regs
    creg = {}
    LA = OPT["la"]
    assert LA <= NH - 1
    q = []
    def top_up(s):
        while stream and stream[0][0] <= s + LA - 1 + (1 if stream[0][1] != "h" else 0):
            q.extend(stream.pop(0)[2])
    ldA, chkA = poll(T + 22, T + 20, sPH)
    ldB, chkB = poll(T + 22, T + 20, sPH)
    if True:
        stat = [it for it in stream if it[1] in "cw"]
        for it in stat: stream.remove(it)
        npa = min(OPT.get("npa", 8), len(stat))
        for it in stat[:len(stat) - npa]: P.emit(it[2])
        P.emit([ldA])
        for it in stat[len(stat) - npa:]: P.emit(it[2])
    if OPT["stamps"] in (1, 2):
        stamp(44)
        P(f"v_mov_b32 v{T+11}, v{T+22}")
        stamp(45)
        P("s_mov_b32 s101, 0")
    P.emit(chkA + [f"s_add_u32 {sPH}, {sPH}, 8192"])
    if OPT["stamps"] in (1, 2): P(f"v_writelane_b32 v{VSTMP}, s101, 46")
    stamp(14)
    top_up(0)
    P.emit(q); q.clear()
    first = [True] * 4
    SB = 16 - LA
    NL = OPT.get("nl", 3)
    for s, (jj, u) in enumerate(STEPS[:44 - NL]):
        if s == OPT.get("fb", 0):
            P("@waitvm pubB\ns_barrier")
            if True:
                P.emit([flag_store(2), (f"buffer_store_dword v{VNON}, v{VFLA}, {SWS}, {sROT} offen sc1", "ep")])
        if s == SB - OPT.get("pbl", 3):
            P.emit([ldB])
        if s == SB:
            if OPT["stamps"] in (1, 2):
                P(f"v_mov_b32 v{T+11}, v{T+22}")
                stamp(43)
                P("s_mov_b32 s101, 0")
            P.emit(chkB)
            if OPT["stamps"] in (1, 2): P(f"v_writelane_b32 v{VSTMP}, s101, 47")
            stamp(15)
        top_up(s + 1)
        pop_vm(q)
        if OPT.get("fine") and s % 4 == 0: stamp(32 + s // 4)
        for tl in range(2):
            for ntl in range(2):
                a = 2 * tl + ntl
                bw = ar(creg[s][ntl], 4) if u < 4 else ar(wreg(s, ntl)[0], 4)
                acc = vr(ACC2[a], 16)
                if OPT.get("fake16") and s > 0:
                    for z in range(2):
                        q4 = vr(ACC2[a] + 4 * ((2 * s + z) & 3), 4)
                        P(f"v_mfma_f32_16x16x32_bf16 {q4}, {bw}, {vr(hreg(s)+4*(tl^z),4)}, {q4}")
                else:
                    P(f"v_mfma_f32_32x32x16_bf16 {acc}, {bw}, {vr(hreg(s)+4*tl,4)}, {'0' if first[a] else acc}")
                first[a] = False
                if a < 3: pop_vm(q)
                if a == 2:
                    nx = s + 2
                    if nx < 44 and STEPS[nx][1] < 4:
                        creg[nx] = c_reads(nx)
                if s >= 12 and base:
                    for _ in range(3):
                        if base:
                            x = base.pop(0)
                            P.emit(x[1] if isinstance(x, tuple) and x[0] == "atomic" else [x])
        P.emit(q); q.clear()
    assert not base and not stream
    wr = []
    for a in (3, 2, 1, 0):
        for s in range(44 - NL, 44):
            acc = vr(ACC2[a], 16)
            P(f"v_mfma_f32_32x32x16_bf16 {acc}, {ar(wreg(s, a & 1)[0], 4)}, {vr(hreg(s)+4*(a>>1),4)}, {acc}")
            if s > 44 - NL and len(wr) > 4:
                for _ in range(4): P(wr.pop(0))
        wr += [f"ds_write_b128 v{AWR[g]}, {vr(ACC2[a]+4*g,4)} offset:{a*16384}" for g in range(4)]
    P('Lmark3:')
    stamp(11)
    P.emit(wr)
    P("@waitlg0\ns_barrier")
    RD = 36
    for it in range(4):
        for a in range(4):
            P(f"ds_read_b128 {vr(RD+16*it+4*a,4)}, v{ARD[a]} offset:{a*16384+it*1024}")
    for it in range(4):
        b = BASE + 4 * it
        r0 = RD + 16 * it
        if OPT.get("pk", 1):
            for k in (0, 2):
                P(f"v_pk_add_f32 {vr(r0+k,2)}, {vr(r0+k,2)}, {vr(r0+4+k,2)}")
                P(f"v_pk_add_f32 {vr(r0+8+k,2)}, {vr(r0+8+k,2)}, {vr(r0+12+k,2)}")
            for k in (0, 2):
                P(f"v_pk_add_f32 {vr(b+k,2)}, {vr(b+k,2)}, {vr(r0+k,2)}")
            for k in (0, 2):
                P(f"v_pk_add_f32 {vr(b+k,2)}, {vr(b+k,2)}, {vr(r0+8+k,2)}")
        else:
            for a in range(4):
                for k in range(4):
                    P(f"v_add_f32 v{b+k}, v{b+k}, v{RD+16*it+4*a+k}")
        P(f"s_add_u32 {sT0}, {sRB}, {it*8192}")
        P(f"buffer_store_dwordx4 {vr(b,4)}, v{VOO}, {SOUT}, {sT0} offen" + (" nt" if OPT.get("ont") else "") + (" sc1" if OPT.get("osc1") else ""))
    if OPT["stamps"]:
        stamp(12)
        P("@waitall")
        stamp(13)
        P(f"s_lshl_b32 s100, s2, 2\ns_add_u32 s100, s100, {sW}\ns_lshl_b32 s100, s100, 8\ns_add_u32 s100, s100, {STAMP_OFF}")
        P(f"v_lshlrev_b32 v{T}, 2, v{VLANE}\nbuffer_store_dword v{VSTMP}, v{T}, {SWS}, s100 offen")


def main():
    from collections import Counter
    ref = open(f"cdna_kernels/{NAME}.s.ref").read().split("\n")
    out = [l for l in ref if l.startswith(";") and "@launch" not in l and "Override launch" not in l and "grid=ceil" not in l]
    k1 = NAME + "_kernel"
    out.append("; @launch grid=(256,1,1) block=(256,1,1) lds=163840")
    out.append('.amdgcn_target "amdgcn-amd-amdhsa--gfx950"\n.text')
    prologue()
    stream = passes(landing())
    phase2(stream)
    st = {}
    ab = OPT.get("ablate", 0)
    if ab:
        nl = []; inside = False
        reg = OPT.get("abreg", 0)
        for i in P.l:
            if i.kind == "label" and i.text == f"Lmark{reg}:": inside = True
            if i.kind == "label" and i.text == f"Lmark{reg+1}:": inside = False
            if inside:
                if ab & 1 and i.kind == "dma": continue
                if ab & 2 and i.kind == "valu" and any(x in i.text for x in ("dot2", "v_fma", "v_mul_f32", "v_exp", "v_rcp", "v_cvt_pk")): continue
                if ab & 4 and i.kind == "barrier": continue
                if ab & 8 and i.kind == "dsr": continue
                if ab & 16 and i.kind in ("vst", "vld") and i.tag not in ("flag", "poll", "el", "pubE", "ep"): continue
                if ab & 32 and i.kind == "mfma": continue
            nl.append(i)
        P.l = nl
    l = pad_hazards(auto_wait(P.l), st)
    defined = {"s0", "s1", "s2", "v0", "exec", "scc", "vcc", "m0"}
    for i in l:
        bad = [r for r in i.rd if r not in defined]
        assert ab or not bad, f"use before def: {i.text} {bad}"
        defined |= set(i.wr)
    ool = pad_hazards([Ins(x) for x in P.ool])
    out.append(f".globl {k1}\n.p2align 8\n.type {k1},@function\n{k1}:\nk_start:")
    out.append(render(l))
    out.append("k_exit:\n    s_endpgm\nk_main_end:")
    out.append(render(ool))
    out.append("    s_endpgm\nk_all_end:")
    out.append(f""".section .rodata,"a"
.p2align 6
.amdhsa_kernel {k1}
  .amdhsa_next_free_vgpr 512
  .amdhsa_next_free_sgpr 102
  .amdhsa_accum_offset 256
  .amdhsa_group_segment_fixed_size 0
  .amdhsa_kernarg_size 128
  .amdhsa_user_sgpr_count 2
  .amdhsa_user_sgpr_kernarg_segment_ptr 1
  .amdhsa_system_sgpr_workgroup_id_x 1
.end_amdhsa_kernel""")
    open(sys.argv[1], "w").write("\n".join(out) + "\n")
    c = Counter(i.kind for i in l)
    print(dict(c), "slots", sum(i.cost for i in l), st)

main()
```

```python
import sys, struct, math
sys.path.insert(0, "work")
from asmlib import *

NAME = "parallel_sum__ssm_conv_s5__glu_gated_glu__prompt"
OPT = dict(to1=2, to2=1, look=4, dmagap=2, vgap=3, stamps=0, codepf=1, budget=6, ebudget=9, xlook=2,
           pa=40, pad=12, el=130, eld=24, pb=190, pbd=12, la=5, exbar=1, tailgap=16)
SOPT = {}
for a in sys.argv[2:]:
    k, v = a.split("=")
    if k in ("ord", "opP", "opQ"): SOPT[k] = v
    else: OPT[k] = int(v)

def f2u(x):
    return struct.unpack("<I", struct.pack("<f", x))[0]
LOG2E = f2u(1.4426950408889634)
INV2PI = f2u(0.15915494309189535)

W2_OFF = 12 << 20
E_OFF = 15 << 20
ST_OFF = E_OFF + 131072
FL_OFF = E_OFF + 196608
EP_OFF = E_OFF + 229376
STAMP_OFF = E_OFF + 262144
WS_WIN = 16 << 20
OOB = 0x40000000
SPIN_MAX = 0x40000

SCR = 131072
EXZ = SCR
CSB = SCR + 4096
CSG = SCR + 5120
RS = SCR + 7168
HT = SCR + 8192

SX, SBR, SBI, SW, SWD, SWS, SDB, SE, SCRE, SCIM, SOUT, SCD = [f"s[{4+4*i}:{7+4*i}]" for i in range(12)]
iSX, iSBR, iSBI, iSW, iSWD, iSWS, iSDB, iSE, iSCRE, iSCIM, iSOUT, iSCD = [4 + 4 * i for i in range(12)]
pLRE, pLIM, pLDT, pDSK, pWU = 52, 54, 56, 20, 60
sW, sM, sJ, sJ4, sROT = "s62", "s63", "s64", "s65", "s66"
sT0, sT1, sT2, sT3 = "s67", "s76", "s77", "s78"
KB = [f"s{68+i}" for i in range(8)]
sXB, sBB, sPB, sWL = "s79", "s80", "s81", "s82"
sONE, sHB = "s83", "s84"
sHT = [f"s{85+i}" for i in range(7)]
sSO = "s92"
sL2E, sI2P = "s93", "s94"
sFL = "s95"
TB = ["s96", "s97", "s98"]
sNON = "s99"
sWA = [["s52", "s28"], ["s53", "s29"]]; sHA = [["s54", "s30"], ["s55", "s31"]]; sCB = ["s56", "s57"]
sMU = "s58"
sRB, sSTB = "s60", "s61"
sCOL = "s48"
sWQ = [sL2E, sI2P]
sPW, sPH = "s49", "s3"

ACC_S = 0
ACC_G = [32 + 16 * t for t in range(7)]
CSBR, CSBI, CSGA = 144, 148, 152
SEL, XE, CE0, CE1 = 156, 160, 164, 168
AX = [172, 173, 174, 175]
AB = [176, 177, 178, 179]
ABC = 180
AP = [181, 182, 183, 184]
APH = [185, 186, 187, 188]
VX = [189, 190, 191, 192]
VB, VL16 = 193, 194
C1, SIG = 195, 196
L1R, L1I, L16R, L16I, L128R, L128I, LSR, LSI, KR, KI, PR, PI = range(197, 209)
S1, S2 = 209, 210
VEW, VER, AEXW, AEXR, ARS, AHW, AHR, ACSB_W, ACSB_R, ACSG_W, VST, VC4 = range(211, 223)
VLANE = 223
T = 224
L256R, L256I = T + 28, T + 29
PRW = CSBR
VSTMP = T + 31
AXF, ARING, NRING = 0, 128, 8
P0R = 208
VWD, VCT, VRS = ACC_G[5], ACC_G[5] + 4, ACC_G[5] + 8
RPW, RPT = ACC_G[4], ACC_G[5] + 12
VP = [ACC_G[6] + 8 + k for k in range(4)]
PK_SSW, PK_TRB, PK_VQ, ARPR = ACC_G[6] + 12, ACC_G[6] + 13, ACC_G[6] + 14, ACC_G[6] + 15
VFLA, VNON = T + 30, T + 23
HR, NH = 48, 6
ACC2 = [96, 112, 128, 144]
BX, BST, BD, BASE = 0, 8, 16, 20

def vr(a, n=1): return f"v{a}" if n == 1 else f"v[{a}:{a+n-1}]"
def ar(a, n=1): return f"a{a}" if n == 1 else f"a[{a}:{a+n-1}]"
def isvm(x): return isinstance(x, tuple) and x[0].startswith(("buffer_", "global_"))


class Prog:
    def __init__(self):
        self.l = []
        self.ool = []
    def __call__(self, text, tag=None):
        for t in text.split("\n"):
            t = t.strip()
            if t:
                self.l.append(Ins(t, tag))
    def emit(self, lst):
        for x in lst:
            if isinstance(x, tuple):
                self(x[0], tag=x[1])
            else:
                self(x)

P = Prog()

def stamp(idx):
    if not OPT["stamps"] or (OPT["stamps"] == 3 and idx != 13):
        return
    P("@opaque_begin")
    P(("s_memrealtime" if OPT["stamps"] >= 2 else "s_memtime") + " s[100:101]\ns_waitcnt lgkmcnt(0)")
    P("@opaque_end")
    P(f"v_writelane_b32 v{VSTMP}, s100, {idx}")

def bfr(dst, src):
    return [f"v_cvt_pk_bf16_f32 v{dst}, v{src}, v{src}", f"v_and_b32 v{dst}, 0xffff0000, v{dst}"]

def set_srd(i, nbytes):
    P(f"s_mov_b32 s{i+2}, {nbytes}\ns_mov_b32 s{i+3}, 0x20000")

def cpow(n_expr, dr, di, A, Bq, t0, t1):
    if n_expr is None:
        P(f"v_exp_f32 v{t0}, v{A}\nv_fract_f32 v{t1}, v{Bq}")
    else:
        P(f"v_mul_f32 v{t0}, {n_expr}, v{A}\nv_mul_f32 v{t1}, {n_expr}, v{Bq}\nv_exp_f32 v{t0}, v{t0}\nv_fract_f32 v{t1}, v{t1}")
    P(f"v_cos_f32 v{dr}, v{t1}\nv_sin_f32 v{di}, v{t1}\nv_mul_f32 v{dr}, v{t0}, v{dr}\nv_mul_f32 v{di}, v{t0}, v{di}")

def cstep(nx, L, cur, u):
    return [f"v_fma_f32 v{nx[0]}, v{L[0]}, v{cur[0]}, v{u[0]}", f"v_fma_f32 v{nx[1]}, v{L[0]}, v{cur[1]}, v{u[1]}",
            f"v_fma_f32 v{nx[0]}, -v{L[1]}, v{cur[1]}, v{nx[0]}", f"v_fma_f32 v{nx[1]}, v{L[1]}, v{cur[0]}, v{nx[1]}"]

retry_id = [0]
def retry_check(ev, reload, sleep=2):
    k = retry_id[0]; retry_id[0] += 1
    o = [f"Lretry{k}:", f"s_mov_b32 s101, 0", f"Lspin{k}:", f"s_sleep {sleep}", f"s_add_u32 s101, s101, 1",
         f"s_cmp_gt_u32 s101, {SPIN_MAX}", f"s_cbranch_scc1 Lback{k}"]
    o += [x[0] if isinstance(x, tuple) else x for x in reload]
    o += ["s_waitcnt vmcnt(0)"] + ev + ["s_nop 4", f"s_cbranch_vccnz Lspin{k}", f"s_branch Lback{k}"]
    P.ool += o
    return [f"s_cbranch_vccnz Lretry{k}", f"Lback{k}:"]

def poll(d, addr, so):
    ld = (f"buffer_load_dword v{d}, v{addr}, {SWS}, {so} offen sc1", "poll")
    ev = [f"v_cmp_ne_u32 vcc, {sNON}, v{d}"]
    return ld, ev + retry_check(ev, [ld], 4)

def flag_store(kind):
    return (f"buffer_store_dword v{VNON}, v{VFLA}, {SWS}, 0 offen offset:0 sc1" if kind == 0 else
            f"buffer_store_dword v{VNON}, v{VFLA}, {SWS}, {sK8 if kind == 1 else sK16} offen sc1", "flag")
sK8, sK16 = "s50", "s51"

PSET = lambda jj: [jj + t for t in range(4)]
QSET = lambda jj: [g for g in range(7) if g not in PSET(jj)]
STEPS = [(jj, 4 + g) for t in range(4) for jj in range(4) for g in [PSET(jj)[t]]] + \
        [(jj, u) for jj in range(4) for u in range(4)] + \
        [(jj, 4 + g) for t in range(3) for jj in range(4) for g in [QSET(jj)[t]]]
GSTEP = [s for s, (jj, u) in enumerate(STEPS) if u >= 4]
def wreg(s, ntl):
    wi = 2 * GSTEP.index(s) + ntl
    return ((160 + 4 * wi) if wi < 24 else 4 * (wi - 24)), wi
VO4 = [AEXW, AEXR, ARS, ACSB_R]
def adv(base, idx, last):
    r = []
    if idx % 4 == 0 and idx >= 8:
        b = base[(idx >> 2) & 1]
        if idx == last:
            r.append(f"s_sub_u32 {b}, {b}, {sMU}")
        r.append(f"s_add_u32 {b}, {b}, 8192")
    return r
def w_load(s, ntl):
    g = GSTEP.index(s)
    b = sWA[ntl][(g >> 2) & 1] if g < 24 else sWQ[ntl]
    off = (g >> 3) * 8192
    pre = [f"s_add_u32 {sSO}, {b}, {off}"] if off else []
    return pre + [(f"buffer_load_dwordx4 {ar(wreg(s, ntl)[0],4)}, v{VO4[g&3]}, {SWS}, {sSO if off else b} offen sc1", f"w{g}")]
HLEAD = {8: 160, 16: 36, 24: 160, 32: 36, 40: 160}
def is_lead(s): return OPT.get("hlead", 0) and s in HLEAD
RIDX = {}
for _s in range(44):
    if not is_lead(_s): RIDX[_s] = len(RIDX)
def hreg(s): return HLEAD[s] if is_lead(s) else HR + 8 * (RIDX[s] % NH)
def h_load(s, tl):
    b = sHA[tl][(s >> 2) & 1]
    off = (s >> 3) * 8192
    pre = [f"s_add_u32 {sSO}, {b}, {off}"] + ([f"s_sub_u32 {sSO}, {sSO}, {sMU}"] if s >= 40 else []) if off else []
    return pre + [(f"buffer_load_dwordx4 {vr(hreg(s)+4*tl,4)}, v{VO4[s&3]}, {SWS}, {sSO if off else b} offen sc1", "h")]
CREG = [(cc, mat, ntl) for cc in range(2) for mat in range(2) for ntl in range(2)]
def c_slot(cc, mat, ntl): return (CREG.index((cc, mat, ntl)) + 2) % 8
VC = [AB[0], AB[1], AB[2], AB[3]]
AXH = [ABC, VB, S1, S2]
def c_dma(r):
    cc, mat, ntl = CREG[r]
    g = [f"s_add_u32 m0, {sWL}, {c_slot(cc, mat, ntl)*16384}", f"s_add_u32 {sSO}, {sCB[ntl]}, {cc*128}"]
    return g + [(f"buffer_load_dwordx4 v{VC[sb]}, {SCIM if mat else SCRE}, {sSO} offen offset:{sb*1024} lds", f"C{r}") for sb in range(4)]


GRP = dict(
    x=lambda: dma_X(1) + dma_B(1),
    a=lambda: [(f"global_load_ushort v{T+8+k}, v{T+6}, s[{p}:{p+1}]", "par") for k, p in enumerate((pLRE, pLIM, pLDT))],
    p=lambda: [f"s_mul_i32 {sSO}, {KB[0]}, 1792", f"s_add_u32 {sSO}, {sSO}, {sPB}"] +
              [(f"buffer_load_dwordx4 {ar(P0R+4*ks,4)}, v{VP[ks]}, {SW}, {sSO} offen offset:{ks*1024}", "p0") for ks in range(4)],
    w=lambda: [(f"buffer_load_dwordx4 {vr(RPW+4*g,4)}, v{VWD+g}, {SWD}, 0 offen", "wd") for g in range(2)],
    c=lambda: [(f"buffer_load_dwordx4 {ar(240,4)}, v{VCT}, {SCRE}, 0 offen", "ct"), (f"buffer_load_dwordx4 {ar(244,4)}, v{VCT+1}, {SCIM}, 0 offen", "ct")],
)
ORDER = [list(x) for x in SOPT.get("ord", "ax_p_....wc").split("_")[:2]] + [SOPT.get("ord", "ax_p_....wc").split("_")[2].split(".")]
DEFER = []
LATE = []
def pop_defer(n):
    k = 0
    while DEFER and k < n:
        g = DEFER.pop(0); P.l.extend(g); k += sum(i.cost for i in g)

def p2scal():
    mp, nn, a, b = "s50", "s51", sT0, sT1
    P(f"""s_and_b32 {a}, s2, 7
          s_lshr_b32 {b}, s2, 3
          s_lshl_b32 {mp}, {a}, 2
          s_and_b32 {a}, {b}, 3
          s_add_u32 {mp}, {mp}, {a}
          s_lshr_b32 {nn}, {b}, 2
          s_lshl_b32 {mp}, {mp}, 1
          s_lshr_b32 {a}, {sW}, 1
          s_add_u32 {mp}, {mp}, {a}
          s_lshl_b32 {nn}, {nn}, 1
          s_and_b32 {a}, {sW}, 1
          s_add_u32 {nn}, {nn}, {a}
          s_mul_i32 {sT2}, {sW}, 44
          s_lshl_b32 {sT3}, {sW}, 8""")
    P(f"""s_lshr_b32 {a}, {nn}, 1
          s_lshr_b32 {b}, {mp}, 1
          s_add_u32 {b}, {b}, {a}
          s_and_b32 s59, {b}, {3 if OPT.get("mu", 1) else 0}
          s_and_b32 {sMU}, {a}, {4 if OPT.get("mu", 1) else 0}
          s_lshl_b32 {sMU}, {sMU}, 10
          s_xor_b32 {b}, {sMU}, 4096""")
    for k in range(2):
        P(f"""s_xor_b32 {a}, {mp}, {k}
              s_mul_i32 {a}, {a}, 176
              s_add_u32 {a}, {a}, {sT2}
              s_lshl_b32 {a}, {a}, 10
              s_add_u32 {sHA[k][0]}, {a}, {sMU}
              s_add_u32 {sHA[k][1]}, {a}, {b}
              s_xor_b32 {a}, {nn}, {k}
              s_lshl_b32 {sCB[k]}, {a}, 15
              s_add_u32 {sCB[k]}, {sCB[k]}, {sT3}
              s_lshl_b32 {a}, {a}, 2
              s_add_u32 {a}, {a}, {sW}
              s_mul_i32 {a}, {a}, {28*1024}
              s_add_u32 {a}, {a}, {W2_OFF}
              s_add_u32 {sWA[k][0]}, {a}, {sMU}
              s_add_u32 {sWA[k][1]}, {a}, {b}""")
    P(f"""s_bitcmp1_b32 s59, 1
          s_cselect_b64 s[100:101], s[{iSCIM}:{iSCIM+1}], s[{iSCRE}:{iSCRE+1}]
          s_cselect_b64 s[{iSCIM}:{iSCIM+1}], s[{iSCRE}:{iSCRE+1}], s[{iSCIM}:{iSCIM+1}]
          s_mov_b64 s[{iSCRE}:{iSCRE+1}], s[100:101]""")
    P(f"""s_lshl_b32 {sCOL}, {nn}, 6
          s_lshl_b32 {sRB}, {mp}, 15
          s_add_u32 {sRB}, {sRB}, {sCOL}
          s_lshl_b32 {sSTB}, {mp}, 8
          s_lshl_b32 {a}, {sW}, 14
          s_add_u32 {sSTB}, {sSTB}, {a}
          s_add_u32 {sSTB}, {sSTB}, {ST_OFF}
          s_lshl_b32 {a}, {sW}, 7
          s_add_u32 {a}, {a}, {FL_OFF}
          s_lshr_b32 {sPW}, {nn}, 1
          s_lshl_b32 {sPW}, {sPW}, 10
          s_add_u32 {sPW}, {sPW}, {a}
          s_lshr_b32 {sPH}, {mp}, 2
          s_lshl_b32 {sPH}, {sPH}, 9
          s_add_u32 {sPH}, {sPH}, {a}
          s_add_u32 {sPH}, {sPH}, 8192
          s_movk_i32 {sK8}, 8192
          s_movk_i32 {sK16}, 16384""")


def prologue():
    P("s_cmp_ge_u32 s2, 256\ns_cbranch_scc1 k_exit")
    if OPT["stamps"]:
        P(("s_memrealtime" if OPT["stamps"] >= 2 else "s_memtime") + " s[100:101]\ns_waitcnt lgkmcnt(0)")
        P(f"v_mov_b32 v{VSTMP}, 0\ns_nop 1\nv_writelane_b32 v{VSTMP}, s100, 0")
    for off, s in [(0, iSX), (24, iSBR), (32, iSBI)]:
        P(f"s_load_dwordx2 s[{s}:{s+1}], s[0:1], {off}")
    rr, p, q, t3 = T + 1, T + 2, T + 3, T + 4
    LM = OPT.get('lm', 3)
    P(f"""v_lshrrev_b32 v{T}, 6, v0
          v_and_b32 v{VLANE}, 63, v0
          v_readfirstlane_b32 {sW}, v{T}
          s_and_b32 {sT0}, s2, 7
          s_lshr_b32 {sT1}, s2, 3
          s_and_b32 {sM}, {sT0}, {(16 >> LM) - 1}
          s_lshl_b32 {sM}, {sM}, {LM}
          s_and_b32 {sT2}, {sT1}, {(1 << LM) - 1}
          s_add_u32 {sM}, {sM}, {sT2}
          s_lshr_b32 {sT1}, {sT1}, {LM}
          s_lshr_b32 {sJ}, {sT0}, {4 - LM}
          s_lshl_b32 {sJ}, {sJ}, {5 - LM}
          s_add_u32 {sJ}, {sJ}, {sT1}
          s_and_b32 {sJ4}, {sJ}, 3""")
    P({1: f"s_add_u32 {sROT}, {sJ}, {sM}", 2: f"s_lshl_b32 {sROT}, {sJ}, 1\ns_add_u32 {sROT}, {sROT}, {sM}",
       3: f"s_lshl_b32 {sROT}, {sM}, 1\ns_add_u32 {sROT}, {sROT}, {sJ}", 0: f"s_mov_b32 {sROT}, 0", 4: f"s_mov_b32 {sROT}, {sM}", 5: f"s_mov_b32 {sROT}, {sJ}"}[OPT.get("rot", 2)])
    P(f"""s_lshl_b32 {sROT}, {sROT}, 7
          s_and_b32 {KB[0]}, {sROT}, 0x380
          v_lshrrev_b32 v{rr}, 3, v{VLANE}
          v_and_b32 v{p}, 7, v{VLANE}
          v_lshrrev_b32 v{q}, 1, v{rr}
          v_xor_b32 v{q}, v{p}, v{q}
          v_lshlrev_b32 v{q}, 4, v{q}
          v_lshrrev_b32 v{t3}, 2, v{rr}
          v_lshlrev_b32 v{t3}, 4, v{t3}
          v_and_b32 v{T+5}, 3, v{rr}
          v_add_u32 v{t3}, v{t3}, v{T+5}
          v_lshl_add_u32 v{VX[0]}, v{t3}, 10, v{q}
          v_xor_b32 v{VX[1]}, 64, v{VX[0]}
          v_add_u32 v{VX[2]}, {2*3072}, v{VX[0]}
          v_add_u32 v{VX[3]}, {3*3072}, v{VX[1]}
          v_add_u32 v{VX[1]}, 3072, v{VX[1]}
          s_lshl_b32 {sWL}, {sW}, 12
          s_lshl_b32 {sXB}, {sM}, 17
          s_lshl_b32 {sT0}, {sW}, 15
          s_add_u32 {sXB}, {sXB}, {sT0}""")
    set_srd(iSX, 2048 * 1024)
    P.emit(dma_X(0))
    stamp(1)
    for off, s in [(8, pLRE), (16, pLIM), (56, pLDT), (96, iSWD), (80, iSW), (88, pWU),
                   (120, iSWS), (40, iSCRE), (48, iSCIM), (104, iSOUT)]:
        P(f"s_load_dwordx2 s[{s}:{s+1}], s[0:1], {off}")
    P(f"""s_lshl_b32 {sBB}, {sJ}, 15
          s_lshl_b32 {sT0}, {sW}, 13
          s_add_u32 {sBB}, {sBB}, {sT0}
          s_and_b32 {sT0}, {sW}, 1
          s_lshl_b32 {sT0}, {sT0}, 6
          v_xor_b32 v{VB}, {sT0}, v{q}
          v_lshl_add_u32 v{VB}, v{rr}, 10, v{VB}""")
    set_srd(iSBR, 524288); set_srd(iSBI, 524288)
    P.emit(dma_B(0))
    if OPT["codepf"]:
        P(f"""s_getpc_b64 s[{iSCD}:{iSCD+1}]
              Lpc0:
              s_sub_u32 s{iSCD}, s{iSCD}, Lpc0-k_start
              s_subb_u32 s{iSCD+1}, s{iSCD+1}, 0
              s_mov_b32 s{iSCD+2}, k_all_end-k_start
              s_mov_b32 s{iSCD+3}, 0x20000
              s_lshr_b32 {sT0}, s2, 3
              s_and_b32 {sT0}, {sT0}, 31
              s_lshl_b32 {sT0}, {sT0}, 10
              v_lshlrev_b32 v{T+7}, 2, v0
              buffer_load_dword a255, v{T+7}, {SCD}, {sT0} offen""")
    for n in range(1, 8):
        P(f"s_add_u32 {sT0}, {sROT}, {n*128}\ns_and_b32 {KB[n]}, {sT0}, 0x380")
    PLRE, PLIM, PLDT = T + 8, T + 9, T + 10
    hh, f, row = T + 11, T + 12, T + 13
    P(f"""v_and_b32 v{VC4}, 31, v{VLANE}
          v_lshlrev_b32 v{T+6}, 1, v{VC4}
          s_lshl_b32 {sT1}, {sJ}, 6
          v_add_u32 v{T+6}, {sT1}, v{T+6}
          s_add_u32 s100, s{iSWS}, {EP_OFF}
          s_addc_u32 s101, s{iSWS+1}, 0
          s_load_dword {sNON}, s[100:101], 0""")
    for g in ORDER[0]:
        P.emit(GRP[g]())
    set_srd(iSW, 1835008); set_srd(iSCRE, 524288); set_srd(iSCIM, 524288)
    P(f"""s_bitcmp1_b32 {sW}, 0
          s_cselect_b32 s{iSW}, s{pWU}, s{iSW}
          s_cselect_b32 s{iSW+1}, s{pWU+1}, s{iSW+1}""")
    if OPT.get("touch", 0):
        set_srd(iSWS, WS_WIN); set_srd(iSOUT, 4 << 20)
        P(f"""v_lshlrev_b32 v{T+7}, {OPT.get("tsh", 20)}, v{VLANE}
              buffer_load_dword a250, v{T+7}, {SW}, 0 offen
              buffer_load_dword a251, v{T+7}, {SWS}, 0 offen
              buffer_load_dword a252, v{T+7}, {SCRE}, 0 offen
              buffer_load_dword a253, v{T+7}, {SCIM}, 0 offen
              buffer_load_dword a254, v{T+7}, {SOUT}, 0 offen""")
    set_srd(iSWD, 1835008)
    P(f"""s_mul_i32 {sT0}, {sJ}, 112
          s_lshl_b32 {sT1}, {sW}, 4
          s_add_u32 {sT0}, {sT0}, {sT1}
          s_lshl_b32 {sT0}, {sT0}, 10
          s_lshl_b32 {sT1}, {sM}, 6
          s_add_u32 {sT0}, {sT0}, {sT1}
          v_lshrrev_b32 v{T+14}, 2, v{VLANE}
          v_and_b32 v{T+21}, 3, v{VLANE}
          v_lshlrev_b32 v{T+15}, 4, v{T+21}
          v_lshl_add_u32 v{T+14}, v{T+14}, 10, v{T+15}
          v_add_u32 v{VWD}, {sT0}, v{T+14}
          v_add_u32 v{VWD+1}, 0x10000, v{VWD}
          s_mov_b32 {sONE}, 0x3f803f80
          v_lshrrev_b32 v{hh}, 5, v{VLANE}
          v_bfe_u32 v{f}, v{VLANE}, 1, 3
          v_xor_b32 v{f}, v{f}, v{hh}
          v_lshlrev_b32 v{f}, 4, v{f}
          v_and_b32 v{row}, 7, v{VLANE}
          v_lshlrev_b32 v{row}, 7, v{row}
          v_bfe_u32 v{T+14}, v{VLANE}, 3, 2
          v_lshl_add_u32 v{T+15}, v{T+14}, 10, v{row}
          v_add_u32 v{T+15}, {sWL}, v{T+15}
          v_lshl_add_u32 v{T+16}, v{T+14}, 12, v{row}
          v_add_u32 v{T+16}, {SCR}, v{T+16}""")
    for s_ in range(4):
        P(f"v_xor_b32 v{T+17}, {32*s_}, v{f}\nv_add_u32 v{AX[s_]}, v{T+15}, v{T+17}\nv_add_u32 v{AB[s_]}, v{T+16}, v{T+17}")
    P(f"""s_lshl_b32 {sT0}, {sW}, 5
          v_xor_b32 v{T+17}, {sT0}, v{f}
          v_add_u32 v{ABC}, v{T+16}, v{T+17}
          v_bfe_u32 v{T+17}, v{VLANE}, 2, 1
          v_bfe_u32 v{T+22}, v{VLANE}, 4, 1
          v_xor_b32 v{T+17}, v{T+17}, v{T+22}
          v_or_b32 v{T+17}, v{T+17}, v{T+21}
          v_cmp_eq_u32 vcc, 0, v{T+17}
          v_mov_b32 v{T+18}, {sONE}
          v_mov_b32 v{S1}, 0
          v_cndmask_b32 v{SEL}, 0, v{T+18}, vcc
          v_mov_b32 v{S2}, 0
          v_mov_b32 v{SEL+1}, v{SEL}
          v_mov_b32 v{SEL+2}, v{SEL}
          v_mov_b32 v{SEL+3}, v{SEL}""")
    P(f"""v_lshlrev_b32 v{VL16}, 4, v{VLANE}
          v_mov_b32 v{T+24}, {OOB}
          s_and_b32 {sT0}, {sW}, 1
          s_lshl_b32 {sT0}, {sT0}, 1
          v_add_u32 v{T+26}, {sT0}, v{T+22}
          v_bfe_u32 v{T+27}, v{VLANE}, 1, 2
          v_xor_b32 v{T+26}, v{T+26}, v{T+27}
          v_and_b32 v{T+27}, 1, v{VLANE}
          v_lshlrev_b32 v{T+27}, 4, v{T+27}
          s_movk_i32 {sT1}, 3584
          v_mad_u32_u24 v{T+27}, v{rr}, {sT1}, v{T+27}
          v_add_u32 v{T+5}, {sJ4}, v{T+26}
          v_cmp_gt_u32 vcc, {sJ4}, v{T+26}
          v_lshl_add_u32 v{VP[0]}, v{T+5}, 5, v{T+27}
          v_add_u32 v{T+5}, 4, v{T+26}
          v_cndmask_b32 v{T+5}, v{T+5}, v{T+26}, vcc
          v_cmp_eq_u32 vcc, 3, v{T+26}
          v_lshl_add_u32 v{PK_VQ}, v{T+5}, 5, v{T+27}
          v_add_u32 v{VP[1]}, 56320, v{VP[0]}
          v_cndmask_b32 v{PK_VQ}, v{PK_VQ}, v{T+24}, vcc
          v_add_u32 v{VP[2]}, {2*56320}, v{VP[0]}
          v_add_u32 v{VP[3]}, {3*56320}, v{VP[0]}""")
    P(f"""s_mul_i32 {sPB}, {sJ}, 224
          s_lshr_b32 {sT0}, {sW}, 1
          s_mul_i32 {sT0}, {sT0}, {8*3584}
          s_add_u32 {sPB}, {sPB}, {sT0}""")
    if OPT.get("cfast", 0):
        P(f"""s_lshl_b32 {sT0}, {sM}, 3
              s_lshr_b32 {sT1}, {sJ}, 1
              s_add_u32 {sT0}, {sT0}, {sT1}
              s_lshl_b32 {sT0}, {sT0}, 2
              s_add_u32 {sT0}, {sT0}, {sW}
              s_lshl_b32 {sT0}, {sT0}, 10
              s_add_u32 {sT1}, {sJ4}, 1
              s_bitcmp1_b32 {sT1}, 1
              s_cselect_b32 {sT0}, {OOB}, {sT0}
              v_add_u32 v{VCT}, {sT0}, v{VL16}
              v_mov_b32 v{VCT+1}, v{VCT}""")
    else:
        P(f"""s_lshl_b32 {sT0}, s2, 1
              s_lshr_b32 {sT1}, {sW}, 1
              s_add_u32 {sT0}, {sT0}, {sT1}
              s_lshl_b32 {sT0}, {sT0}, 10
              s_bitcmp1_b32 {sW}, 0
              s_cselect_b32 {sT1}, {OOB}, {sT0}
              s_cselect_b32 {sT0}, {sT0}, {OOB}
              v_add_u32 v{VCT}, {sT0}, v{VL16}
              v_add_u32 v{VCT+1}, {sT1}, v{VL16}""")
    for g in ORDER[1]:
        P.emit(GRP[g]())
    if OPT["xlook"] >= 3:
        P.emit(dma_X(2) + dma_B(2))
    NPRE = OPT.get("npre", 200)
    mark0 = len(P.l)
    set_srd(iSWS, WS_WIN); set_srd(iSOUT, 4 << 20)
    P(f"""s_lshl_b32 {sFL}, {sM}, 9
          s_lshr_b32 {sT0}, {sJ}, 2
          s_lshl_b32 {sT0}, {sT0}, 7
          s_add_u32 {sFL}, {sFL}, {sT0}
          s_lshl_b32 {sT0}, {sJ4}, 2
          s_add_u32 {sFL}, {sFL}, {sT0}
          s_add_u32 {sFL}, {sFL}, {FL_OFF}
          s_add_u32 {sNON}, {sNON}, 1
          s_cmp_eq_u32 {sW}, 3
          s_cselect_b32 {sFL}, {sFL}, {OOB}
          v_mov_b32 v{VFLA}, {sFL}
          v_cmp_eq_u32 vcc, 0, v{VLANE}""")
    for r in (XE + 1, XE + 2, XE + 3, CE0 + 1, CE0 + 2, CE0 + 3, CE1 + 1, CE1 + 2, CE1 + 3):
        P(f"v_mov_b32 v{r}, 0")
    P(f"v_cndmask_b32 v{VFLA}, v{T+24}, v{VFLA}, vcc")
    P(f"""s_lshl_b32 {sT2}, {sM}, 2
          s_lshr_b32 {sT3}, {sJ}, 2
          s_add_u32 {sT2}, {sT2}, {sT3}
          s_mul_i32 {sT2}, {sT2}, {28*1024}
          s_add_u32 {sT2}, {sT2}, {W2_OFF}""")
    for pz in range(1):
        P(f"""s_xor_b32 {sROT}, {sJ4}, {pz}
              s_sub_u32 {sT3}, {sW}, {sROT}
              s_add_u32 {sT1}, {sW}, 4
              s_sub_u32 {sT0}, {sT1}, {sROT}
              s_cmp_lt_u32 {sW}, {sROT}
              s_cselect_b32 {sT3}, {sT1}, {sT3}
              s_cselect_b32 {sT0}, {sT0}, {sT1}
              s_lshl_b32 {sT3}, {sT3}, 2
              s_add_u32 {sT3}, {sT3}, {sROT}
              s_lshl_b32 {sT3}, {sT3}, 10
              s_add_u32 {sT3}, {sT3}, {sT2}
              v_add_u32 v{VRS+2*pz}, {sT3}, v{VL16}
              s_lshl_b32 {sT0}, {sT0}, 2
              s_add_u32 {sT0}, {sT0}, {sROT}
              s_lshl_b32 {sT0}, {sT0}, 10
              s_add_u32 {sT0}, {sT0}, {sT2}
              s_cmp_eq_u32 {sW}, 3
              s_cselect_b32 {sT0}, {OOB}, {sT0}
              v_add_u32 v{VRS+2*pz+1}, {sT0}, v{VL16}""")
    P(f"""s_mov_b32 {sL2E}, {LOG2E}
          s_mov_b32 {sI2P}, {INV2PI}
          s_lshl_b32 {sT0}, {sJ}, 13
          s_add_u32 {sT0}, {sT0}, {E_OFF}
          s_add_u32 s{iSE}, s{iSWS}, {sT0}
          s_addc_u32 s{iSE+1}, s{iSWS+1}, 0""")
    set_srd(iSE, 8192)
    P(f"""v_lshrrev_b32 v{T+17}, 4, v{VLANE}
          v_bfe_u32 v{T+20}, v{VLANE}, 2, 2
          v_lshlrev_b32 v{PK_TRB}, 7, v{T+20}
          v_lshl_add_u32 v{PK_TRB}, v{T+17}, 12, v{PK_TRB}
          v_lshl_add_u32 v{PK_TRB}, v{T+21}, 3, v{PK_TRB}
          v_bfe_u32 v{PK_SSW}, v{VLANE}, 3, 1
          v_lshl_add_u32 v{PK_SSW}, v{T+22}, 1, v{PK_SSW}
          v_lshlrev_b32 v{PK_SSW}, 5, v{PK_SSW}""")
    P.emit(set_ap("P", sT0))
    seg = T + 23
    P(f"""s_mul_i32 {sT0}, {sW}, 5120
          s_add_u32 {sT0}, {sT0}, {HT}
          v_mul_u32_u24 v{AHW}, 80, v{VC4}
          v_lshl_add_u32 v{AHW}, v{hh}, 5, v{AHW}
          v_add_u32 v{AHW}, {sT0}, v{AHW}
          v_lshl_add_u32 v{AHR}, v{hh}, 3, v{T+20}
          v_mul_u32_u24 v{AHR}, 80, v{AHR}
          v_and_b32 v{T+23}, 1, v{VLANE}
          v_lshl_add_u32 v{AHR}, v{T+23}, 5, v{AHR}
          v_lshl_add_u32 v{AHR}, v{T+22}, 4, v{AHR}
          v_bfe_u32 v{T+23}, v{VLANE}, 1, 1
          v_lshl_add_u32 v{AHR}, v{T+23}, 3, v{AHR}
          v_add_u32 v{AHR}, {sT0}, v{AHR}
          v_lshl_add_u32 v{ARPR}, v{hh}, 2, v{T+20}
          v_lshlrev_b32 v{ARPR}, 6, v{ARPR}
          v_lshl_add_u32 v{ARPR}, v{T+22}, 5, v{ARPR}
          v_lshl_add_u32 v{ARPR}, v{T+21}, 3, v{ARPR}
          v_add_u32 v{ARPR}, {sT0}, v{ARPR}
          v_add_u32 v{RPT}, {sT0}, v{VL16}
          s_lshl_b32 {sT0}, {sW}, 1
          v_add_u32 v{seg}, {sT0}, v{hh}
          v_lshlrev_b32 v{AEXR}, 8, v{seg}
          v_lshl_add_u32 v{AEXR}, v{VC4}, 3, v{AEXR}
          v_add_u32 v{AEXR}, {EXZ}, v{AEXR}
          v_add_u32 v{AEXW}, 1792, v{AEXR}
          s_sub_u32 {sT0}, 15, {sM}
          s_lshl_b32 {sT0}, {sT0}, 9
          v_lshlrev_b32 v{VEW}, 4, v{VC4}
          v_add_u32 v{VEW}, {sT0}, v{VEW}
          v_cmp_eq_u32 vcc, 7, v{seg}
          v_lshlrev_b32 v{T+25}, 9, v{hh}
          v_sub_u32 v{VER}, v{VEW}, v{T+25}
          s_lshl_b32 {sT0}, {sW}, 11
          s_sub_u32 {sT0}, {14*512}, {sT0}
          v_add_u32 v{VER}, {sT0}, v{VER}
          v_cndmask_b32 v{VEW}, v{T+24}, v{VEW}, vcc""")
    tau = T + 25
    P(f"""v_bfe_u32 v{tau}, v{VLANE}, 2, 1
          v_lshlrev_b32 v{tau}, 4, v{tau}
          v_lshl_add_u32 v{tau}, v{T+14}, 2, v{tau}
          v_add_u32 v{tau}, v{tau}, v{T+21}
          s_lshr_b32 {sT0}, {sXB}, 7
          s_lshl_b32 {sT1}, {sJ}, 12
          s_add_u32 {sT0}, {sT0}, {sT1}
          s_add_u32 {sT0}, {sT0}, {ST_OFF}
          s_cmp_eq_u32 {sJ4}, 0
          s_cselect_b32 {sT0}, {sT0}, {OOB}
          v_lshrrev_b32 v{VST}, 2, v{row}
          v_lshl_add_u32 v{VST}, v{T+14}, 3, v{VST}
          v_add_u32 v{VST}, {sT0}, v{VST}
          s_lshl_b32 {sT0}, {sW}, 7
          s_add_u32 {sT0}, {sT0}, {RS}
          v_lshlrev_b32 v{PR}, 2, v{tau}
          v_add_u32 v{PR}, {sT0}, v{PR}
          v_lshlrev_b32 v{ARS}, 6, v{hh}
          v_add_u32 v{ARS}, {sT0}, v{ARS}
          s_lshl_b32 {sT0}, {sW}, 2
          v_lshlrev_b32 v{ACSB_R}, 4, v{VC4}
          v_add_u32 v{ACSB_R}, {CSB}, v{ACSB_R}
          v_add_u32 v{ACSB_W}, {sT0}, v{ACSB_R}
          v_lshlrev_b32 v{ACSG_W}, 2, v{VC4}
          v_add_u32 v{ACSG_W}, {CSG}, v{ACSG_W}""")
    a_, b_, t0, t1 = T + 26, T + 27, T + 1, T + 2
    P(f"""v_lshlrev_b32 v{PLRE}, 16, v{PLRE}
          v_lshlrev_b32 v{PLIM}, 16, v{PLIM}
          v_lshlrev_b32 v{PLDT}, 16, v{PLDT}
          v_mul_f32 v{PLDT}, {sL2E}, v{PLDT}
          v_exp_f32 v{PLDT}, v{PLDT}
          v_cvt_f32_u32 v{T+3}, v{seg}""")
    P.emit(bfr(PLDT, PLDT))
    P(f"""v_mul_f32 v{a_}, v{PLDT}, v{PLRE}
          v_mul_f32 v{b_}, v{PLDT}, v{PLIM}
          v_mul_f32 v{a_}, {sL2E}, v{a_}
          v_mul_f32 v{b_}, {sI2P}, v{b_}
          v_mul_f32 v{T+3}, {hex(f2u(16.0))}, v{T+3}""")
    cpow(None, L1R, L1I, a_, b_, t0, t1)
    cpow(hex(f2u(16.0)), L16R, L16I, a_, b_, t0, t1)
    cpow(hex(f2u(128.0)), L128R, L128I, a_, b_, t0, t1)
    cpow(hex(f2u(256.0)), L256R, L256I, a_, b_, t0, t1)
    cpow(f"v{T+3}", LSR, LSI, a_, b_, t0, t1)
    P(f"""v_mul_f32 v{t1}, v{PLRE}, v{PLRE}
          v_fma_f32 v{t1}, v{PLIM}, v{PLIM}, v{t1}
          v_rcp_f32 v{t1}, v{t1}
          v_add_f32 v{t0}, -1.0, v{L1R}
          v_mul_f32 v{KR}, v{t0}, v{PLRE}
          v_fma_f32 v{KR}, v{L1I}, v{PLIM}, v{KR}
          v_mul_f32 v{KI}, v{L1I}, v{PLRE}
          v_fma_f32 v{KI}, -v{t0}, v{PLIM}, v{KI}
          v_add_f32 v{t1}, v{t1}, v{t1}
          v_mul_f32 v{KR}, v{KR}, v{t1}
          v_mul_f32 v{KI}, v{KI}, v{t1}
          v_mov_b32 v{VNON}, {sNON}""")
    if OPT.get('p2early', 1):
        p2scal()
    mark1 = len(P.l)
    P(f"""s_lshl_b32 {sT3}, {sM}, 2
          s_add_u32 {sT3}, {sT3}, {sW}
          s_mul_i32 {sT2}, {sT3}, 176
          s_lshr_b32 {sT0}, {sJ}, 2
          s_mul_i32 {sT0}, {sT0}, 44
          s_add_u32 {sT2}, {sT2}, {sT0}
          s_add_u32 {sT2}, {sT2}, {sJ4}
          s_lshl_b32 {sT2}, {sT2}, 10
          s_mul_i32 {sT0}, {sJ4}, 3072
          s_add_u32 {sHB}, {sT2}, {sT0}
          s_add_u32 {sHB}, {sHB}, 16384""")
    for t in range(4):
        P(f"s_add_u32 {sT0}, {sW}, {t}\ns_and_b32 {sT0}, {sT0}, 3\ns_lshl_b32 {sT0}, {sT0}, 12\ns_add_u32 {sHT[t]}, {sT2}, {sT0}")
    P(f"s_add_u32 {sT2}, {sT2}, 32768")
    for t in range(3):
        tab = sum((((w + t) % 3) << (4 * w)) for w in range(4))
        P(f"""s_lshl_b32 {sT0}, {sW}, 2
              s_lshr_b32 {sT0}, {tab}, {sT0}
              s_and_b32 {TB[t]}, {sT0}, 3
              s_lshl_b32 {sT0}, {TB[t]}, 12
              s_add_u32 {sHT[4+t]}, {sT2}, {sT0}""")

    if not OPT.get('p2early', 1):
        p2scal()
    nlate = len(P.l) - mark1
    rest = P.l[mark0:]
    del P.l[mark0:]
    groups, cur = [], []
    for k, ins in enumerate(rest):
        cur.append(ins)
        live = False
        for r in ("scc", "s100", "s101"):
            for nx in rest[k + 1:k + 8]:
                if r in nx.rd: live = True; break
                if r in nx.wr: break
        if not live:
            groups.append(cur); cur = []
    assert not cur
    k = 0
    while k < nlate:
        g = groups.pop(); LATE.insert(0, g); k += len(g)
    assert k == nlate
    n = 0
    while groups and n < NPRE:
        g = groups.pop(0); P.l.extend(g); n += len(g)
    DEFER.extend(groups)
    stamp(2)
    P('Lmark0:')


def dma_B(n):
    base = (SCR + (n >> 1) * 16384 if n < 4 else ((n - 4) >> 1) * 16384) + (n & 1) * 2048
    return [f"s_add_u32 m0, {sWL}, {base}", f"s_add_u32 {sSO}, {sBB}, {KB[n]}",
            (f"buffer_load_dwordx4 v{VB}, {SBR}, {sSO} offen lds", f"B{n}"),
            f"s_add_u32 m0, {sWL}, {base+1024}",
            (f"buffer_load_dwordx4 v{VB}, {SBI}, {sSO} offen lds", f"B{n}")]

def dma_X(n):
    return [f"s_add_u32 m0, {sWL}, {n*16384}", f"s_add_u32 {sSO}, {sXB}, {KB[n]}"] + \
           [(f"buffer_load_dwordx4 v{VX[sb]}, {SX}, {sSO} offen offset:{sb*1024} lds", f"X{n}") for sb in range(4)]

def dma_pass(ps, b):
    vp = VP if ps == "P" else VX
    r = [f"s_add_u32 m0, {sWL}, {((b+2)%8)*16384}", f"s_mul_i32 {sSO}, {KB[b]}, 1792", f"s_add_u32 {sSO}, {sSO}, {sPB}"]
    return r + [(f"buffer_load_dwordx4 v{vp[ks]}, {SW}, {sSO} offen offset:{ks*1024} lds", f"{ps}{b}") for ks in range(4)]

def set_ap(ps, tmp):
    r = []
    for t in range(4 if ps == "P" else 3):
        if ps == "P":
            r += [f"s_add_u32 {tmp}, {sW}, {t}", f"s_and_b32 {tmp}, {tmp}, 3", f"s_lshl_b32 {tmp}, {tmp}, 5"]
        else:
            r += [f"s_lshl_b32 {tmp}, {TB[t]}, 5"]
        r += [f"v_xor_b32 v{AP[t]}, {tmp}, v{PK_SSW}", f"v_add_u32 v{AP[t]}, v{PK_TRB}, v{AP[t]}", f"v_add_u32 v{APH[t]}, 0x10000, v{AP[t]}"]
    return r

ringpos = [0]
def ring():
    r = ARING + 4 * (ringpos[0] % NRING)
    ringpos[0] += 1
    return r

def pop_vm(q):
    n = 0
    while q:
        x = q.pop(0)
        P.emit([x]); n += 1
        if isvm(x):
            break
    return n


REPACK = [(f"buffer_store_dwordx4 {vr(RPW+4*g,4)}, v{VRS+g}, {SWS}, 0 offen sc1", "pub1") for g in range(2)]

def landing():
    XL = OPT["xlook"]
    npass = [1]
    XT = [ACC_G[1], ACC_G[0]]
    BF = [128, 168]
    def reads(n):
        off = (n & 3) * 16384 + (0x10000 if False else 0)
        boff = ((n & 3) >> 1) * 16384 + (n & 1) * 2048
        r = [(f"ds_read_b128 {vr(XT[n&1]+4*s_,4)}, v{AX[s_]} offset:{off}", f"r{n}") for s_ in range(4)]
        r += [(f"ds_read_b128 {ar(BF[n&1]+8*s_+4*mat,4)}, v{AB[s_]} offset:{boff+mat*1024}", f"r{n}") for s_ in range(4) for mat in range(2)]
        r += [(f"ds_read_b128 {ar(BF[n&1]+32+4*mat,4)}, v{ABC} offset:{boff+mat*1024}", f"r{n}") for mat in range(2)]
        return r
    def sync(n):
        if n == 4:
            for s_ in range(4):
                P(f"v_add_u32 v{AX[s_]}, 0x10000, v{AX[s_]}\nv_add_u32 v{AB[s_]}, {(-SCR) & 0xffffffff}, v{AB[s_]}")
            P(f"v_add_u32 v{ABC}, {(-SCR) & 0xffffffff}, v{ABC}")
        P(f"@waitvm X{n},B{n}\ns_barrier")
        if OPT.get("fine"): stamp(48 + n)
    def vmq(n):
        nn = n + 1 + XL
        q = []
        if nn < 8:
            q += dma_X(nn) + dma_B(nn)
        else:
            for _ in range(OPT.get("pper", 1)):
                if npass[0] < min(6, n - 1):
                    q += dma_pass("P", npass[0]); npass[0] += 1
        if n < len(ORDER[2]):
            for g in ORDER[2][n]: q += GRP[g]()
        if n == OPT.get("rpn", 7):
            q += REPACK
        return q
    sync(0)
    P.emit(reads(0))
    P.emit(dma_X(XL) + dma_B(XL))
    for n in range(8):
        P(f"@waitlg r{n}")
        q = vmq(n)
        for kk in range(16):
            P(f"v_dot2_f32_bf16 v{S1}, v{XT[n&1]+kk}, {sONE}, v{S1}\nv_dot2_f32_bf16 v{S2}, v{XT[n&1]+kk}, v{XT[n&1]+kk}, v{S2}")
            if kk in (1, 9): pop_vm(q)
        rd = []
        if n < 7:
            sync(n + 1)
            rd = reads(n + 1)
        if n == OPT.get('p0w', 5):
            rd += [f"v_add_u32 v{T}, {sWL}, v{VL16}"] + [(f"ds_write_b128 v{T}, {ar(P0R+4*ks,4)} offset:{2*16384+ks*1024}", f"r{n+1}") for ks in range(4)]
        if n == OPT.get('rpn', 7) - 1:
            rd += [f"ds_write_b128 v{RPT}, {vr(RPW+4*g,4)} offset:{g*1024}" for g in range(2)]
            rd += [(f"ds_read_b64_tr_b16 {vr(RPW+4*g+2*a,2)}, v{ARPR} offset:{g*1024+a*512}", f"r{n+1}") for g in range(2) for a in range(2)]
        for k in range(8):
            s_, mat = k >> 1, k & 1
            acc = vr(ACC_S + 16 * mat, 16)
            P(f"v_mfma_f32_32x32x16_bf16 {acc}, {vr(XT[n&1]+4*s_,4)}, {ar(BF[n&1]+8*s_+4*mat,4)}, {'0' if (n == 0 and s_ == 0) else acc}")
            nr = 3 if (len(rd) > 2 * (8 - k) or k < OPT.get('lquiet', 0)) else 2
            P.emit(rd[:nr]); rd = rd[nr:]
            LQ = OPT.get("lquiet", 0) if n < 7 else 0
            if k >= LQ:
                per = 16 // (8 - LQ)
                for z in range(per * (k - LQ), per * (k - LQ + 1)):
                    P(f"v_accvgpr_write_b32 a{AXF+16*n+z}, v{XT[n&1]+z}")
            nb = pop_vm(q) if k >= 2 or len(q) > 12 else 0
            pop_defer((OPT.get('dfill', 2) if k >= OPT.get('lquiet', 0) else 0) - nb)
        for mat in range(2):
            d = vr(CSBR + 4 * mat, 4)
            P(f"v_mfma_f32_16x16x32_bf16 {d}, {vr(SEL,4)}, {ar(BF[n&1]+32+4*mat,4)}, {'0' if n == 0 else d}")
        P.emit(rd + q)
    print('deferred left after landing:', sum(len(g) for g in DEFER))
    pop_defer(9999)
    P('Lmark1:')
    stamp(3)
    return npass[0]


def split_cs(src, ce, t0, t1):
    return bfr(t0, src) + [f"v_sub_f32 v{t1}, v{src}, v{t0}", f"v_cvt_pk_bf16_f32 v{ce}, v{t0}, v{t1}"]


def passes(npass):
    NT = {"P": 4, "Q": 3}
    GI = lambda ps, t: t if ps == "P" else 4 + t
    def order(nt, nto):
        o = [(t, b, ks) for b in range(8 - nto) for ks in range(4) for t in range(nt)]
        return o + [(t, b, ks) for t in range(nt) for b in range(8 - nto, 8) for ks in range(4)]
    frs = [("P",) + x for x in order(4, OPT["to1"])] + [("Q",) + x for x in order(3, OPT["to2"])]
    last_use, tile_last = {}, {}
    for k, (ps, t, b, ks) in enumerate(frs):
        last_use[(ps, b)] = k
        tile_last[(ps, t)] = k
    NF = len(frs)
    last1 = 127
    st = dict(done=-1, bars=0, marks={}, gap=0, lastvm=-9, lastdma=-9, quiet=-1)
    released = {"free": True}
    pending = [("P", b) for b in range(npass, 8)] + [("Q", b) for b in range(8)]
    prev_occ = {}
    for b in range(8):
        prev_occ[("P", b)] = "free" if b < 6 else "S"
        prev_occ[("Q", b)] = ("P", b)
    dma_q, opened = [], set()
    early_w = [w_load(GSTEP[g], ntl) for g in sorted(range(12), key=lambda g: ((g & 3) if OPT.get('lead', 0) else 0, g)) for ntl in range(2)]
    early_c = list(range(8))
    late_w = [((2 * (g - 12) + ntl) >> 2, w_load(GSTEP[g], ntl)) for g in range(12, 28) for ntl in range(2)]
    alt = [False]
    h_done = [0]

    def barrier(tagwait=None):
        if tagwait:
            P(f"@waitvm {tagwait}")
        P("@waitlg xch")
        if OPT.get("fine"): stamp(16 + st["bars"])
        P("s_barrier")
        st["quiet"] = st["gap"] + OPT.get("quiet", 0)
        st["bars"] += 1
        released["S"] = True
        for key, lu in last_use.items():
            if lu <= st["done"]:
                released[key] = True

    gate_done = lambda k: ("gate", lambda: st["done"] >= k)
    gate_bar = lambda name: ("gate", lambda: name in st["marks"] and st["bars"] > st["marks"][name])
    mark = lambda name: ("mark", name)
    gate_mark = lambda name: ("gate", lambda: name in st["marks"])
    call = lambda f: ("call", f)

    P(f"v_mov_b32 v{T+8}, 0\nv_mov_b32 v{T+9}, 0\ns_lshl_b32 {sT2}, {sW}, 9\ns_add_u32 {sT2}, {sT2}, {EXZ}")
    P(f"v_lshrrev_b32 v{T+10}, 1, v{VL16}\nv_add_u32 v{T+10}, {sT2}, v{T+10}")
    P(f"ds_write_b64 v{T+10}, {vr(T+8,2)}", tag="xch")
    u0, u1, mean, mb, den = T, T + 1, T + 2, T + 4, T + 5
    P(f"v_mov_b32 v{u0}, v{S1}\nv_mov_b32 v{u1}, v{S2}")
    P(f"ds_write_b32 v{ACSB_W}, v{CSBR}\nds_write_b32 v{ACSB_W}, v{CSBI} offset:512", tag="xch")

    e1 = [f"ds_read_b128 {vr(T+12,4)}, v{ACSB_R}", f"ds_read_b128 {vr(T+16,4)}, v{ACSB_R} offset:512",
          f"v_permlane32_swap_b32 v{S1}, v{u0}", f"v_permlane32_swap_b32 v{S2}, v{u1}",
          f"v_add_f32 v{S1}, v{S1}, v{u0}", f"v_add_f32 v{S2}, v{S2}, v{u1}",
          f"v_mul_f32 v{mean}, {hex(f2u(1/512))}, v{S1}", f"v_mul_f32 v{S2}, {hex(f2u(1/512))}, v{S2}",
          f"v_fma_f32 v{S2}, -v{mean}, v{mean}, v{S2}", f"v_max_f32 v{S2}, 0, v{S2}"]
    e1 += bfr(S2, S2) + [f"v_add_f32 v{S2}, {hex(f2u(1e-5))}, v{S2}"] + bfr(S2, S2) + [f"v_sqrt_f32 v{S2}, v{S2}"]
    e1 += bfr(mb, mean) + bfr(den, S2)
    e1 += [f"v_rcp_f32 v{S1}, v{den}", f"v_xor_b32 v{u0}, 0x80000000, v{mb}", f"v_lshrrev_b32 v{u1}, 16, v{u0}",
           (f"ds_write_b32 v{PR}, v{S1}", "rsw"), f"v_or_b32 v{u0}, v{u0}, v{u1}",
           ("atomic", [f"v_cmp_gt_u32 vcc, 32, v{VLANE}", f"v_mov_b32 v{SIG}, v{den}", f"v_mul_f32 v{C1}, {sL2E}, v{S1}",
                       f"v_cndmask_b32 v{XE}, 0, v{u0}, vcc"])]
    for mat, b in ((0, T + 12), (1, T + 16)):
        e1 += [f"v_add_f32 v{b}, v{b}, v{b+1}", f"v_add_f32 v{b+2}, v{b+2}, v{b+3}", f"v_add_f32 v{b}, v{b}, v{b+2}"]
        e1 += split_cs(b, CE0 if mat == 0 else CE1, b + 1, b + 2)
    R16 = T + 6
    e1 += ["@waitlg rsw"] + [f"ds_read_b128 {vr(R16+4*k,4)}, v{ARS} offset:{16*k}" for k in range(4)]
    e1 += [f"v_mfma_f32_32x32x16_bf16 {vr(ACC_S,16)}, {vr(XE,4)}, {vr(CE0,4)}, {vr(ACC_S,16)}",
           f"v_mfma_f32_32x32x16_bf16 {vr(ACC_S+16,16)}, {vr(XE,4)}, {vr(CE1,4)}, {vr(ACC_S+16,16)}",
           f"v_sub_f32 v{C1}, 0, v{C1}",
           (f"buffer_store_dwordx2 {vr(mb,2)}, v{VST}, {SWS}, 0 offen sc1", "pubA")]
    e1 += [f"v_add_u32 v{AX[s_]}, 0xffff0000, v{AX[s_]}" for s_ in range(4)]
    e1 += [f"v_mov_b32 v{VX[0]}, v{PK_VQ}"] + [f"v_add_u32 v{VX[k]}, {k*56320}, v{PK_VQ}" for k in range(1, 4)] + [mark("vq")]
    for q in range(16):
        e1 += [f"v_mul_f32 v{ACC_S+q}, v{ACC_S+q}, v{R16+q}", f"v_mul_f32 v{ACC_S+16+q}, v{ACC_S+16+q}, v{R16+q}"]
    ea, eb = (T + 0, T + 1), (T + 2, T + 3)
    cur = (ACC_S, ACC_S + 16)
    for q in range(1, 16):
        nxt = ea if q % 2 else eb
        e1 += cstep(nxt, (L1R, L1I), cur, (ACC_S + q, ACC_S + 16 + q))
        cur = nxt
    assert cur == ea
    e1 += [(f"ds_write_b64 v{AEXW}, {vr(ea[0],2)}", "xch"), mark("ex")]
    e1 += [("delay", 1), call(barrier)] if OPT["exbar"] else [gate_bar("ex")]
    e1 += [f"ds_read_b64 {vr(T+8+2*k,2)}, v{AEXR} offset:{256*k}" for k in range(7)] + [("delay", 2)]
    cur = (T + 8, T + 9)
    for k in range(1, 7):
        u = (T + 8 + 2 * k, T + 9 + 2 * k)
        nx = (PR, PI) if k == 6 else u
        e1 += cstep(nx, (L16R, L16I), cur, u)
        cur = nx
    e1 += [f"v_mov_b32 v{T+5}, v{VNON}", f"v_mov_b32 v{T+7}, v{VNON}"] + cstep((T + 4, T + 6), (L16R, L16I), (PR, PI), ea)
    e1 += [(f"buffer_store_dwordx4 {vr(T+4,4)}, v{VEW}, {SE}, 0 offen sc1", "pubE"), call(lambda: stamp(4)), ("delay", 1), mark("e1")]

    cl = [gate_mark("epiP3"), ("delay", OPT.get("cld", 16)), "@waitvm pubA", mark("clr"), gate_bar("clr"), flag_store(1), call(lambda: stamp(5)), mark("flA")]
    lt = [("atomic", [i.text for i in g]) for g in LATE] + [mark("late")]
    ku = [gate_mark("e1"), gate_mark("late"), f"s_load_dwordx2 s[{pDSK}:{pDSK+1}], s[0:1], 64"]
    for q in list(range(16)) + [-1]:
        re_, im_ = (ACC_S + q, ACC_S + 16 + q) if q >= 0 else (PR, PI)
        t0, t1 = T + 4 + 2 * (q & 1), T + 5 + 2 * (q & 1)
        ku += [f"v_mul_f32 v{t0}, v{KI}, v{im_}", f"v_mul_f32 v{t1}, v{KI}, v{re_}",
               f"v_fma_f32 v{re_}, v{KR}, v{re_}, -v{t0}", f"v_fma_f32 v{im_}, v{KR}, v{im_}, v{t1}"]
    ku += [f"v_lshrrev_b32 v{T+4}, 3, v{VLANE}", f"v_and_b32 v{T+5}, 7, v{VLANE}", f"v_lshrrev_b32 v{T+6}, 1, v{T+4}",
           f"v_xor_b32 v{T+6}, v{T+5}, v{T+6}", f"v_lshlrev_b32 v{T+6}, 4, v{T+6}",
           f"v_lshl_add_u32 v{VC[0]}, v{T+4}, 10, v{T+6}", f"v_xor_b32 v{VC[1]}, 64, v{VC[0]}",
           f"v_add_u32 v{VC[2]}, {2*7168}, v{VC[0]}", f"v_add_u32 v{VC[3]}, {3*7168}, v{VC[1]}", f"v_add_u32 v{VC[1]}, 7168, v{VC[1]}"]
    ku += [("atomic", [f"s_and_b32 {sT2}, s59, 1", f"s_lshl_b32 {sT2}, {sT2}, 5", f"s_lshr_b32 {sT3}, {sMU}, 6", f"s_or_b32 {sT2}, {sT2}, {sT3}"] +
                      [f"v_xor_b32 v{AX[s_]}, {sT2}, v{AX[s_]}" for s_ in range(4)])]
    ku += [f"v_add_u32 v{AXH[s_]}, 0x10000, v{AX[s_]}" for s_ in range(4)]
    ku += [("atomic", [f"s_lshl_b32 {sT2}, {TB[0]}, 7", f"v_add_u32 v{ACSB_W}, {sT2}, v{ACSG_W}", f"s_lshl_b32 {sT2}, {sW}, 7", f"v_add_u32 v{ACSG_W}, {sT2}, v{ACSG_W}"]),
           ("atomic", [f"s_lshl_b32 {sT2}, {sW}, 2", f"s_add_u32 {sT2}, {sT2}, {sM}", f"v_lshrrev_b32 v{VEW}, 5, v{VLANE}",
                       f"v_add_u32 v{VEW}, {sT2}, v{VEW}"]),
           f"v_add_u32 v{VEW}, -12, v{VEW}", f"v_max_i32 v{VEW}, 0, v{VEW}", f"v_min_i32 v{VEW}, 5, v{VEW}", f"v_and_b32 v{VEW}, 6, v{VEW}",
           f"v_mul_lo_u32 v{VEW}, v{VEW}, {sNON}",
           f"v_mul_f32 v{L16R}, v{L256I}, v{L256I}", f"v_mul_f32 v{L16I}, v{L256R}, v{L256I}",
           f"v_fma_f32 v{L16R}, v{L256R}, v{L256R}, -v{L16R}", f"v_add_f32 v{L16I}, v{L16I}, v{L16I}",
           ("atomic", [f"s_lshl_b32 {sT2}, {sW}, 8", f"s_add_u32 {sT2}, {sT2}, {EXZ}", f"v_lshlrev_b32 v{VST}, 3, v{VC4}", f"v_add_u32 v{PRW}, {sT2}, v{VST}"]),
           f"v_add_u32 v{VST}, {EXZ}, v{VST}", mark("vc")]
    vo = [gate_mark("e1")] + ([] if OPT.get('p2early', 1) else [gate_mark("late")])
    vo += [("atomic", [f"s_lshl_b32 {sXB}, s59, 10", f"v_add_u32 v{VO4[0]}, {sXB}, v{VL16}"])]
    vo += [f"s_sub_u32 {sWQ[k]}, {sWA[k][0]}, {sMU}" for k in range(2)]
    vo += [f"v_xor_b32 v{VO4[k]}, {k*1024}, v{VO4[0]}" for k in range(1, 4)]
    vo += [f"v_and_b32 v{T+20}, 3, v{VLANE}", f"v_lshlrev_b32 v{T+20}, 2, v{T+20}", f"v_bfe_u32 v{T+21}, v{VLANE}, 2, 1",
           f"v_lshl_add_u32 v{T+21}, v{T+21}, 9, v{T+20}", mark("vo")]
    fw = [gate_done(OPT.get("fw", 8)), "@waitvm pub1", mark("p1"), gate_bar("p1"), flag_store(0)]
    ld, chk = poll(T + 22, T + 21, sPW)
    pl = [gate_mark("vo"), gate_done(OPT["pa"]), ld, ("delay", OPT["pad"]), ("atomic", chk), call(lambda: stamp(6)), mark("pollW")]
    lda = (f"buffer_load_dword v{T+22}, v{T+21}, {SWS}, {sXB} offen sc1", "poll")
    eva = [f"v_cmp_ne_u32 vcc, {sBB}, v{T+22}"]
    pl += [gate_done(OPT.get("pe", 150)), f"v_lshrrev_b32 v{T+21}, 2, v{VLANE}", f"v_lshl_add_u32 v{T+21}, v{T+21}, 7, v{T+20}",
           ("atomic", [f"s_lshl_b32 {sXB}, {sW}, 11", f"s_add_u32 {sXB}, {sXB}, {FL_OFF}", "s_cmp_eq_u32 s2, 0",
                       f"s_cselect_b32 {sXB}, {sXB}, {OOB}", f"s_cselect_b32 {sBB}, {sNON}, 0", f"s_cselect_b32 {sROT}, {EP_OFF - FL_OFF}, {OOB}"]),
           lda, ("delay", OPT["pad"]), ("atomic", eva + retry_check(eva, [lda], 8)), mark("epok")]

    ce_flip = [0]
    def glu_epi(ps, t):
        gi = GI(ps, t)
        acc = ACC_G[gi]
        pso = 0 if ps == "P" else 512
        r = [gate_done(tile_last[(ps, t)])]
        ce = CE0 if ce_flip[0] % 2 == 0 else CE1
        ce_flip[0] += 1
        tt = T + 24
        acs = ACSG_W if ps == "P" else ACSB_W
        pso = 0 if ps == "P" else 1024
        if t == 0:
            r += [("delay", 2), (f"ds_write_b32 v{acs}, v{CSGA} offset:{pso}", "xch"),
                  (f"ds_write_b32 v{acs}, v{CSGA} offset:{pso + 128*NT[ps]}", "xch"), mark(f"csg{ps}")]
            r += split_cs(CSGA, ce, tt + 1, tt + 2) + [mark(f"csgfree{ps}")]
        else:
            pre = ([call(barrier)] if t == 1 and OPT.get("csbar", 1) else []) + [gate_bar(f"csg{ps}"),
                   f"ds_read_b32 v{tt+3}, v{acs} offset:{pso + 128*t}", ("delay", 2)] + split_cs(tt + 3, ce, tt + 1, tt + 2)
            r = pre + r
        r += [f"v_mfma_f32_32x32x16_bf16 {vr(acc,16)}, {vr(ce,4)}, {vr(XE,4)}, {vr(acc,16)}", ("delay", 2)]
        for hf in range(2):
            es = range(4 * hf, 4 * hf + 4)
            r += [f"v_mul_f32 v{acc+e}, v{C1}, v{acc+e}" for e in es]
            r += [f"v_exp_f32 v{acc+e}, v{acc+e}" for e in es]
            r += [f"v_fma_f32 v{acc+e}, v{acc+e}, v{SIG}, v{SIG}" for e in es]
            r += [f"v_rcp_f32 v{acc+e}, v{acc+e}" for e in es]
            r += [f"v_mul_f32 v{acc+8+e}, v{acc+8+e}, v{acc+e}" for e in es]
        r += [f"v_cvt_pk_bf16_f32 v{acc+k}, v{acc+8+2*k}, v{acc+9+2*k}" for k in range(4)]
        r += [(f"buffer_store_dwordx4 {vr(acc,4)}, v{VL16}, {SWS}, {sHT[gi]} offen sc1", "pubA" if ps == "P" else "pubB"), mark(f"epi{ps}{t}")]
        return r
    epi = [gate_mark("vc")]
    for t in range(4):
        epi += glu_epi("P", t)
    epiq = [gate_mark("epiP3")]
    for t in range(3):
        epiq += glu_epi("Q", t)

    EL = ACC_G[0]
    eloads = [(f"buffer_load_dwordx4 {vr(EL+4*i,4)}, v{VER}, {SE}, 0 offen offset:{(1-i)*1024} sc1", "el") for i in range(2)]
    l1 = [gate_mark("epiP0"), gate_done(OPT["el"])] + eloads + [("delay", OPT["eld"])]
    ev = [f"v_add_u32 v{T+16}, v{EL+1}, v{EL+3}", f"v_add3_u32 v{T+16}, v{T+16}, v{EL+5}, v{EL+7}", f"v_cmp_ne_u32 vcc, v{VEW}, v{T+16}"]
    l1 += ev[:-1] + [("atomic", ev[-1:] + retry_check(ev, eloads)), call(lambda: stamp(7))]
    cur = (EL + 4, EL + 6)
    l1 += cstep(cur, (L256R, L256I), (EL, EL + 2), cur)
    sa, sb_ = (T + 16, T + 17), (T + 18, T + 19)
    l1 += [f"v_mov_b32 v{sa[0]}, v{cur[0]}", f"v_mov_b32 v{sa[1]}, v{cur[1]}", f"s_nop 0",
           f"v_permlane32_swap_b32 v{cur[0]}, v{sa[0]}", f"v_permlane32_swap_b32 v{cur[1]}, v{sa[1]}"]
    l1 += cstep(sa, (L128R, L128I), cur, sa)
    l1 += [(f"ds_write_b64 v{PRW}, {vr(sa[0],2)}", "xch"), mark("xw"), (gate_bar("xw") if not OPT.get("xbar", 0) else call(barrier))]
    l1 += [f"ds_read_b64 {vr(EL+8+2*k,2)}, v{VST} offset:{256*k}" for k in range(4)] + [("delay", 2)]
    cur = (EL + 8, EL + 9)
    for k in range(1, 4):
        u = (EL + 8 + 2 * k, EL + 9 + 2 * k)
        nx = sa if k == 3 else u
        l1 += cstep(nx, (L16R, L16I), cur, u)
        cur = nx
    l1 += [f"v_mul_f32 v{sb_[0]}, v{KI}, v{sa[1]}", f"v_mul_f32 v{sb_[1]}, v{KI}, v{sa[0]}",
           f"v_fma_f32 v{sa[0]}, v{KR}, v{sa[0]}, -v{sb_[0]}", f"v_fma_f32 v{sa[1]}, v{KR}, v{sa[1]}, v{sb_[1]}"]
    l1 += cstep((PR, PI), (LSR, LSI), sa, (PR, PI))
    cur = (PR, PI)
    for q in range(16):
        nxt = (ACC_S + q, ACC_S + 16 + q)
        l1 += cstep(nxt, (L1R, L1I), cur, nxt)
        cur = nxt
        if q % 2 == 1:
            l1 += [f"v_cvt_pk_bf16_f32 v{T+(q>>1)}, v{ACC_S+q-1}, v{ACC_S+q}",
                   f"v_cvt_pk_bf16_f32 v{T+8+(q>>1)}, -v{ACC_S+16+q-1}, -v{ACC_S+16+q}"]
    l1 += [(f"ds_write_b128 v{AHW}, {vr(T,4)}", "htw"), (f"ds_write_b128 v{AHW}, {vr(T+4,4)} offset:16", "htw"),
           (f"ds_write_b128 v{AHW}, {vr(T+8,4)} offset:{32*80}", "htw"), (f"ds_write_b128 v{AHW}, {vr(T+12,4)} offset:{32*80+16}", "htw"),
           ("delay", 2), "@waitlg htw"]
    l1 += [f"ds_read_b64_tr_b16 {vr(EL+4*u+2*a,2)}, v{AHR} offset:{(16*u+4*a)*80}" for u in range(4) for a in range(2)]
    l1 += [("delay", 2)]
    l1 += [(f"buffer_store_dwordx4 {vr(EL+4*u,4)}, v{VL16}, {SWS}, {sHB} offen offset:{u*1024} sc1", "pubB") for u in range(4)]
    l1 += [call(lambda: stamp(8)), mark("l1")]

    tasks = {0: [fw, e1, vo, pl, lt, cl, ku, epi, l1, epiq], 1: [fw, e1, vo, pl, lt, cl, ku, l1, epi, epiq], 2: [fw, e1, vo, pl, lt, cl, ku, epi, epiq, l1]}[OPT.get("prio", 0)]
    tpos = [0] * len(tasks)
    tdelay = [0] * len(tasks)

    def fill(budget, flush=False, maxn=10**9):
        progress = True
        cnt = 0
        while (budget > 0 or flush) and progress and cnt < maxn:
            progress = False
            for ti, tk in enumerate(tasks):
                while tpos[ti] < len(tk):
                    it = tk[tpos[ti]]
                    if isinstance(it, tuple) and it[0] == "gate":
                        if it[1]():
                            tpos[ti] += 1; continue
                        break
                    if isinstance(it, tuple) and it[0] == "mark":
                        st["marks"][it[1]] = st["bars"]; tpos[ti] += 1
                        if OPT.get("v"): print("  mark", it[1], "at frag", st["done"], "gap", st["gap"])
                        continue
                    if isinstance(it, tuple) and it[0] == "delay":
                        tdelay[ti] = st["gap"] + it[1]; tpos[ti] += 1; continue
                    break
                if tpos[ti] >= len(tk):
                    continue
                it = tk[tpos[ti]]
                if isinstance(it, tuple) and it[0] == "gate":
                    continue
                if tdelay[ti] > st["gap"] and not flush:
                    continue
                if st["gap"] <= st["quiet"] and not flush:
                    txt = it if isinstance(it, str) else (" ".join(it[1]) if it[0] == "atomic" else it[0] if isinstance(it[0], str) else "")
                    if any(w.startswith("v_") and not w.startswith("v_mfma") for w in txt.split()):
                        continue
                n0 = len(P.l)
                if isinstance(it, tuple) and it[0] == "call":
                    it[1]()
                elif isinstance(it, tuple) and it[0] == "atomic":
                    P.emit(it[1])
                elif isvm(it):
                    if (st["gap"] - st["lastvm"] < OPT["vgap"] or st["gap"] == st["lastdma"]) and not flush:
                        continue
                    P.emit([it]); st["lastvm"] = st["gap"]; budget -= OPT.get("vcost", 0)
                else:
                    P.emit([it])
                c = sum(i.cost for i in P.l[n0:])
                budget -= c; cnt += c
                if P.l[-1].kind == "mfma":
                    budget = OPT["budget"]; st["gap"] += 1
                tpos[ti] += 1
                progress = True
                break
        return progress if flush else budget

    OPENS = {ps: [[int(c) for c in g] for g in SOPT.get("op" + ps, d).split(".")] for ps, d in (("P", "0.1"), ("Q", "0.1"))}
    fr_ring = {}
    def issue_reads(k):
        ps, t, b, ks = frs[k]
        n = 0
        if k == last1 + 1:
            sa_ = set_ap("Q", sT1)
            P.emit(sa_); n += len(sa_)
        if (ps, b) not in opened:
            grp = [b]
            for g_ in OPENS[ps]:
                if g_[0] == b: grp = g_
            for bb in grp:
                assert (ps, bb) not in pending and not any(isinstance(x, tuple) and x[1] == f"{ps}{bb}" for x in dma_q), f"block {ps}{bb} not issued in time"
                opened.add((ps, bb))
            barrier(",".join(f"{ps}{bb}" for bb in grp))
            n += 2
        sl = (b + 2) % 8
        a = AP[t] if sl < 4 else APH[t]
        off = (sl & 3) * 16384 + ks * 1024
        r = ring()
        fr_ring[k] = r
        P(f"ds_read_b64_tr_b16 {ar(r,2)}, v{a} offset:{off}\nds_read_b64_tr_b16 {ar(r+2,2)}, v{a} offset:{off+512}", tag=f"f{k}")
        return n + 2

    LOOK = OPT["look"]
    for k in range(LOOK):
        issue_reads(k)
    seen = set()
    for k, (ps, t, b, ks) in enumerate(frs):
        acc = vr(ACC_G[GI(ps, t)], 16)
        budget = OPT["budget"] if "e1" in st["marks"] else OPT["ebudget"]
        if k % 2 == 0:
            P(f"@waitlg f{k},f{min(k+1, NF-1)}")
            budget -= 1
        if ps == "Q" and (ps, t) not in seen:
            assert all(m in st["marks"] for m in ("e1", "csgfreeP")), st["marks"]
        P(f"v_mfma_f32_32x32x16_bf16 {acc}, {ar(fr_ring[k],4)}, {ar(AXF+16*b+4*ks,4)}, {acc if (ps, t) in seen else '0'}")
        pend_cs = None
        if t == 0:
            d = vr(CSGA, 4)
            pend_cs = f"v_mfma_f32_16x16x32_bf16 {d}, {vr(SEL,4)}, {ar(fr_ring[k],4)}, {d if (ps, t) in seen else '0'}"
        else:
            st["done"] = k
        seen.add((ps, t))
        if not dma_q:
            if pending and released.get(prev_occ[pending[0]]) and (pending[0][0] == "P" or "vq" in st["marks"]):
                dma_q.extend(dma_pass(*pending.pop(0)))
            elif early_w and "pollW" in st["marks"] and not OPT.get("now"):
                dma_q.extend(early_w.pop(0))
            elif late_w and not early_w and OPT.get("latew", 1) and st["done"] >= last_use[("Q", late_w[0][0])] and not (alt[0] and early_c and not pending and released.get(("Q", early_c[0]))):
                dma_q.extend(late_w.pop(0)[1]); alt[0] = OPT.get("alt", 1) and len(late_w) % 4 == 0
            elif not pending and early_c and not OPT.get("noc") and "vc" in st["marks"] and released.get(("Q", early_c[0])):
                dma_q.extend(c_dma(early_c.pop(0))); alt[0] = False
        if dma_q and st["gap"] - st["lastdma"] >= OPT["dmagap"]:
            budget -= pop_vm(dma_q) + OPT.get("vcost", 0); st["lastdma"] = st["gap"]
        if k + LOOK < NF:
            budget -= issue_reads(k + LOOK)
        budget = fill(budget)
        st["gap"] += 1
        if pend_cs:
            P(pend_cs)
            st["done"] = k
            fill(2 + min(budget, 0))
    assert not pending
    P('Lmark2:')
    stamp(9)
    print("left after spine: early_w", len(early_w), "late_w", len(late_w), "early_c", len(early_c), "h", h_done[0], "tasks", [len(tasks[i]) - tpos[i] for i in range(len(tasks))])
    barrier()
    stream = p2_stream(early_w + [x[1] for x in late_w], early_c, h_done[0])
    if OPT.get("lead", 0):
        ws_ = sorted([it for it in stream if it[1] == "w"], key=lambda it: (int(it[2][-1][1][1:]) & 3, int(it[2][-1][1][1:])))
        lead = [it for it in ws_ if int(it[2][-1][1][1:]) & 3 == 0]
        stream = lead + [it for it in stream if it[1] == "c"] + [it for it in ws_ if it not in lead] + [it for it in stream if it[1] not in "cw"]
    while True:
        prog = fill(0, flush=True, maxn=OPT["tailgap"])
        if all(tpos[i] >= len(tasks[i]) for i in range(len(tasks))):
            break
        assert prog, [(tpos[i], len(tasks[i])) for i in range(len(tasks))]
        if not dma_q:
            for i, it in enumerate(stream):
                if it[1] in "cw":
                    dma_q.extend(stream.pop(i)[2]); break
        pop_vm(dma_q)
    P.emit(dma_q)
    stamp(10)
    return stream


def p2_stream(early_w, early_c, h_done):
    left_w = {x[-1][0] for x in early_w}
    items = []
    cneed = {}
    for s, (jj, u) in enumerate(STEPS):
        if u < 4:
            for ntl in range(2):
                cneed.setdefault(CREG.index((jj >> 1, u >> 1, ntl)), s)
    for s, (jj, u) in enumerate(STEPS):
        for r in early_c:
            if max(cneed[r] - 8, 0) == s:
                items.append((s, "c", c_dma(r)))
        if u >= 4:
            for ntl in range(2):
                g = w_load(s, ntl)
                if g[-1][0] in left_w:
                    items.append((s, "w", g))
        for tl in range(2):
            if not is_lead(s):
                items.append((s, "h", h_load(s, tl)))
        for sl in HLEAD:
            if is_lead(sl) and s == {8: 0, 16: 16, 24: 17, 32: 24, 40: 32}[sl]:
                items += [(s, "h", h_load(sl, tl)) for tl in range(2)]
        if s == 5:
            items.append((s, "b", None))
    if OPT.get("tlast", 1):
        NL = OPT.get("nl", 3)
        last = [it for it in items if it[1] == "h" and it[0] >= 44 - NL]
        items = [it for it in items if it not in last]
        items += last[1::2] + [(43, "h", it[2]) for it in last[0::2]]
    return items


def phase2(stream):
    VXO, VOO, VSO, VDO = AP[0], AP[1], AP[2], AP[3]
    AWR, ARD = APH, [T + 12, T + 13, T + 14, T + 15]
    setup = [f"v_lshrrev_b32 v{T+1}, 3, v{VLANE}", f"v_and_b32 v{T+2}, 7, v{VLANE}",
             f"v_lshrrev_b32 v{T+3}, 2, v{T+1}", f"v_and_b32 v{T+4}, 3, v{T+1}", f"v_lshl_add_u32 v{T+3}, v{T+3}, 4, v{T+4}",
             f"v_lshlrev_b32 v{VDO}, 3, v{T+2}", f"v_lshl_add_u32 v{VXO}, v{T+3}, 10, v{VDO}", f"v_lshlrev_b32 v{VOO}, 1, v{VXO}",
             f"v_lshlrev_b32 v{VSO}, 5, v{T+1}", f"v_add_u32 v{VDO}, {sCOL}, v{VDO}"]
    sloads = [(f"buffer_load_dwordx4 {vr(BST+4*k,4)}, v{VSO}, {SWS}, {sSTB} offen offset:{16*k} sc1", "b") for k in range(2)]
    bl = setup + [(f"global_load_dwordx2 {vr(BD,2)}, v{VDO}, s[{pDSK}:{pDSK+1}]", "b")] + sloads
    for it in range(4):
        bl += [f"s_add_u32 {sSO}, {sRB}, {it*4096}", (f"buffer_load_dwordx2 {vr(BX+2*it,2)}, v{VXO}, {SX}, {sSO} offen", "b")]
    post = [f"v_xor_b32 v{T+5}, v{T+1}, v{T+2}", f"v_lshlrev_b32 v{T+5}, 4, v{T+5}", f"v_lshl_add_u32 v{T+5}, v{T+1}, 7, v{T+5}"]
    for a in range(4):
        post += [f"s_xor_b32 {sT0}, {sWL}, {a*4096}", f"v_add_u32 v{ARD[a]}, {sT0}, v{T+5}"]
    post += [f"v_lshrrev_b32 v{T+6}, 5, v{VLANE}", f"v_xor_b32 v{T+6}, v{T+6}, v{T+2}", f"v_lshlrev_b32 v{T+6}, 4, v{T+6}",
             f"v_lshl_add_u32 v{T+7}, v{VC4}, 7, {sWL}"]
    for g in range(4):
        post += [f"v_xor_b32 v{AWR[g]}, {32*g}, v{T+6}", f"v_add_u32 v{AWR[g]}, v{T+7}, v{AWR[g]}"]
    base = list(post)
    base += [f"v_and_b32 v{BD+3}, 0xffff0000, v{BD+1}", f"v_lshlrev_b32 v{BD+2}, 16, v{BD+1}",
             f"v_and_b32 v{BD+1}, 0xffff0000, v{BD}", f"v_lshlrev_b32 v{BD}, 16, v{BD}"]
    for it in range(4):
        m_, d_, rc = BST + 2 * it, BST + 2 * it + 1, T + 8
        base += [f"v_rcp_f32 v{rc}, v{d_}"]
        for k in range(4):
            x, t0, t1 = BASE + 4 * it + k, T + 9, T + 10
            src = BX + 2 * it + (k >> 1)
            base += [f"v_and_b32 v{x}, 0xffff0000, v{src}" if k & 1 else f"v_lshlrev_b32 v{x}, 16, v{src}",
                     f"v_sub_f32 v{t0}, v{x}, v{m_}"] + bfr(t0, t0)
            base += [f"v_mul_f32 v{t1}, v{t0}, v{rc}", f"v_fma_f32 v{t0}, -v{t1}, v{d_}, v{t0}", f"v_fma_f32 v{t0}, v{t0}, v{rc}, v{t1}"] + bfr(t0, t0)
            base += [f"v_mul_f32 v{t0}, v{t0}, v{BD+k}"] + bfr(t0, t0) + [f"v_add_f32 v{x}, v{t0}, v{x}"]
    base += [f"s_lshl_b32 {sRB}, {sRB}, 1"]
    stream = [(s, k, (bl if k == "b" else g)) for (s, k, g) in stream]

    cpos = [0]
    def c_reads(s):
        jj, u = STEPS[s]
        cc, mat, sp = jj >> 1, u >> 1, 2 * (jj & 1) + (u & 1)
        regs = []
        for ntl in range(2):
            P(f"@waitvm C{CREG.index((cc, mat, ntl))}")
            sl = c_slot(cc, mat, ntl)
            r = ARING + 4 * (cpos[0] % NRING); cpos[0] += 1
            P(f"ds_read_b128 {ar(r,4)}, v{AX[sp] if sl < 4 else AXH[sp]} offset:{(sl&3)*16384}")
            regs.append(r)
        return regs
    creg = {}
    LA = OPT["la"]
    assert LA <= NH - 1
    q = []
    def top_up(s):
        while stream and stream[0][0] <= s + LA - 1 + (1 if stream[0][1] != "h" else 0):
            q.extend(stream.pop(0)[2])
    ldA, chkA = poll(T + 22, T + 20, sPH)
    ldB, chkB = poll(T + 22, T + 20, sPH)
    if True:
        stat = [it for it in stream if it[1] in "cw"]
        for it in stat: stream.remove(it)
        npa = min(OPT.get("npa", 8), len(stat))
        for it in stat[:len(stat) - npa]: P.emit(it[2])
        P.emit([ldA])
        for it in stat[len(stat) - npa:]: P.emit(it[2])
    if OPT["stamps"] in (1, 2):
        stamp(44)
        P(f"v_mov_b32 v{T+11}, v{T+22}")
        stamp(45)
        P("s_mov_b32 s101, 0")
    P.emit(chkA + [f"s_add_u32 {sPH}, {sPH}, 8192"])
    if OPT["stamps"] in (1, 2): P(f"v_writelane_b32 v{VSTMP}, s101, 46")
    stamp(14)
    top_up(0)
    P.emit(q); q.clear()
    first = [True] * 4
    SB = 16 - LA
    NL = OPT.get("nl", 3)
    for s, (jj, u) in enumerate(STEPS[:44 - NL]):
        if s == OPT.get("fb", 0):
            P("@waitvm pubB\ns_barrier")
            if True:
                P.emit([flag_store(2), (f"buffer_store_dword v{VNON}, v{VFLA}, {SWS}, {sROT} offen sc1", "ep")])
        if s == SB - OPT.get("pbl", 5):
            P.emit([ldB])
        if s == SB:
            if OPT["stamps"] in (1, 2):
                P(f"v_mov_b32 v{T+11}, v{T+22}")
                stamp(43)
                P("s_mov_b32 s101, 0")
            P.emit(chkB)
            if OPT["stamps"] in (1, 2): P(f"v_writelane_b32 v{VSTMP}, s101, 47")
            stamp(15)
        top_up(s + 1)
        pop_vm(q)
        if OPT.get("fine") and s % 4 == 0: stamp(32 + s // 4)
        for tl in range(2):
            for ntl in range(2):
                a = 2 * tl + ntl
                bw = ar(creg[s][ntl], 4) if u < 4 else ar(wreg(s, ntl)[0], 4)
                acc = vr(ACC2[a], 16)
                if OPT.get("fake16") and s > 0:
                    for z in range(2):
                        q4 = vr(ACC2[a] + 4 * ((2 * s + z) & 3), 4)
                        P(f"v_mfma_f32_16x16x32_bf16 {q4}, {bw}, {vr(hreg(s)+4*(tl^z),4)}, {q4}")
                else:
                    P(f"v_mfma_f32_32x32x16_bf16 {acc}, {bw}, {vr(hreg(s)+4*tl,4)}, {'0' if first[a] else acc}")
                first[a] = False
                if a < 3: pop_vm(q)
                if a == 2:
                    nx = s + 2
                    if nx < 44 and STEPS[nx][1] < 4:
                        creg[nx] = c_reads(nx)
                if s >= 12 and base:
                    for _ in range(3):
                        if base:
                            x = base.pop(0)
                            P.emit(x[1] if isinstance(x, tuple) and x[0] == "atomic" else [x])
        P.emit(q); q.clear()
    assert not base and not stream
    W = lambda a: [f"ds_write_b128 v{AWR[g]}, {vr(ACC2[a]+4*g,4)} offset:{a*16384}" for g in range(4)]
    M = lambda a, s: P(f"v_mfma_f32_32x32x16_bf16 {vr(ACC2[a],16)}, {ar(wreg(s, a & 1)[0], 4)}, {vr(hreg(s)+4*(a>>1),4)}, {vr(ACC2[a],16)}")
    RD = ACC2[2]
    def red(aa):
        for it in range(4):
            for z, a in enumerate(aa):
                P(f"ds_read_b128 {vr(RD+8*it+4*z,4)}, v{ARD[a]} offset:{a*16384+it*1024}")
        for it in range(4):
            b, r0 = BASE + 4 * it, RD + 8 * it
            for k in (0, 2):
                P(f"v_pk_add_f32 {vr(r0+k,2)}, {vr(r0+k,2)}, {vr(r0+4+k,2)}")
            for k in (0, 2):
                P(f"v_pk_add_f32 {vr(b+k,2)}, {vr(b+k,2)}, {vr(r0+k,2)}")
            if aa[0] == 0:
                P(f"s_add_u32 {sT0}, {sRB}, {it*8192}")
                P(f"buffer_store_dwordx4 {vr(b,4)}, v{VOO}, {SOUT}, {sT0} offen" + (" nt" if OPT.get("ont") else ""))
    for a in (3, 2):
        for s in range(44 - NL, 44): M(a, s)
    P.emit(W(3) + W(2))
    if OPT.get("early_red", 0):
        P("@waitlg0\ns_barrier")
        red((2, 3))
    for s in range(44 - NL, 44):
        M(1, s); M(0, s)
    P('Lmark3:')
    stamp(11)
    P.emit(W(1) + W(0))
    P("@waitlg0\ns_barrier")
    if not OPT.get("early_red", 0):
        red((2, 3))
    red((0, 1))
    if OPT["stamps"]:
        stamp(12)
        P("@waitall")
        stamp(13)
        P(f"s_lshl_b32 s100, s2, 2\ns_add_u32 s100, s100, {sW}\ns_lshl_b32 s100, s100, 8\ns_add_u32 s100, s100, {STAMP_OFF}")
        P(f"v_lshlrev_b32 v{T}, 2, v{VLANE}\nbuffer_store_dword v{VSTMP}, v{T}, {SWS}, s100 offen")


def main():
    from collections import Counter
    ref = open(f"cdna_kernels/{NAME}.s.ref").read().split("\n")
    out = [l for l in ref if l.startswith(";") and "@launch" not in l and "Override launch" not in l and "grid=ceil" not in l]
    k1 = NAME + "_kernel"
    out.append("; @launch grid=(256,1,1) block=(256,1,1) lds=163840")
    out.append('.amdgcn_target "amdgcn-amd-amdhsa--gfx950"\n.text')
    prologue()
    stream = passes(landing())
    phase2(stream)
    st = {}
    ab = OPT.get("ablate", 0)
    if ab:
        nl = []; inside = False
        reg = OPT.get("abreg", 0)
        for i in P.l:
            if i.kind == "label" and i.text == f"Lmark{reg}:": inside = True
            if i.kind == "label" and i.text == f"Lmark{reg+1}:": inside = False
            if inside:
                if ab & 1 and i.kind == "dma": continue
                if ab & 2 and i.kind == "valu" and any(x in i.text for x in ("dot2", "v_fma", "v_mul_f32", "v_exp", "v_rcp", "v_cvt_pk")): continue
                if ab & 4 and i.kind == "barrier": continue
                if ab & 8 and i.kind == "dsr": continue
                if ab & 16 and i.kind in ("vst", "vld") and i.tag not in ("flag", "poll", "el", "pubE", "ep"): continue
                if ab & 32 and i.kind == "mfma": continue
            nl.append(i)
        P.l = nl
    l = pad_hazards(auto_wait(P.l), st)
    defined = {"s0", "s1", "s2", "v0", "exec", "scc", "vcc", "m0"}
    for i in l:
        bad = [r for r in i.rd if r not in defined]
        assert ab or not bad, f"use before def: {i.text} {bad}"
        defined |= set(i.wr)
    unread = {}
    for i in l:
        for r in i.rd: unread.pop(r, None)
        for r in i.wr:
            assert ab or r not in unread or unread[r][1] in ("ct", "code", None) and r[0] == "a" and int(r[1:]) >= 240, f"load result overwritten unread: {r}: {unread[r][0]} <- {i.text}"
            unread.pop(r, None)
        if i.kind in ("vld", "dsr"):
            for r in i.wr: unread[r] = (i.text, i.tag)
    ool = pad_hazards([Ins(x) for x in P.ool])
    out.append(f".globl {k1}\n.p2align 8\n.type {k1},@function\n{k1}:\nk_start:")
    out.append(render(l))
    out.append("k_exit:\n    s_endpgm\nk_main_end:")
    out.append(render(ool))
    out.append("    s_endpgm\nk_all_end:")
    out.append(f""".section .rodata,"a"
.p2align 6
.amdhsa_kernel {k1}
  .amdhsa_next_free_vgpr 512
  .amdhsa_next_free_sgpr 102
  .amdhsa_accum_offset 256
  .amdhsa_group_segment_fixed_size 0
  .amdhsa_kernarg_size 128
  .amdhsa_user_sgpr_count 2
  .amdhsa_user_sgpr_kernarg_segment_ptr 1
  .amdhsa_system_sgpr_workgroup_id_x 1
.end_amdhsa_kernel""")
    open(sys.argv[1], "w").write("\n".join(out) + "\n")
    c = Counter(i.kind for i in l)
    print(dict(c), "slots", sum(i.cost for i in l), st)

main()
```

```python
import sys, struct, math
sys.path.insert(0, "work")
from asmlib import *

NAME = "parallel_sum__ssm_conv_s5__glu_gated_glu__prompt"
OPT = dict(to1=2, to2=1, look=4, dmagap=2, vgap=3, stamps=0, codepf=1, budget=6, ebudget=9, xlook=2,
           pa=40, pad=12, el=130, eld=24, pb=190, pbd=12, la=5, exbar=1, tailgap=16)
SOPT = {}
for a in sys.argv[2:]:
    k, v = a.split("=")
    if k in ("ord", "opP", "opQ"): SOPT[k] = v
    else: OPT[k] = int(v)

def f2u(x):
    return struct.unpack("<I", struct.pack("<f", x))[0]
LOG2E = f2u(1.4426950408889634)
INV2PI = f2u(0.15915494309189535)

W2_OFF = 12 << 20
E_OFF = 15 << 20
ST_OFF = E_OFF + 131072
FL_OFF = E_OFF + 196608
EP_OFF = E_OFF + 229376
STAMP_OFF = E_OFF + 262144
WS_WIN = 16 << 20
OOB = 0x40000000
SPIN_MAX = 0x40000

SCR = 131072
EXZ = SCR
CSB = SCR + 4096
CSG = SCR + 5120
RS = SCR + 7168
HT = SCR + 8192

SX, SBR, SBI, SW, SWD, SWS, SDB, SE, SCRE, SCIM, SOUT, SCD = [f"s[{4+4*i}:{7+4*i}]" for i in range(12)]
iSX, iSBR, iSBI, iSW, iSWD, iSWS, iSDB, iSE, iSCRE, iSCIM, iSOUT, iSCD = [4 + 4 * i for i in range(12)]
pLRE, pLIM, pLDT, pDSK, pWU = 52, 54, 56, 20, 60
sW, sM, sJ, sJ4, sROT = "s62", "s63", "s64", "s65", "s66"
sT0, sT1, sT2, sT3 = "s67", "s76", "s77", "s78"
KB = [f"s{68+i}" for i in range(8)]
sXB, sBB, sPB, sWL = "s79", "s80", "s81", "s82"
sONE, sHB = "s83", "s84"
sHT = [f"s{85+i}" for i in range(7)]
sSO = "s92"
sL2E, sI2P = "s93", "s94"
sFL = "s95"
TB = ["s96", "s97", "s98"]
sNON = "s99"
sWA = [["s52", "s28"], ["s53", "s29"]]; sHA = [["s54", "s30"], ["s55", "s31"]]; sCB = ["s56", "s57"]
sMU = "s58"
sRB, sSTB = "s60", "s61"
sCOL = "s48"
sWQ = [sL2E, sI2P]
sPW, sPH = "s49", "s3"

ACC_S = 0
ACC_G = [32 + 16 * t for t in range(7)]
CSBR, CSBI, CSGA = 144, 148, 152
SEL, XE, CE0, CE1 = 156, 160, 164, 168
AX = [172, 173, 174, 175]
AB = [176, 177, 178, 179]
ABC = 180
AP = [181, 182, 183, 184]
APH = [185, 186, 187, 188]
VX = [189, 190, 191, 192]
VB, VL16 = 193, 194
C1, SIG = 195, 196
L1R, L1I, L16R, L16I, L128R, L128I, LSR, LSI, KR, KI, PR, PI = range(197, 209)
S1, S2 = 209, 210
VEW, VER, AEXW, AEXR, ARS, AHW, AHR, ACSB_W, ACSB_R, ACSG_W, VST, VC4 = range(211, 223)
VLANE = 223
T = 224
L256R, L256I = T + 28, T + 29
PRW = CSBR
VSTMP = T + 31
AXF, ARING, NRING = 0, 128, 8
P0R = 208
VWD, VCT, VRS = ACC_G[5], ACC_G[5] + 4, ACC_G[5] + 8
RPW, RPT = ACC_G[4], ACC_G[5] + 12
VP = [ACC_G[6] + 8 + k for k in range(4)]
PK_SSW, PK_TRB, PK_VQ, ARPR = ACC_G[6] + 12, ACC_G[6] + 13, ACC_G[6] + 14, ACC_G[6] + 15
VFLA, VNON = T + 30, T + 23
HR, NH = 48, 6
ACC2 = [96, 112, 128, 144]
BX, BST, BD, BASE = 0, 8, 16, 20

def vr(a, n=1): return f"v{a}" if n == 1 else f"v[{a}:{a+n-1}]"
def ar(a, n=1): return f"a{a}" if n == 1 else f"a[{a}:{a+n-1}]"
def isvm(x): return isinstance(x, tuple) and x[0].startswith(("buffer_", "global_"))


class Prog:
    def __init__(self):
        self.l = []
        self.ool = []
    def __call__(self, text, tag=None):
        for t in text.split("\n"):
            t = t.strip()
            if t:
                self.l.append(Ins(t, tag))
    def emit(self, lst):
        for x in lst:
            if isinstance(x, tuple):
                self(x[0], tag=x[1])
            else:
                self(x)

P = Prog()

def stamp(idx):
    if not OPT["stamps"] or (OPT["stamps"] == 3 and idx != 13):
        return
    P("@opaque_begin")
    P(("s_memrealtime" if OPT["stamps"] >= 2 else "s_memtime") + " s[100:101]\ns_waitcnt lgkmcnt(0)")
    P("@opaque_end")
    P(f"v_writelane_b32 v{VSTMP}, s100, {idx}")

def bfr(dst, src):
    return [f"v_cvt_pk_bf16_f32 v{dst}, v{src}, v{src}", f"v_and_b32 v{dst}, 0xffff0000, v{dst}"]

def set_srd(i, nbytes):
    P(f"s_mov_b32 s{i+2}, {nbytes}\ns_mov_b32 s{i+3}, 0x20000")

def cpow(n_expr, dr, di, A, Bq, t0, t1):
    if n_expr is None:
        P(f"v_exp_f32 v{t0}, v{A}\nv_fract_f32 v{t1}, v{Bq}")
    else:
        P(f"v_mul_f32 v{t0}, {n_expr}, v{A}\nv_mul_f32 v{t1}, {n_expr}, v{Bq}\nv_exp_f32 v{t0}, v{t0}\nv_fract_f32 v{t1}, v{t1}")
    P(f"v_cos_f32 v{dr}, v{t1}\nv_sin_f32 v{di}, v{t1}\nv_mul_f32 v{dr}, v{t0}, v{dr}\nv_mul_f32 v{di}, v{t0}, v{di}")

def cstep(nx, L, cur, u):
    return [f"v_fma_f32 v{nx[0]}, v{L[0]}, v{cur[0]}, v{u[0]}", f"v_fma_f32 v{nx[1]}, v{L[0]}, v{cur[1]}, v{u[1]}",
            f"v_fma_f32 v{nx[0]}, -v{L[1]}, v{cur[1]}, v{nx[0]}", f"v_fma_f32 v{nx[1]}, v{L[1]}, v{cur[0]}, v{nx[1]}"]

retry_id = [0]
def retry_check(ev, reload, sleep=2):
    k = retry_id[0]; retry_id[0] += 1
    o = [f"Lretry{k}:", f"s_mov_b32 s101, 0", f"Lspin{k}:", f"s_sleep {sleep}", f"s_add_u32 s101, s101, 1",
         f"s_cmp_gt_u32 s101, {SPIN_MAX}", f"s_cbranch_scc1 Lback{k}"]
    o += [x[0] if isinstance(x, tuple) else x for x in reload]
    o += ["s_waitcnt vmcnt(0)"] + ev + ["s_nop 4", f"s_cbranch_vccnz Lspin{k}", f"s_branch Lback{k}"]
    P.ool += o
    return [f"s_cbranch_vccnz Lretry{k}", f"Lback{k}:"]

def poll(d, addr, so):
    ld = (f"buffer_load_dword v{d}, v{addr}, {SWS}, {so} offen sc1", "poll")
    ev = [f"v_cmp_ne_u32 vcc, {sNON}, v{d}"]
    return ld, ev + retry_check(ev, [ld], 4)

def flag_store(kind):
    return (f"buffer_store_dword v{VNON}, v{VFLA}, {SWS}, 0 offen offset:0 sc1" if kind == 0 else
            f"buffer_store_dword v{VNON}, v{VFLA}, {SWS}, {sK8 if kind == 1 else sK16} offen sc1", "flag")
sK8, sK16 = "s50", "s51"

PSET = lambda jj: [jj + t for t in range(4)]
QSET = lambda jj: [g for g in range(7) if g not in PSET(jj)]
STEPS = [(jj, 4 + g) for t in range(4) for jj in range(4) for g in [PSET(jj)[t]]] + \
        [(jj, u) for jj in range(4) for u in range(4)] + \
        [(jj, 4 + g) for t in range(3) for jj in range(4) for g in [QSET(jj)[t]]]
GSTEP = [s for s, (jj, u) in enumerate(STEPS) if u >= 4]
def wreg(s, ntl):
    wi = 2 * GSTEP.index(s) + ntl
    return ((160 + 4 * wi) if wi < 24 else 4 * (wi - 24)), wi
VO4 = [AEXW, AEXR, ARS, ACSB_R]
def adv(base, idx, last):
    r = []
    if idx % 4 == 0 and idx >= 8:
        b = base[(idx >> 2) & 1]
        if idx == last:
            r.append(f"s_sub_u32 {b}, {b}, {sMU}")
        r.append(f"s_add_u32 {b}, {b}, 8192")
    return r
def w_load(s, ntl):
    g = GSTEP.index(s)
    b = sWA[ntl][(g >> 2) & 1] if g < 24 else sWQ[ntl]
    off = (g >> 3) * 8192
    pre = [f"s_add_u32 {sSO}, {b}, {off}"] if off else []
    return pre + [(f"buffer_load_dwordx4 {ar(wreg(s, ntl)[0],4)}, v{VO4[g&3]}, {SWS}, {sSO if off else b} offen sc1", f"w{g}")]
HLEAD = {8: 160, 16: 36, 24: 160, 32: 36, 40: 160}
def is_lead(s): return OPT.get("hlead", 0) and s in HLEAD
RIDX = {}
for _s in range(44):
    if not is_lead(_s): RIDX[_s] = len(RIDX)
def hreg(s): return HLEAD[s] if is_lead(s) else HR + 8 * (RIDX[s] % NH)
def h_load(s, tl):
    b = sHA[tl][(s >> 2) & 1]
    off = (s >> 3) * 8192
    pre = [f"s_add_u32 {sSO}, {b}, {off}"] + ([f"s_sub_u32 {sSO}, {sSO}, {sMU}"] if s >= 40 else []) if off else []
    return pre + [(f"buffer_load_dwordx4 {vr(hreg(s)+4*tl,4)}, v{VO4[s&3]}, {SWS}, {sSO if off else b} offen sc1", "h")]
CREG = [(cc, mat, ntl) for cc in range(2) for mat in range(2) for ntl in range(2)]
def c_slot(cc, mat, ntl): return (CREG.index((cc, mat, ntl)) + 2) % 8
VC = [AB[0], AB[1], AB[2], AB[3]]
AXH = [ABC, VB, S1, S2]
def c_dma(r):
    cc, mat, ntl = CREG[r]
    g = [f"s_add_u32 m0, {sWL}, {c_slot(cc, mat, ntl)*16384}", f"s_add_u32 {sSO}, {sCB[ntl]}, {cc*128}"]
    return g + [(f"buffer_load_dwordx4 v{VC[sb]}, {SCIM if mat else SCRE}, {sSO} offen offset:{sb*1024} lds", f"C{r}") for sb in range(4)]


GRP = dict(
    x=lambda: dma_X(1) + dma_B(1),
    a=lambda: [(f"global_load_ushort v{T+8+k}, v{T+6}, s[{p}:{p+1}]", "par") for k, p in enumerate((pLRE, pLIM, pLDT))],
    p=lambda: [f"s_mul_i32 {sSO}, {KB[0]}, 1792", f"s_add_u32 {sSO}, {sSO}, {sPB}"] +
              [(f"buffer_load_dwordx4 {ar(P0R+4*ks,4)}, v{VP[ks]}, {SW}, {sSO} offen offset:{ks*1024}" + (" nt" if OPT.get("ntp", 0) else ""), "p0") for ks in range(4)],
    w=lambda: [(f"buffer_load_dwordx4 {vr(RPW+4*g,4)}, v{VWD+g}, {SWD}, 0 offen" + (" nt" if OPT.get("ntw", 0) else ""), "wd") for g in range(2)],
    c=lambda: [(f"buffer_load_dwordx4 {ar(240,4)}, v{VCT}, {SCRE}, 0 offen", "ct"), (f"buffer_load_dwordx4 {ar(244,4)}, v{VCT+1}, {SCIM}, 0 offen", "ct")],
)
ORDER = [list(x) for x in SOPT.get("ord", "ax_p_....wc").split("_")[:2]] + [SOPT.get("ord", "ax_p_....wc").split("_")[2].split(".")]
DEFER = []
LATE = []
def pop_defer(n):
    k = 0
    while DEFER and k < n:
        g = DEFER.pop(0); P.l.extend(g); k += sum(i.cost for i in g)

def p2scal():
    mp, nn, a, b = "s50", "s51", sT0, sT1
    P(f"""s_and_b32 {a}, s2, 7
          s_lshr_b32 {b}, s2, 3
          s_lshl_b32 {mp}, {a}, 2
          s_and_b32 {a}, {b}, 3
          s_add_u32 {mp}, {mp}, {a}
          s_lshr_b32 {nn}, {b}, 2
          s_lshl_b32 {mp}, {mp}, 1
          s_lshr_b32 {a}, {sW}, 1
          s_add_u32 {mp}, {mp}, {a}
          s_lshl_b32 {nn}, {nn}, 1
          s_and_b32 {a}, {sW}, 1
          s_add_u32 {nn}, {nn}, {a}
          s_mul_i32 {sT2}, {sW}, 44
          s_lshl_b32 {sT3}, {sW}, 8""")
    P(f"""s_lshr_b32 {a}, {nn}, 1
          s_lshr_b32 {b}, {mp}, 1
          s_add_u32 {b}, {b}, {a}
          s_and_b32 s59, {b}, {3 if OPT.get("mu", 1) else 0}
          s_and_b32 {sMU}, {a}, {4 if OPT.get("mu", 1) else 0}
          s_lshl_b32 {sMU}, {sMU}, 10
          s_xor_b32 {b}, {sMU}, 4096""")
    for k in range(2):
        P(f"""s_xor_b32 {a}, {mp}, {k}
              s_mul_i32 {a}, {a}, 176
              s_add_u32 {a}, {a}, {sT2}
              s_lshl_b32 {a}, {a}, 10
              s_add_u32 {sHA[k][0]}, {a}, {sMU}
              s_add_u32 {sHA[k][1]}, {a}, {b}
              s_xor_b32 {a}, {nn}, {k}
              s_lshl_b32 {sCB[k]}, {a}, 15
              s_add_u32 {sCB[k]}, {sCB[k]}, {sT3}
              s_lshl_b32 {a}, {a}, 2
              s_add_u32 {a}, {a}, {sW}
              s_mul_i32 {a}, {a}, {28*1024}
              s_add_u32 {a}, {a}, {W2_OFF}
              s_add_u32 {sWA[k][0]}, {a}, {sMU}
              s_add_u32 {sWA[k][1]}, {a}, {b}""")
    P(f"""s_bitcmp1_b32 s59, 1
          s_cselect_b64 s[100:101], s[{iSCIM}:{iSCIM+1}], s[{iSCRE}:{iSCRE+1}]
          s_cselect_b64 s[{iSCIM}:{iSCIM+1}], s[{iSCRE}:{iSCRE+1}], s[{iSCIM}:{iSCIM+1}]
          s_mov_b64 s[{iSCRE}:{iSCRE+1}], s[100:101]""")
    P(f"""s_lshl_b32 {sCOL}, {nn}, 6
          s_lshl_b32 {sRB}, {mp}, 15
          s_add_u32 {sRB}, {sRB}, {sCOL}
          s_lshl_b32 {sSTB}, {mp}, 8
          s_lshl_b32 {a}, {sW}, 14
          s_add_u32 {sSTB}, {sSTB}, {a}
          s_add_u32 {sSTB}, {sSTB}, {ST_OFF}
          s_lshl_b32 {a}, {sW}, 7
          s_add_u32 {a}, {a}, {FL_OFF}
          s_lshr_b32 {sPW}, {nn}, 1
          s_lshl_b32 {sPW}, {sPW}, 10
          s_add_u32 {sPW}, {sPW}, {a}
          s_lshr_b32 {sPH}, {mp}, 2
          s_lshl_b32 {sPH}, {sPH}, 9
          s_add_u32 {sPH}, {sPH}, {a}
          s_add_u32 {sPH}, {sPH}, 8192
          s_movk_i32 {sK8}, 8192
          s_movk_i32 {sK16}, 16384""")


def prologue():
    P("s_cmp_ge_u32 s2, 256\ns_cbranch_scc1 k_exit")
    if OPT["stamps"]:
        P(("s_memrealtime" if OPT["stamps"] >= 2 else "s_memtime") + " s[100:101]\ns_waitcnt lgkmcnt(0)")
        P(f"v_mov_b32 v{VSTMP}, 0\ns_nop 1\nv_writelane_b32 v{VSTMP}, s100, 0")
    for off, s in [(0, iSX), (24, iSBR), (32, iSBI)]:
        P(f"s_load_dwordx2 s[{s}:{s+1}], s[0:1], {off}")
    rr, p, q, t3 = T + 1, T + 2, T + 3, T + 4
    LM = OPT.get('lm', 3)
    P(f"""v_lshrrev_b32 v{T}, 6, v0
          v_and_b32 v{VLANE}, 63, v0
          v_readfirstlane_b32 {sW}, v{T}
          s_and_b32 {sT0}, s2, 7
          s_lshr_b32 {sT1}, s2, 3
          s_and_b32 {sM}, {sT0}, {(16 >> LM) - 1}
          s_lshl_b32 {sM}, {sM}, {LM}
          s_and_b32 {sT2}, {sT1}, {(1 << LM) - 1}
          s_add_u32 {sM}, {sM}, {sT2}
          s_lshr_b32 {sT1}, {sT1}, {LM}
          s_lshr_b32 {sJ}, {sT0}, {4 - LM}
          s_lshl_b32 {sJ}, {sJ}, {5 - LM}
          s_add_u32 {sJ}, {sJ}, {sT1}
          s_and_b32 {sJ4}, {sJ}, 3""")
    P({1: f"s_add_u32 {sROT}, {sJ}, {sM}", 2: f"s_lshl_b32 {sROT}, {sJ}, 1\ns_add_u32 {sROT}, {sROT}, {sM}",
       3: f"s_lshl_b32 {sROT}, {sM}, 1\ns_add_u32 {sROT}, {sROT}, {sJ}", 0: f"s_mov_b32 {sROT}, 0", 4: f"s_mov_b32 {sROT}, {sM}", 5: f"s_mov_b32 {sROT}, {sJ}"}[OPT.get("rot", 2)])
    P(f"""s_lshl_b32 {sROT}, {sROT}, 7
          s_and_b32 {KB[0]}, {sROT}, 0x380
          v_lshrrev_b32 v{rr}, 3, v{VLANE}
          v_and_b32 v{p}, 7, v{VLANE}
          v_lshrrev_b32 v{q}, 1, v{rr}
          v_xor_b32 v{q}, v{p}, v{q}
          v_lshlrev_b32 v{q}, 4, v{q}
          v_lshrrev_b32 v{t3}, 2, v{rr}
          v_lshlrev_b32 v{t3}, 4, v{t3}
          v_and_b32 v{T+5}, 3, v{rr}
          v_add_u32 v{t3}, v{t3}, v{T+5}
          v_lshl_add_u32 v{VX[0]}, v{t3}, 10, v{q}
          v_xor_b32 v{VX[1]}, 64, v{VX[0]}
          v_add_u32 v{VX[2]}, {2*3072}, v{VX[0]}
          v_add_u32 v{VX[3]}, {3*3072}, v{VX[1]}
          v_add_u32 v{VX[1]}, 3072, v{VX[1]}
          s_lshl_b32 {sWL}, {sW}, 12
          s_lshl_b32 {sXB}, {sM}, 17
          s_lshl_b32 {sT0}, {sW}, 15
          s_add_u32 {sXB}, {sXB}, {sT0}""")
    set_srd(iSX, 2048 * 1024)
    P.emit(dma_X(0))
    stamp(1)
    for off, s in [(8, pLRE), (16, pLIM), (56, pLDT), (96, iSWD), (80, iSW), (88, pWU),
                   (120, iSWS), (40, iSCRE), (48, iSCIM), (104, iSOUT)]:
        P(f"s_load_dwordx2 s[{s}:{s+1}], s[0:1], {off}")
    P(f"""s_lshl_b32 {sBB}, {sJ}, 15
          s_lshl_b32 {sT0}, {sW}, 13
          s_add_u32 {sBB}, {sBB}, {sT0}
          s_and_b32 {sT0}, {sW}, 1
          s_lshl_b32 {sT0}, {sT0}, 6
          v_xor_b32 v{VB}, {sT0}, v{q}
          v_lshl_add_u32 v{VB}, v{rr}, 10, v{VB}""")
    set_srd(iSBR, 524288); set_srd(iSBI, 524288)
    P.emit(dma_B(0))
    if OPT["codepf"]:
        P(f"""s_getpc_b64 s[{iSCD}:{iSCD+1}]
              Lpc0:
              s_sub_u32 s{iSCD}, s{iSCD}, Lpc0-k_start
              s_subb_u32 s{iSCD+1}, s{iSCD+1}, 0
              s_mov_b32 s{iSCD+2}, k_all_end-k_start
              s_mov_b32 s{iSCD+3}, 0x20000
              s_lshr_b32 {sT0}, s2, 3
              s_and_b32 {sT0}, {sT0}, 31
              s_lshl_b32 {sT0}, {sT0}, 10
              v_lshlrev_b32 v{T+7}, 2, v0
              buffer_load_dword a255, v{T+7}, {SCD}, {sT0} offen""")
    for n in range(1, 8):
        P(f"s_add_u32 {sT0}, {sROT}, {n*128}\ns_and_b32 {KB[n]}, {sT0}, 0x380")
    PLRE, PLIM, PLDT = T + 8, T + 9, T + 10
    hh, f, row = T + 11, T + 12, T + 13
    P(f"""v_and_b32 v{VC4}, 31, v{VLANE}
          v_lshlrev_b32 v{T+6}, 1, v{VC4}
          s_lshl_b32 {sT1}, {sJ}, 6
          v_add_u32 v{T+6}, {sT1}, v{T+6}
          s_add_u32 s{iSWS}, s{iSWS}, {OPT.get("wsoff", 0) << 20}
          s_addc_u32 s{iSWS+1}, s{iSWS+1}, 0
          s_add_u32 s100, s{iSWS}, {EP_OFF}
          s_addc_u32 s101, s{iSWS+1}, 0
          s_load_dword {sNON}, s[100:101], 0""")
    for g in ORDER[0]:
        P.emit(GRP[g]())
    set_srd(iSW, 1835008); set_srd(iSCRE, 524288); set_srd(iSCIM, 524288)
    P(f"""s_bitcmp1_b32 {sW}, 0
          s_cselect_b32 s{iSW}, s{pWU}, s{iSW}
          s_cselect_b32 s{iSW+1}, s{pWU+1}, s{iSW+1}""")
    if OPT.get("touch", 0):
        set_srd(iSWS, WS_WIN); set_srd(iSOUT, 4 << 20)
        P(f"""v_lshlrev_b32 v{T+7}, {OPT.get("tsh", 20)}, v{VLANE}
              buffer_load_dword a250, v{T+7}, {SW}, 0 offen
              buffer_load_dword a251, v{T+7}, {SWS}, 0 offen
              buffer_load_dword a252, v{T+7}, {SCRE}, 0 offen
              buffer_load_dword a253, v{T+7}, {SCIM}, 0 offen
              buffer_load_dword a254, v{T+7}, {SOUT}, 0 offen""")
    set_srd(iSWD, 1835008)
    P(f"""s_mul_i32 {sT0}, {sJ}, 112
          s_lshl_b32 {sT1}, {sW}, 4
          s_add_u32 {sT0}, {sT0}, {sT1}
          s_lshl_b32 {sT0}, {sT0}, 10
          s_lshl_b32 {sT1}, {sM}, 6
          s_add_u32 {sT0}, {sT0}, {sT1}
          v_lshrrev_b32 v{T+14}, 2, v{VLANE}
          v_and_b32 v{T+21}, 3, v{VLANE}
          v_lshlrev_b32 v{T+15}, 4, v{T+21}
          v_lshl_add_u32 v{T+14}, v{T+14}, 10, v{T+15}
          v_add_u32 v{VWD}, {sT0}, v{T+14}
          v_add_u32 v{VWD+1}, 0x10000, v{VWD}
          s_mov_b32 {sONE}, 0x3f803f80
          v_lshrrev_b32 v{hh}, 5, v{VLANE}
          v_bfe_u32 v{f}, v{VLANE}, 1, 3
          v_xor_b32 v{f}, v{f}, v{hh}
          v_lshlrev_b32 v{f}, 4, v{f}
          v_and_b32 v{row}, 7, v{VLANE}
          v_lshlrev_b32 v{row}, 7, v{row}
          v_bfe_u32 v{T+14}, v{VLANE}, 3, 2
          v_lshl_add_u32 v{T+15}, v{T+14}, 10, v{row}
          v_add_u32 v{T+15}, {sWL}, v{T+15}
          v_lshl_add_u32 v{T+16}, v{T+14}, 12, v{row}
          v_add_u32 v{T+16}, {SCR}, v{T+16}""")
    for s_ in range(4):
        P(f"v_xor_b32 v{T+17}, {32*s_}, v{f}\nv_add_u32 v{AX[s_]}, v{T+15}, v{T+17}\nv_add_u32 v{AB[s_]}, v{T+16}, v{T+17}")
    P(f"""s_lshl_b32 {sT0}, {sW}, 5
          v_xor_b32 v{T+17}, {sT0}, v{f}
          v_add_u32 v{ABC}, v{T+16}, v{T+17}
          v_bfe_u32 v{T+17}, v{VLANE}, 2, 1
          v_bfe_u32 v{T+22}, v{VLANE}, 4, 1
          v_xor_b32 v{T+17}, v{T+17}, v{T+22}
          v_or_b32 v{T+17}, v{T+17}, v{T+21}
          v_cmp_eq_u32 vcc, 0, v{T+17}
          v_mov_b32 v{T+18}, {sONE}
          v_mov_b32 v{S1}, 0
          v_cndmask_b32 v{SEL}, 0, v{T+18}, vcc
          v_mov_b32 v{S2}, 0
          v_mov_b32 v{SEL+1}, v{SEL}
          v_mov_b32 v{SEL+2}, v{SEL}
          v_mov_b32 v{SEL+3}, v{SEL}""")
    P(f"""v_lshlrev_b32 v{VL16}, 4, v{VLANE}
          v_mov_b32 v{T+24}, {OOB}
          s_and_b32 {sT0}, {sW}, 1
          s_lshl_b32 {sT0}, {sT0}, 1
          v_add_u32 v{T+26}, {sT0}, v{T+22}
          v_bfe_u32 v{T+27}, v{VLANE}, 1, 2
          v_xor_b32 v{T+26}, v{T+26}, v{T+27}
          v_and_b32 v{T+27}, 1, v{VLANE}
          v_lshlrev_b32 v{T+27}, 4, v{T+27}
          s_movk_i32 {sT1}, 3584
          v_mad_u32_u24 v{T+27}, v{rr}, {sT1}, v{T+27}
          v_add_u32 v{T+5}, {sJ4}, v{T+26}
          v_cmp_gt_u32 vcc, {sJ4}, v{T+26}
          v_lshl_add_u32 v{VP[0]}, v{T+5}, 5, v{T+27}
          v_add_u32 v{T+5}, 4, v{T+26}
          v_cndmask_b32 v{T+5}, v{T+5}, v{T+26}, vcc
          v_cmp_eq_u32 vcc, 3, v{T+26}
          v_lshl_add_u32 v{PK_VQ}, v{T+5}, 5, v{T+27}
          v_add_u32 v{VP[1]}, 56320, v{VP[0]}
          v_cndmask_b32 v{PK_VQ}, v{PK_VQ}, v{T+24}, vcc
          v_add_u32 v{VP[2]}, {2*56320}, v{VP[0]}
          v_add_u32 v{VP[3]}, {3*56320}, v{VP[0]}""")
    P(f"""s_mul_i32 {sPB}, {sJ}, 224
          s_lshr_b32 {sT0}, {sW}, 1
          s_mul_i32 {sT0}, {sT0}, {8*3584}
          s_add_u32 {sPB}, {sPB}, {sT0}""")
    if OPT.get("cfast", 0):
        P(f"""s_lshl_b32 {sT0}, {sM}, 3
              s_lshr_b32 {sT1}, {sJ}, 1
              s_add_u32 {sT0}, {sT0}, {sT1}
              s_lshl_b32 {sT0}, {sT0}, 2
              s_add_u32 {sT0}, {sT0}, {sW}
              s_lshl_b32 {sT0}, {sT0}, 10
              s_add_u32 {sT1}, {sJ4}, 1
              s_bitcmp1_b32 {sT1}, 1
              s_cselect_b32 {sT0}, {OOB}, {sT0}
              v_add_u32 v{VCT}, {sT0}, v{VL16}
              v_mov_b32 v{VCT+1}, v{VCT}""")
    else:
        P(f"""s_lshl_b32 {sT0}, s2, 1
              s_lshr_b32 {sT1}, {sW}, 1
              s_add_u32 {sT0}, {sT0}, {sT1}
              s_lshl_b32 {sT0}, {sT0}, 10
              s_bitcmp1_b32 {sW}, 0
              s_cselect_b32 {sT1}, {OOB}, {sT0}
              s_cselect_b32 {sT0}, {sT0}, {OOB}
              v_add_u32 v{VCT}, {sT0}, v{VL16}
              v_add_u32 v{VCT+1}, {sT1}, v{VL16}""")
    for g in ORDER[1]:
        P.emit(GRP[g]())
    if OPT["xlook"] >= 3:
        P.emit(dma_X(2) + dma_B(2))
    NPRE = OPT.get("npre", 200)
    mark0 = len(P.l)
    set_srd(iSWS, WS_WIN); set_srd(iSOUT, 4 << 20)
    P(f"""s_lshl_b32 {sFL}, {sM}, 9
          s_lshr_b32 {sT0}, {sJ}, 2
          s_lshl_b32 {sT0}, {sT0}, 7
          s_add_u32 {sFL}, {sFL}, {sT0}
          s_lshl_b32 {sT0}, {sJ4}, 2
          s_add_u32 {sFL}, {sFL}, {sT0}
          s_add_u32 {sFL}, {sFL}, {FL_OFF}
          s_add_u32 {sNON}, {sNON}, 1
          s_cmp_eq_u32 {sW}, 3
          s_cselect_b32 {sFL}, {sFL}, {OOB}
          v_mov_b32 v{VFLA}, {sFL}
          v_cmp_eq_u32 vcc, 0, v{VLANE}""")
    for r in (XE + 1, XE + 2, XE + 3, CE0 + 1, CE0 + 2, CE0 + 3, CE1 + 1, CE1 + 2, CE1 + 3):
        P(f"v_mov_b32 v{r}, 0")
    P(f"v_cndmask_b32 v{VFLA}, v{T+24}, v{VFLA}, vcc")
    P(f"""s_lshl_b32 {sT2}, {sM}, 2
          s_lshr_b32 {sT3}, {sJ}, 2
          s_add_u32 {sT2}, {sT2}, {sT3}
          s_mul_i32 {sT2}, {sT2}, {28*1024}
          s_add_u32 {sT2}, {sT2}, {W2_OFF}""")
    for pz in range(1):
        P(f"""s_xor_b32 {sROT}, {sJ4}, {pz}
              s_sub_u32 {sT3}, {sW}, {sROT}
              s_add_u32 {sT1}, {sW}, 4
              s_sub_u32 {sT0}, {sT1}, {sROT}
              s_cmp_lt_u32 {sW}, {sROT}
              s_cselect_b32 {sT3}, {sT1}, {sT3}
              s_cselect_b32 {sT0}, {sT0}, {sT1}
              s_lshl_b32 {sT3}, {sT3}, 2
              s_add_u32 {sT3}, {sT3}, {sROT}
              s_lshl_b32 {sT3}, {sT3}, 10
              s_add_u32 {sT3}, {sT3}, {sT2}
              v_add_u32 v{VRS+2*pz}, {sT3}, v{VL16}
              s_lshl_b32 {sT0}, {sT0}, 2
              s_add_u32 {sT0}, {sT0}, {sROT}
              s_lshl_b32 {sT0}, {sT0}, 10
              s_add_u32 {sT0}, {sT0}, {sT2}
              s_cmp_eq_u32 {sW}, 3
              s_cselect_b32 {sT0}, {OOB}, {sT0}
              v_add_u32 v{VRS+2*pz+1}, {sT0}, v{VL16}""")
    P(f"""s_mov_b32 {sL2E}, {LOG2E}
          s_mov_b32 {sI2P}, {INV2PI}
          s_lshl_b32 {sT0}, {sJ}, 13
          s_add_u32 {sT0}, {sT0}, {E_OFF}
          s_add_u32 s{iSE}, s{iSWS}, {sT0}
          s_addc_u32 s{iSE+1}, s{iSWS+1}, 0""")
    set_srd(iSE, 8192)
    P(f"""v_lshrrev_b32 v{T+17}, 4, v{VLANE}
          v_bfe_u32 v{T+20}, v{VLANE}, 2, 2
          v_lshlrev_b32 v{PK_TRB}, 7, v{T+20}
          v_lshl_add_u32 v{PK_TRB}, v{T+17}, 12, v{PK_TRB}
          v_lshl_add_u32 v{PK_TRB}, v{T+21}, 3, v{PK_TRB}
          v_bfe_u32 v{PK_SSW}, v{VLANE}, 3, 1
          v_lshl_add_u32 v{PK_SSW}, v{T+22}, 1, v{PK_SSW}
          v_lshlrev_b32 v{PK_SSW}, 5, v{PK_SSW}""")
    P.emit(set_ap("P", sT0))
    seg = T + 23
    P(f"""s_mul_i32 {sT0}, {sW}, 5120
          s_add_u32 {sT0}, {sT0}, {HT}
          v_mul_u32_u24 v{AHW}, 80, v{VC4}
          v_lshl_add_u32 v{AHW}, v{hh}, 5, v{AHW}
          v_add_u32 v{AHW}, {sT0}, v{AHW}
          v_lshl_add_u32 v{AHR}, v{hh}, 3, v{T+20}
          v_mul_u32_u24 v{AHR}, 80, v{AHR}
          v_and_b32 v{T+23}, 1, v{VLANE}
          v_lshl_add_u32 v{AHR}, v{T+23}, 5, v{AHR}
          v_lshl_add_u32 v{AHR}, v{T+22}, 4, v{AHR}
          v_bfe_u32 v{T+23}, v{VLANE}, 1, 1
          v_lshl_add_u32 v{AHR}, v{T+23}, 3, v{AHR}
          v_add_u32 v{AHR}, {sT0}, v{AHR}
          v_lshl_add_u32 v{ARPR}, v{hh}, 2, v{T+20}
          v_lshlrev_b32 v{ARPR}, 6, v{ARPR}
          v_lshl_add_u32 v{ARPR}, v{T+22}, 5, v{ARPR}
          v_lshl_add_u32 v{ARPR}, v{T+21}, 3, v{ARPR}
          v_add_u32 v{ARPR}, {sT0}, v{ARPR}
          v_add_u32 v{RPT}, {sT0}, v{VL16}
          s_lshl_b32 {sT0}, {sW}, 1
          v_add_u32 v{seg}, {sT0}, v{hh}
          v_lshlrev_b32 v{AEXR}, 8, v{seg}
          v_lshl_add_u32 v{AEXR}, v{VC4}, 3, v{AEXR}
          v_add_u32 v{AEXR}, {EXZ}, v{AEXR}
          v_add_u32 v{AEXW}, 1792, v{AEXR}
          s_sub_u32 {sT0}, 15, {sM}
          s_lshl_b32 {sT0}, {sT0}, 9
          v_lshlrev_b32 v{VEW}, 4, v{VC4}
          v_add_u32 v{VEW}, {sT0}, v{VEW}
          v_cmp_eq_u32 vcc, 7, v{seg}
          v_lshlrev_b32 v{T+25}, 9, v{hh}
          v_sub_u32 v{VER}, v{VEW}, v{T+25}
          s_lshl_b32 {sT0}, {sW}, 11
          s_sub_u32 {sT0}, {14*512}, {sT0}
          v_add_u32 v{VER}, {sT0}, v{VER}
          v_cndmask_b32 v{VEW}, v{T+24}, v{VEW}, vcc""")
    tau = T + 25
    P(f"""v_bfe_u32 v{tau}, v{VLANE}, 2, 1
          v_lshlrev_b32 v{tau}, 4, v{tau}
          v_lshl_add_u32 v{tau}, v{T+14}, 2, v{tau}
          v_add_u32 v{tau}, v{tau}, v{T+21}
          s_lshr_b32 {sT0}, {sXB}, 7
          s_lshl_b32 {sT1}, {sJ}, 12
          s_add_u32 {sT0}, {sT0}, {sT1}
          s_add_u32 {sT0}, {sT0}, {ST_OFF}
          s_cmp_eq_u32 {sJ4}, 0
          s_cselect_b32 {sT0}, {sT0}, {OOB}
          v_lshrrev_b32 v{VST}, 2, v{row}
          v_lshl_add_u32 v{VST}, v{T+14}, 3, v{VST}
          v_add_u32 v{VST}, {sT0}, v{VST}
          s_lshl_b32 {sT0}, {sW}, 7
          s_add_u32 {sT0}, {sT0}, {RS}
          v_lshlrev_b32 v{PR}, 2, v{tau}
          v_add_u32 v{PR}, {sT0}, v{PR}
          v_lshlrev_b32 v{ARS}, 6, v{hh}
          v_add_u32 v{ARS}, {sT0}, v{ARS}
          s_lshl_b32 {sT0}, {sW}, 2
          v_lshlrev_b32 v{ACSB_R}, 4, v{VC4}
          v_add_u32 v{ACSB_R}, {CSB}, v{ACSB_R}
          v_add_u32 v{ACSB_W}, {sT0}, v{ACSB_R}
          v_lshlrev_b32 v{ACSG_W}, 2, v{VC4}
          v_add_u32 v{ACSG_W}, {CSG}, v{ACSG_W}""")
    a_, b_, t0, t1 = T + 26, T + 27, T + 1, T + 2
    P(f"""v_lshlrev_b32 v{PLRE}, 16, v{PLRE}
          v_lshlrev_b32 v{PLIM}, 16, v{PLIM}
          v_lshlrev_b32 v{PLDT}, 16, v{PLDT}
          v_mul_f32 v{PLDT}, {sL2E}, v{PLDT}
          v_exp_f32 v{PLDT}, v{PLDT}
          v_cvt_f32_u32 v{T+3}, v{seg}""")
    P.emit(bfr(PLDT, PLDT))
    P(f"""v_mul_f32 v{a_}, v{PLDT}, v{PLRE}
          v_mul_f32 v{b_}, v{PLDT}, v{PLIM}
          v_mul_f32 v{a_}, {sL2E}, v{a_}
          v_mul_f32 v{b_}, {sI2P}, v{b_}
          v_mul_f32 v{T+3}, {hex(f2u(16.0))}, v{T+3}""")
    cpow(None, L1R, L1I, a_, b_, t0, t1)
    cpow(hex(f2u(16.0)), L16R, L16I, a_, b_, t0, t1)
    cpow(hex(f2u(128.0)), L128R, L128I, a_, b_, t0, t1)
    cpow(hex(f2u(256.0)), L256R, L256I, a_, b_, t0, t1)
    cpow(f"v{T+3}", LSR, LSI, a_, b_, t0, t1)
    P(f"""v_mul_f32 v{t1}, v{PLRE}, v{PLRE}
          v_fma_f32 v{t1}, v{PLIM}, v{PLIM}, v{t1}
          v_rcp_f32 v{t1}, v{t1}
          v_add_f32 v{t0}, -1.0, v{L1R}
          v_mul_f32 v{KR}, v{t0}, v{PLRE}
          v_fma_f32 v{KR}, v{L1I}, v{PLIM}, v{KR}
          v_mul_f32 v{KI}, v{L1I}, v{PLRE}
          v_fma_f32 v{KI}, -v{t0}, v{PLIM}, v{KI}
          v_add_f32 v{t1}, v{t1}, v{t1}
          v_mul_f32 v{KR}, v{KR}, v{t1}
          v_mul_f32 v{KI}, v{KI}, v{t1}
          v_mov_b32 v{VNON}, {sNON}""")
    if OPT.get('p2early', 1):
        p2scal()
    mark1 = len(P.l)
    P(f"""s_lshl_b32 {sT3}, {sM}, 2
          s_add_u32 {sT3}, {sT3}, {sW}
          s_mul_i32 {sT2}, {sT3}, 176
          s_lshr_b32 {sT0}, {sJ}, 2
          s_mul_i32 {sT0}, {sT0}, 44
          s_add_u32 {sT2}, {sT2}, {sT0}
          s_add_u32 {sT2}, {sT2}, {sJ4}
          s_lshl_b32 {sT2}, {sT2}, 10
          s_mul_i32 {sT0}, {sJ4}, 3072
          s_add_u32 {sHB}, {sT2}, {sT0}
          s_add_u32 {sHB}, {sHB}, 16384""")
    for t in range(4):
        P(f"s_add_u32 {sT0}, {sW}, {t}\ns_and_b32 {sT0}, {sT0}, 3\ns_lshl_b32 {sT0}, {sT0}, 12\ns_add_u32 {sHT[t]}, {sT2}, {sT0}")
    P(f"s_add_u32 {sT2}, {sT2}, 32768")
    for t in range(3):
        tab = sum((((w + t) % 3) << (4 * w)) for w in range(4))
        P(f"""s_lshl_b32 {sT0}, {sW}, 2
              s_lshr_b32 {sT0}, {tab}, {sT0}
              s_and_b32 {TB[t]}, {sT0}, 3
              s_lshl_b32 {sT0}, {TB[t]}, 12
              s_add_u32 {sHT[4+t]}, {sT2}, {sT0}""")

    if not OPT.get('p2early', 1):
        p2scal()
    nlate = len(P.l) - mark1
    rest = P.l[mark0:]
    del P.l[mark0:]
    groups, cur = [], []
    for k, ins in enumerate(rest):
        cur.append(ins)
        live = False
        for r in ("scc", "s100", "s101"):
            for nx in rest[k + 1:k + 8]:
                if r in nx.rd: live = True; break
                if r in nx.wr: break
        if not live:
            groups.append(cur); cur = []
    assert not cur
    k = 0
    while k < nlate:
        g = groups.pop(); LATE.insert(0, g); k += len(g)
    assert k == nlate
    n = 0
    while groups and n < NPRE:
        g = groups.pop(0); P.l.extend(g); n += len(g)
    DEFER.extend(groups)
    stamp(2)
    P('Lmark0:')


def dma_B(n):
    base = (SCR + (n >> 1) * 16384 if n < 4 else ((n - 4) >> 1) * 16384) + (n & 1) * 2048
    return [f"s_add_u32 m0, {sWL}, {base}", f"s_add_u32 {sSO}, {sBB}, {KB[n]}",
            (f"buffer_load_dwordx4 v{VB}, {SBR}, {sSO} offen" + (" nt" if n < OPT.get("ntb", 0) else "") + " lds", f"B{n}"),
            f"s_add_u32 m0, {sWL}, {base+1024}",
            (f"buffer_load_dwordx4 v{VB}, {SBI}, {sSO} offen" + (" nt" if n < OPT.get("ntb", 0) else "") + " lds", f"B{n}")]

def dma_X(n):
    return [f"s_add_u32 m0, {sWL}, {n*16384}", f"s_add_u32 {sSO}, {sXB}, {KB[n]}"] + \
           [(f"buffer_load_dwordx4 v{VX[sb]}, {SX}, {sSO} offen offset:{sb*1024}" + (" nt" if n < OPT.get("ntx", 0) else "") + " lds", f"X{n}") for sb in range(4)]

def dma_pass(ps, b):
    vp = VP if ps == "P" else VX
    r = [f"s_add_u32 m0, {sWL}, {((b+2)%8)*16384}", f"s_mul_i32 {sSO}, {KB[b]}, 1792", f"s_add_u32 {sSO}, {sSO}, {sPB}"]
    return r + [(f"buffer_load_dwordx4 v{vp[ks]}, {SW}, {sSO} offen offset:{ks*1024}" + (" nt" if (ps, b) == ("Q", 0) and OPT.get("ntq", 0) else "") + " lds", f"{ps}{b}") for ks in range(4)]

def set_ap(ps, tmp):
    r = []
    for t in range(4 if ps == "P" else 3):
        if ps == "P":
            r += [f"s_add_u32 {tmp}, {sW}, {t}", f"s_and_b32 {tmp}, {tmp}, 3", f"s_lshl_b32 {tmp}, {tmp}, 5"]
        else:
            r += [f"s_lshl_b32 {tmp}, {TB[t]}, 5"]
        r += [f"v_xor_b32 v{AP[t]}, {tmp}, v{PK_SSW}", f"v_add_u32 v{AP[t]}, v{PK_TRB}, v{AP[t]}", f"v_add_u32 v{APH[t]}, 0x10000, v{AP[t]}"]
    return r

ringpos = [0]
def ring():
    r = ARING + 4 * (ringpos[0] % NRING)
    ringpos[0] += 1
    return r

def pop_vm(q):
    n = 0
    while q:
        x = q.pop(0)
        P.emit([x]); n += 1
        if isvm(x):
            break
    return n


REPACK = [(f"buffer_store_dwordx4 {vr(RPW+4*g,4)}, v{VRS+g}, {SWS}, 0 offen sc1", "pub1") for g in range(2)]

def landing():
    XL = OPT["xlook"]
    npass = [1]
    XT = [ACC_G[1], ACC_G[0]]
    BF = [128, 168]
    def reads(n):
        off = (n & 3) * 16384 + (0x10000 if False else 0)
        boff = ((n & 3) >> 1) * 16384 + (n & 1) * 2048
        r = [(f"ds_read_b128 {vr(XT[n&1]+4*s_,4)}, v{AX[s_]} offset:{off}", f"r{n}") for s_ in range(4)]
        r += [(f"ds_read_b128 {ar(BF[n&1]+8*s_+4*mat,4)}, v{AB[s_]} offset:{boff+mat*1024}", f"r{n}") for s_ in range(4) for mat in range(2)]
        r += [(f"ds_read_b128 {ar(BF[n&1]+32+4*mat,4)}, v{ABC} offset:{boff+mat*1024}", f"r{n}") for mat in range(2)]
        return r
    def sync(n):
        if n == 4:
            for s_ in range(4):
                P(f"v_add_u32 v{AX[s_]}, 0x10000, v{AX[s_]}\nv_add_u32 v{AB[s_]}, {(-SCR) & 0xffffffff}, v{AB[s_]}")
            P(f"v_add_u32 v{ABC}, {(-SCR) & 0xffffffff}, v{ABC}")
        P(f"@waitvm X{n},B{n}\ns_barrier")
        if OPT.get("fine"): stamp(48 + n)
    def vmq(n):
        nn = n + 1 + XL
        q = []
        if nn < 8:
            q += dma_X(nn) + dma_B(nn)
        else:
            for _ in range(OPT.get("pper", 1)):
                if npass[0] < min(6, n - 1):
                    q += dma_pass("P", npass[0]); npass[0] += 1
        if n < len(ORDER[2]):
            for g in ORDER[2][n]: q += GRP[g]()
        if n == OPT.get("rpn", 7):
            q += REPACK
        return q
    sync(0)
    P.emit(reads(0))
    P.emit(dma_X(XL) + dma_B(XL))
    for n in range(8):
        P(f"@waitlg r{n}")
        q = vmq(n)
        for kk in range(16):
            P(f"v_dot2_f32_bf16 v{S1}, v{XT[n&1]+kk}, {sONE}, v{S1}\nv_dot2_f32_bf16 v{S2}, v{XT[n&1]+kk}, v{XT[n&1]+kk}, v{S2}")
            if kk in (1, 9): pop_vm(q)
        rd = []
        if n < 7:
            sync(n + 1)
            rd = reads(n + 1)
        if n == OPT.get('p0w', 5):
            rd += [f"v_add_u32 v{T}, {sWL}, v{VL16}"] + [(f"ds_write_b128 v{T}, {ar(P0R+4*ks,4)} offset:{2*16384+ks*1024}", f"r{n+1}") for ks in range(4)]
        if n == OPT.get('rpn', 7) - 1:
            rd += [f"ds_write_b128 v{RPT}, {vr(RPW+4*g,4)} offset:{g*1024}" for g in range(2)]
            rd += [(f"ds_read_b64_tr_b16 {vr(RPW+4*g+2*a,2)}, v{ARPR} offset:{g*1024+a*512}", f"r{n+1}") for g in range(2) for a in range(2)]
        for k in range(8):
            s_, mat = k >> 1, k & 1
            acc = vr(ACC_S + 16 * mat, 16)
            P(f"v_mfma_f32_32x32x16_bf16 {acc}, {vr(XT[n&1]+4*s_,4)}, {ar(BF[n&1]+8*s_+4*mat,4)}, {'0' if (n == 0 and s_ == 0) else acc}")
            nr = 3 if (len(rd) > 2 * (8 - k) or k < OPT.get('lquiet', 0)) else 2
            P.emit(rd[:nr]); rd = rd[nr:]
            LQ = OPT.get("lquiet", 0) if n < 7 else 0
            if k >= LQ:
                per = 16 // (8 - LQ)
                for z in range(per * (k - LQ), per * (k - LQ + 1)):
                    P(f"v_accvgpr_write_b32 a{AXF+16*n+z}, v{XT[n&1]+z}")
            nb = pop_vm(q) if k >= 2 or len(q) > 12 else 0
            pop_defer((OPT.get('dfill', 2) if k >= OPT.get('lquiet', 0) else 0) - nb)
        for mat in range(2):
            d = vr(CSBR + 4 * mat, 4)
            P(f"v_mfma_f32_16x16x32_bf16 {d}, {vr(SEL,4)}, {ar(BF[n&1]+32+4*mat,4)}, {'0' if n == 0 else d}")
        P.emit(rd + q)
    print('deferred left after landing:', sum(len(g) for g in DEFER))
    pop_defer(9999)
    P('Lmark1:')
    stamp(3)
    return npass[0]


def split_cs(src, ce, t0, t1):
    return bfr(t0, src) + [f"v_sub_f32 v{t1}, v{src}, v{t0}", f"v_cvt_pk_bf16_f32 v{ce}, v{t0}, v{t1}"]


def passes(npass):
    NT = {"P": 4, "Q": 3}
    GI = lambda ps, t: t if ps == "P" else 4 + t
    def order(nt, nto):
        o = [(t, b, ks) for b in range(8 - nto) for ks in range(4) for t in range(nt)]
        return o + [(t, b, ks) for t in range(nt) for b in range(8 - nto, 8) for ks in range(4)]
    frs = [("P",) + x for x in order(4, OPT["to1"])] + [("Q",) + x for x in order(3, OPT["to2"])]
    last_use, tile_last = {}, {}
    for k, (ps, t, b, ks) in enumerate(frs):
        last_use[(ps, b)] = k
        tile_last[(ps, t)] = k
    NF = len(frs)
    last1 = 127
    st = dict(done=-1, bars=0, marks={}, gap=0, lastvm=-9, lastdma=-9, quiet=-1)
    released = {"free": True}
    pending = [("P", b) for b in range(npass, 8)] + [("Q", b) for b in range(8)]
    prev_occ = {}
    for b in range(8):
        prev_occ[("P", b)] = "free" if b < 6 else "S"
        prev_occ[("Q", b)] = ("P", b)
    dma_q, opened = [], set()
    early_w = [w_load(GSTEP[g], ntl) for g in sorted(range(12), key=lambda g: ((g & 3) if OPT.get('lead', 0) else 0, g)) for ntl in range(2)]
    early_c = list(range(8))
    late_w = [((2 * (g - 12) + ntl) >> 2, w_load(GSTEP[g], ntl)) for g in range(12, 28) for ntl in range(2)]
    alt = [False]
    h_done = [0]

    def barrier(tagwait=None):
        if tagwait:
            P(f"@waitvm {tagwait}")
        P("@waitlg xch")
        if OPT.get("fine"): stamp(16 + st["bars"])
        P("s_barrier")
        st["quiet"] = st["gap"] + OPT.get("quiet", 0)
        st["bars"] += 1
        released["S"] = True
        for key, lu in last_use.items():
            if lu <= st["done"]:
                released[key] = True

    gate_done = lambda k: ("gate", lambda: st["done"] >= k)
    gate_bar = lambda name: ("gate", lambda: name in st["marks"] and st["bars"] > st["marks"][name])
    mark = lambda name: ("mark", name)
    gate_mark = lambda name: ("gate", lambda: name in st["marks"])
    call = lambda f: ("call", f)

    P(f"v_mov_b32 v{T+8}, 0\nv_mov_b32 v{T+9}, 0\ns_lshl_b32 {sT2}, {sW}, 9\ns_add_u32 {sT2}, {sT2}, {EXZ}")
    P(f"v_lshrrev_b32 v{T+10}, 1, v{VL16}\nv_add_u32 v{T+10}, {sT2}, v{T+10}")
    P(f"ds_write_b64 v{T+10}, {vr(T+8,2)}", tag="xch")
    u0, u1, mean, mb, den = T, T + 1, T + 2, T + 4, T + 5
    P(f"v_mov_b32 v{u0}, v{S1}\nv_mov_b32 v{u1}, v{S2}")
    P(f"ds_write_b32 v{ACSB_W}, v{CSBR}\nds_write_b32 v{ACSB_W}, v{CSBI} offset:512", tag="xch")

    e1 = [f"ds_read_b128 {vr(T+12,4)}, v{ACSB_R}", f"ds_read_b128 {vr(T+16,4)}, v{ACSB_R} offset:512",
          f"v_permlane32_swap_b32 v{S1}, v{u0}", f"v_permlane32_swap_b32 v{S2}, v{u1}",
          f"v_add_f32 v{S1}, v{S1}, v{u0}", f"v_add_f32 v{S2}, v{S2}, v{u1}",
          f"v_mul_f32 v{mean}, {hex(f2u(1/512))}, v{S1}", f"v_mul_f32 v{S2}, {hex(f2u(1/512))}, v{S2}",
          f"v_fma_f32 v{S2}, -v{mean}, v{mean}, v{S2}", f"v_max_f32 v{S2}, 0, v{S2}"]
    e1 += bfr(S2, S2) + [f"v_add_f32 v{S2}, {hex(f2u(1e-5))}, v{S2}"] + bfr(S2, S2) + [f"v_sqrt_f32 v{S2}, v{S2}"]
    e1 += bfr(mb, mean) + bfr(den, S2)
    e1 += [f"v_rcp_f32 v{S1}, v{den}", f"v_xor_b32 v{u0}, 0x80000000, v{mb}", f"v_lshrrev_b32 v{u1}, 16, v{u0}",
           (f"ds_write_b32 v{PR}, v{S1}", "rsw"), f"v_or_b32 v{u0}, v{u0}, v{u1}",
           ("atomic", [f"v_cmp_gt_u32 vcc, 32, v{VLANE}", f"v_mov_b32 v{SIG}, v{den}", f"v_mul_f32 v{C1}, {sL2E}, v{S1}",
                       f"v_cndmask_b32 v{XE}, 0, v{u0}, vcc"])]
    for mat, b in ((0, T + 12), (1, T + 16)):
        e1 += [f"v_add_f32 v{b}, v{b}, v{b+1}", f"v_add_f32 v{b+2}, v{b+2}, v{b+3}", f"v_add_f32 v{b}, v{b}, v{b+2}"]
        e1 += split_cs(b, CE0 if mat == 0 else CE1, b + 1, b + 2)
    R16 = T + 6
    e1 += ["@waitlg rsw"] + [f"ds_read_b128 {vr(R16+4*k,4)}, v{ARS} offset:{16*k}" for k in range(4)]
    e1 += [f"v_mfma_f32_32x32x16_bf16 {vr(ACC_S,16)}, {vr(XE,4)}, {vr(CE0,4)}, {vr(ACC_S,16)}",
           f"v_mfma_f32_32x32x16_bf16 {vr(ACC_S+16,16)}, {vr(XE,4)}, {vr(CE1,4)}, {vr(ACC_S+16,16)}",
           f"v_sub_f32 v{C1}, 0, v{C1}",
           (f"buffer_store_dwordx2 {vr(mb,2)}, v{VST}, {SWS}, 0 offen sc1", "pubA")]
    e1 += [f"v_add_u32 v{AX[s_]}, 0xffff0000, v{AX[s_]}" for s_ in range(4)]
    e1 += [f"v_mov_b32 v{VX[0]}, v{PK_VQ}"] + [f"v_add_u32 v{VX[k]}, {k*56320}, v{PK_VQ}" for k in range(1, 4)] + [mark("vq")]
    for q in range(16):
        e1 += [f"v_mul_f32 v{ACC_S+q}, v{ACC_S+q}, v{R16+q}", f"v_mul_f32 v{ACC_S+16+q}, v{ACC_S+16+q}, v{R16+q}"]
    ea, eb = (T + 0, T + 1), (T + 2, T + 3)
    cur = (ACC_S, ACC_S + 16)
    for q in range(1, 16):
        nxt = ea if q % 2 else eb
        e1 += cstep(nxt, (L1R, L1I), cur, (ACC_S + q, ACC_S + 16 + q))
        cur = nxt
    assert cur == ea
    e1 += [(f"ds_write_b64 v{AEXW}, {vr(ea[0],2)}", "xch"), mark("ex")]
    e1 += [("delay", 1), call(barrier)] if OPT["exbar"] else [gate_bar("ex")]
    e1 += [f"ds_read_b64 {vr(T+8+2*k,2)}, v{AEXR} offset:{256*k}" for k in range(7)] + [("delay", 2)]
    cur = (T + 8, T + 9)
    for k in range(1, 7):
        u = (T + 8 + 2 * k, T + 9 + 2 * k)
        nx = (PR, PI) if k == 6 else u
        e1 += cstep(nx, (L16R, L16I), cur, u)
        cur = nx
    e1 += [f"v_mov_b32 v{T+5}, v{VNON}", f"v_mov_b32 v{T+7}, v{VNON}"] + cstep((T + 4, T + 6), (L16R, L16I), (PR, PI), ea)
    e1 += [(f"buffer_store_dwordx4 {vr(T+4,4)}, v{VEW}, {SE}, 0 offen sc1", "pubE"), call(lambda: stamp(4)), ("delay", 1), mark("e1")]

    cl = [gate_mark("epiP3"), ("delay", OPT.get("cld", 16)), "@waitvm pubA", mark("clr"), gate_bar("clr"), flag_store(1), call(lambda: stamp(5)), mark("flA")]
    lt = [("atomic", [i.text for i in g]) for g in LATE] + [mark("late")]
    ku = [gate_mark("e1"), gate_mark("late"), f"s_load_dwordx2 s[{pDSK}:{pDSK+1}], s[0:1], 64"]
    for q in list(range(16)) + [-1]:
        re_, im_ = (ACC_S + q, ACC_S + 16 + q) if q >= 0 else (PR, PI)
        t0, t1 = T + 4 + 2 * (q & 1), T + 5 + 2 * (q & 1)
        ku += [f"v_mul_f32 v{t0}, v{KI}, v{im_}", f"v_mul_f32 v{t1}, v{KI}, v{re_}",
               f"v_fma_f32 v{re_}, v{KR}, v{re_}, -v{t0}", f"v_fma_f32 v{im_}, v{KR}, v{im_}, v{t1}"]
    ku += [f"v_lshrrev_b32 v{T+4}, 3, v{VLANE}", f"v_and_b32 v{T+5}, 7, v{VLANE}", f"v_lshrrev_b32 v{T+6}, 1, v{T+4}",
           f"v_xor_b32 v{T+6}, v{T+5}, v{T+6}", f"v_lshlrev_b32 v{T+6}, 4, v{T+6}",
           f"v_lshl_add_u32 v{VC[0]}, v{T+4}, 10, v{T+6}", f"v_xor_b32 v{VC[1]}, 64, v{VC[0]}",
           f"v_add_u32 v{VC[2]}, {2*7168}, v{VC[0]}", f"v_add_u32 v{VC[3]}, {3*7168}, v{VC[1]}", f"v_add_u32 v{VC[1]}, 7168, v{VC[1]}"]
    ku += [("atomic", [f"s_and_b32 {sT2}, s59, 1", f"s_lshl_b32 {sT2}, {sT2}, 5", f"s_lshr_b32 {sT3}, {sMU}, 6", f"s_or_b32 {sT2}, {sT2}, {sT3}"] +
                      [f"v_xor_b32 v{AX[s_]}, {sT2}, v{AX[s_]}" for s_ in range(4)])]
    ku += [f"v_add_u32 v{AXH[s_]}, 0x10000, v{AX[s_]}" for s_ in range(4)]
    ku += [("atomic", [f"s_lshl_b32 {sT2}, {TB[0]}, 7", f"v_add_u32 v{ACSB_W}, {sT2}, v{ACSG_W}", f"s_lshl_b32 {sT2}, {sW}, 7", f"v_add_u32 v{ACSG_W}, {sT2}, v{ACSG_W}"]),
           ("atomic", [f"s_lshl_b32 {sT2}, {sW}, 2", f"s_add_u32 {sT2}, {sT2}, {sM}", f"v_lshrrev_b32 v{VEW}, 5, v{VLANE}",
                       f"v_add_u32 v{VEW}, {sT2}, v{VEW}"]),
           f"v_add_u32 v{VEW}, -12, v{VEW}", f"v_max_i32 v{VEW}, 0, v{VEW}", f"v_min_i32 v{VEW}, 5, v{VEW}", f"v_and_b32 v{VEW}, 6, v{VEW}",
           f"v_mul_lo_u32 v{VEW}, v{VEW}, {sNON}",
           f"v_mul_f32 v{L16R}, v{L256I}, v{L256I}", f"v_mul_f32 v{L16I}, v{L256R}, v{L256I}",
           f"v_fma_f32 v{L16R}, v{L256R}, v{L256R}, -v{L16R}", f"v_add_f32 v{L16I}, v{L16I}, v{L16I}",
           ("atomic", [f"s_lshl_b32 {sT2}, {sW}, 8", f"s_add_u32 {sT2}, {sT2}, {EXZ}", f"v_lshlrev_b32 v{VST}, 3, v{VC4}", f"v_add_u32 v{PRW}, {sT2}, v{VST}"]),
           f"v_add_u32 v{VST}, {EXZ}, v{VST}", mark("vc")]
    vo = [gate_mark("e1")] + ([] if OPT.get('p2early', 1) else [gate_mark("late")])
    vo += [("atomic", [f"s_lshl_b32 {sXB}, s59, 10", f"v_add_u32 v{VO4[0]}, {sXB}, v{VL16}"])]
    vo += [f"s_sub_u32 {sWQ[k]}, {sWA[k][0]}, {sMU}" for k in range(2)]
    vo += [f"v_xor_b32 v{VO4[k]}, {k*1024}, v{VO4[0]}" for k in range(1, 4)]
    vo += [f"v_and_b32 v{T+20}, 3, v{VLANE}", f"v_lshlrev_b32 v{T+20}, 2, v{T+20}", f"v_bfe_u32 v{T+21}, v{VLANE}, 2, 1",
           f"v_lshl_add_u32 v{T+21}, v{T+21}, 9, v{T+20}", mark("vo")]
    fw = [gate_done(OPT.get("fw", 8)), "@waitvm pub1", mark("p1"), gate_bar("p1"), flag_store(0)]
    ld, chk = poll(T + 22, T + 21, sPW)
    pl = [gate_mark("vo"), gate_done(OPT["pa"]), ld, ("delay", OPT["pad"]), ("atomic", chk), call(lambda: stamp(6)), mark("pollW")]
    lda = (f"buffer_load_dword v{T+22}, v{T+21}, {SWS}, {sXB} offen sc1", "poll")
    eva = [f"v_cmp_ne_u32 vcc, {sBB}, v{T+22}"]
    pl += [gate_done(OPT.get("pe", 150)), f"v_lshrrev_b32 v{T+21}, 2, v{VLANE}", f"v_lshl_add_u32 v{T+21}, v{T+21}, 7, v{T+20}",
           ("atomic", [f"s_lshl_b32 {sXB}, {sW}, 11", f"s_add_u32 {sXB}, {sXB}, {FL_OFF}", "s_cmp_eq_u32 s2, 0",
                       f"s_cselect_b32 {sXB}, {sXB}, {OOB}", f"s_cselect_b32 {sBB}, {sNON}, 0", f"s_cselect_b32 {sROT}, {EP_OFF - FL_OFF}, {OOB}"]),
           lda, ("delay", OPT["pad"]), ("atomic", eva + retry_check(eva, [lda], 8)), mark("epok")]

    ce_flip = [0]
    def glu_epi(ps, t):
        gi = GI(ps, t)
        acc = ACC_G[gi]
        pso = 0 if ps == "P" else 512
        r = [gate_done(tile_last[(ps, t)])]
        ce = CE0 if ce_flip[0] % 2 == 0 else CE1
        ce_flip[0] += 1
        tt = T + 24
        acs = ACSG_W if ps == "P" else ACSB_W
        pso = 0 if ps == "P" else 1024
        if t == 0:
            r += [("delay", 2), (f"ds_write_b32 v{acs}, v{CSGA} offset:{pso}", "xch"),
                  (f"ds_write_b32 v{acs}, v{CSGA} offset:{pso + 128*NT[ps]}", "xch"), mark(f"csg{ps}")]
            r += split_cs(CSGA, ce, tt + 1, tt + 2) + [mark(f"csgfree{ps}")]
        else:
            pre = ([call(barrier)] if t == 1 and OPT.get("csbar", 1) else []) + [gate_bar(f"csg{ps}"),
                   f"ds_read_b32 v{tt+3}, v{acs} offset:{pso + 128*t}", ("delay", 2)] + split_cs(tt + 3, ce, tt + 1, tt + 2)
            r = pre + r
        r += [f"v_mfma_f32_32x32x16_bf16 {vr(acc,16)}, {vr(ce,4)}, {vr(XE,4)}, {vr(acc,16)}", ("delay", 2)]
        for hf in range(2):
            es = range(4 * hf, 4 * hf + 4)
            r += [f"v_mul_f32 v{acc+e}, v{C1}, v{acc+e}" for e in es]
            r += [f"v_exp_f32 v{acc+e}, v{acc+e}" for e in es]
            r += [f"v_fma_f32 v{acc+e}, v{acc+e}, v{SIG}, v{SIG}" for e in es]
            r += [f"v_rcp_f32 v{acc+e}, v{acc+e}" for e in es]
            r += [f"v_mul_f32 v{acc+8+e}, v{acc+8+e}, v{acc+e}" for e in es]
        r += [f"v_cvt_pk_bf16_f32 v{acc+k}, v{acc+8+2*k}, v{acc+9+2*k}" for k in range(4)]
        r += [(f"buffer_store_dwordx4 {vr(acc,4)}, v{VL16}, {SWS}, {sHT[gi]} offen sc1", "pubA" if ps == "P" else "pubB"), mark(f"epi{ps}{t}")]
        return r
    epi = [gate_mark("vc")]
    for t in range(4):
        epi += glu_epi("P", t)
    epiq = [gate_mark("epiP3")]
    for t in range(3):
        epiq += glu_epi("Q", t)

    EL = ACC_G[0]
    eloads = [(f"buffer_load_dwordx4 {vr(EL+4*i,4)}, v{VER}, {SE}, 0 offen offset:{(1-i)*1024} sc1", "el") for i in range(2)]
    l1 = [gate_mark("epiP0"), gate_done(OPT["el"])] + eloads + [("delay", OPT["eld"])]
    ev = [f"v_add_u32 v{T+16}, v{EL+1}, v{EL+3}", f"v_add3_u32 v{T+16}, v{T+16}, v{EL+5}, v{EL+7}", f"v_cmp_ne_u32 vcc, v{VEW}, v{T+16}"]
    l1 += ev[:-1] + [("atomic", ev[-1:] + retry_check(ev, eloads)), call(lambda: stamp(7))]
    cur = (EL + 4, EL + 6)
    l1 += cstep(cur, (L256R, L256I), (EL, EL + 2), cur)
    sa, sb_ = (T + 16, T + 17), (T + 18, T + 19)
    l1 += [f"v_mov_b32 v{sa[0]}, v{cur[0]}", f"v_mov_b32 v{sa[1]}, v{cur[1]}", f"s_nop 0",
           f"v_permlane32_swap_b32 v{cur[0]}, v{sa[0]}", f"v_permlane32_swap_b32 v{cur[1]}, v{sa[1]}"]
    l1 += cstep(sa, (L128R, L128I), cur, sa)
    l1 += [(f"ds_write_b64 v{PRW}, {vr(sa[0],2)}", "xch"), mark("xw"), (gate_bar("xw") if not OPT.get("xbar", 0) else call(barrier))]
    l1 += [f"ds_read_b64 {vr(EL+8+2*k,2)}, v{VST} offset:{256*k}" for k in range(4)] + [("delay", 2)]
    cur = (EL + 8, EL + 9)
    for k in range(1, 4):
        u = (EL + 8 + 2 * k, EL + 9 + 2 * k)
        nx = sa if k == 3 else u
        l1 += cstep(nx, (L16R, L16I), cur, u)
        cur = nx
    l1 += [f"v_mul_f32 v{sb_[0]}, v{KI}, v{sa[1]}", f"v_mul_f32 v{sb_[1]}, v{KI}, v{sa[0]}",
           f"v_fma_f32 v{sa[0]}, v{KR}, v{sa[0]}, -v{sb_[0]}", f"v_fma_f32 v{sa[1]}, v{KR}, v{sa[1]}, v{sb_[1]}"]
    l1 += cstep((PR, PI), (LSR, LSI), sa, (PR, PI))
    cur = (PR, PI)
    for q in range(16):
        nxt = (ACC_S + q, ACC_S + 16 + q)
        l1 += cstep(nxt, (L1R, L1I), cur, nxt)
        cur = nxt
        if q % 2 == 1:
            l1 += [f"v_cvt_pk_bf16_f32 v{T+(q>>1)}, v{ACC_S+q-1}, v{ACC_S+q}",
                   f"v_cvt_pk_bf16_f32 v{T+8+(q>>1)}, -v{ACC_S+16+q-1}, -v{ACC_S+16+q}"]
    l1 += [(f"ds_write_b128 v{AHW}, {vr(T,4)}", "htw"), (f"ds_write_b128 v{AHW}, {vr(T+4,4)} offset:16", "htw"),
           (f"ds_write_b128 v{AHW}, {vr(T+8,4)} offset:{32*80}", "htw"), (f"ds_write_b128 v{AHW}, {vr(T+12,4)} offset:{32*80+16}", "htw"),
           ("delay", 2), "@waitlg htw"]
    l1 += [f"ds_read_b64_tr_b16 {vr(EL+4*u+2*a,2)}, v{AHR} offset:{(16*u+4*a)*80}" for u in range(4) for a in range(2)]
    l1 += [("delay", 2)]
    l1 += [(f"buffer_store_dwordx4 {vr(EL+4*u,4)}, v{VL16}, {SWS}, {sHB} offen offset:{u*1024} sc1", "pubB") for u in range(4)]
    l1 += [call(lambda: stamp(8)), mark("l1")]

    tasks = {0: [fw, e1, vo, pl, lt, cl, ku, epi, l1, epiq], 1: [fw, e1, vo, pl, lt, cl, ku, l1, epi, epiq], 2: [fw, e1, vo, pl, lt, cl, ku, epi, epiq, l1]}[OPT.get("prio", 0)]
    tpos = [0] * len(tasks)
    tdelay = [0] * len(tasks)

    def fill(budget, flush=False, maxn=10**9):
        progress = True
        cnt = 0
        while (budget > 0 or flush) and progress and cnt < maxn:
            progress = False
            for ti, tk in enumerate(tasks):
                while tpos[ti] < len(tk):
                    it = tk[tpos[ti]]
                    if isinstance(it, tuple) and it[0] == "gate":
                        if it[1]():
                            tpos[ti] += 1; continue
                        break
                    if isinstance(it, tuple) and it[0] == "mark":
                        st["marks"][it[1]] = st["bars"]; tpos[ti] += 1
                        if OPT.get("v"): print("  mark", it[1], "at frag", st["done"], "gap", st["gap"])
                        continue
                    if isinstance(it, tuple) and it[0] == "delay":
                        tdelay[ti] = st["gap"] + it[1]; tpos[ti] += 1; continue
                    break
                if tpos[ti] >= len(tk):
                    continue
                it = tk[tpos[ti]]
                if isinstance(it, tuple) and it[0] == "gate":
                    continue
                if tdelay[ti] > st["gap"] and not flush:
                    continue
                if st["gap"] <= st["quiet"] and not flush:
                    txt = it if isinstance(it, str) else (" ".join(it[1]) if it[0] == "atomic" else it[0] if isinstance(it[0], str) else "")
                    if any(w.startswith("v_") and not w.startswith("v_mfma") for w in txt.split()):
                        continue
                n0 = len(P.l)
                if isinstance(it, tuple) and it[0] == "call":
                    it[1]()
                elif isinstance(it, tuple) and it[0] == "atomic":
                    P.emit(it[1])
                elif isvm(it):
                    if (st["gap"] - st["lastvm"] < OPT["vgap"] or st["gap"] == st["lastdma"]) and not flush:
                        continue
                    P.emit([it]); st["lastvm"] = st["gap"]; budget -= OPT.get("vcost", 0)
                else:
                    P.emit([it])
                c = sum(i.cost for i in P.l[n0:])
                budget -= c; cnt += c
                if P.l[-1].kind == "mfma":
                    budget = OPT["budget"]; st["gap"] += 1
                tpos[ti] += 1
                progress = True
                break
        return progress if flush else budget

    OPENS = {ps: [[int(c) for c in g] for g in SOPT.get("op" + ps, d).split(".")] for ps, d in (("P", "0.1"), ("Q", "0.1"))}
    fr_ring = {}
    def issue_reads(k):
        ps, t, b, ks = frs[k]
        n = 0
        if k == last1 + 1:
            sa_ = set_ap("Q", sT1)
            P.emit(sa_); n += len(sa_)
        if (ps, b) not in opened:
            grp = [b]
            for g_ in OPENS[ps]:
                if g_[0] == b: grp = g_
            for bb in grp:
                assert (ps, bb) not in pending and not any(isinstance(x, tuple) and x[1] == f"{ps}{bb}" for x in dma_q), f"block {ps}{bb} not issued in time"
                opened.add((ps, bb))
            barrier(",".join(f"{ps}{bb}" for bb in grp))
            n += 2
        sl = (b + 2) % 8
        a = AP[t] if sl < 4 else APH[t]
        off = (sl & 3) * 16384 + ks * 1024
        r = ring()
        fr_ring[k] = r
        P(f"ds_read_b64_tr_b16 {ar(r,2)}, v{a} offset:{off}\nds_read_b64_tr_b16 {ar(r+2,2)}, v{a} offset:{off+512}", tag=f"f{k}")
        return n + 2

    LOOK = OPT["look"]
    for k in range(LOOK):
        issue_reads(k)
    seen = set()
    for k, (ps, t, b, ks) in enumerate(frs):
        acc = vr(ACC_G[GI(ps, t)], 16)
        budget = OPT["budget"] if "e1" in st["marks"] else OPT["ebudget"]
        if k % 2 == 0:
            P(f"@waitlg f{k},f{min(k+1, NF-1)}")
            budget -= 1
        if ps == "Q" and (ps, t) not in seen:
            assert all(m in st["marks"] for m in ("e1", "csgfreeP")), st["marks"]
        P(f"v_mfma_f32_32x32x16_bf16 {acc}, {ar(fr_ring[k],4)}, {ar(AXF+16*b+4*ks,4)}, {acc if (ps, t) in seen else '0'}")
        pend_cs = None
        if t == 0:
            d = vr(CSGA, 4)
            pend_cs = f"v_mfma_f32_16x16x32_bf16 {d}, {vr(SEL,4)}, {ar(fr_ring[k],4)}, {d if (ps, t) in seen else '0'}"
        else:
            st["done"] = k
        seen.add((ps, t))
        if not dma_q:
            if pending and released.get(prev_occ[pending[0]]) and (pending[0][0] == "P" or "vq" in st["marks"]):
                dma_q.extend(dma_pass(*pending.pop(0)))
            elif early_w and "pollW" in st["marks"] and not OPT.get("now"):
                dma_q.extend(early_w.pop(0))
            elif late_w and not early_w and OPT.get("latew", 1) and st["done"] >= last_use[("Q", late_w[0][0])] and not (alt[0] and early_c and not pending and released.get(("Q", early_c[0]))):
                dma_q.extend(late_w.pop(0)[1]); alt[0] = OPT.get("alt", 1) and len(late_w) % 4 == 0
            elif not pending and early_c and not OPT.get("noc") and "vc" in st["marks"] and released.get(("Q", early_c[0])):
                dma_q.extend(c_dma(early_c.pop(0))); alt[0] = False
        if dma_q and st["gap"] - st["lastdma"] >= OPT["dmagap"]:
            budget -= pop_vm(dma_q) + OPT.get("vcost", 0); st["lastdma"] = st["gap"]
        if k + LOOK < NF:
            budget -= issue_reads(k + LOOK)
        budget = fill(budget)
        st["gap"] += 1
        if pend_cs:
            P(pend_cs)
            st["done"] = k
            fill(2 + min(budget, 0))
    assert not pending
    P('Lmark2:')
    stamp(9)
    print("left after spine: early_w", len(early_w), "late_w", len(late_w), "early_c", len(early_c), "h", h_done[0], "tasks", [len(tasks[i]) - tpos[i] for i in range(len(tasks))])
    barrier()
    stream = p2_stream(early_w + [x[1] for x in late_w], early_c, h_done[0])
    if OPT.get("lead", 0):
        ws_ = sorted([it for it in stream if it[1] == "w"], key=lambda it: (int(it[2][-1][1][1:]) & 3, int(it[2][-1][1][1:])))
        lead = [it for it in ws_ if int(it[2][-1][1][1:]) & 3 == 0]
        stream = lead + [it for it in stream if it[1] == "c"] + [it for it in ws_ if it not in lead] + [it for it in stream if it[1] not in "cw"]
    while True:
        prog = fill(0, flush=True, maxn=OPT["tailgap"])
        if all(tpos[i] >= len(tasks[i]) for i in range(len(tasks))):
            break
        assert prog, [(tpos[i], len(tasks[i])) for i in range(len(tasks))]
        if not dma_q:
            for i, it in enumerate(stream):
                if it[1] in "cw":
                    dma_q.extend(stream.pop(i)[2]); break
        pop_vm(dma_q)
    P.emit(dma_q)
    stamp(10)
    return stream


def p2_stream(early_w, early_c, h_done):
    left_w = {x[-1][0] for x in early_w}
    items = []
    cneed = {}
    for s, (jj, u) in enumerate(STEPS):
        if u < 4:
            for ntl in range(2):
                cneed.setdefault(CREG.index((jj >> 1, u >> 1, ntl)), s)
    for s, (jj, u) in enumerate(STEPS):
        for r in early_c:
            if max(cneed[r] - 8, 0) == s:
                items.append((s, "c", c_dma(r)))
        if u >= 4:
            for ntl in range(2):
                g = w_load(s, ntl)
                if g[-1][0] in left_w:
                    items.append((s, "w", g))
        for tl in range(2):
            if not is_lead(s):
                items.append((s, "h", h_load(s, tl)))
        for sl in HLEAD:
            if is_lead(sl) and s == {8: 0, 16: 16, 24: 17, 32: 24, 40: 32}[sl]:
                items += [(s, "h", h_load(sl, tl)) for tl in range(2)]
        if s == 5:
            items.append((s, "b", None))
    if OPT.get("tlast", 1):
        NL = OPT.get("nl", 3)
        last = [it for it in items if it[1] == "h" and it[0] >= 44 - NL]
        items = [it for it in items if it not in last]
        items += last[1::2] + [(43, "h", it[2]) for it in last[0::2]]
    return items


def phase2(stream):
    VXO, VOO, VSO, VDO = AP[0], AP[1], AP[2], AP[3]
    AWR, ARD = APH, [T + 12, T + 13, T + 14, T + 15]
    setup = [f"v_lshrrev_b32 v{T+1}, 3, v{VLANE}", f"v_and_b32 v{T+2}, 7, v{VLANE}",
             f"v_lshrrev_b32 v{T+3}, 2, v{T+1}", f"v_and_b32 v{T+4}, 3, v{T+1}", f"v_lshl_add_u32 v{T+3}, v{T+3}, 4, v{T+4}",
             f"v_lshlrev_b32 v{VDO}, 3, v{T+2}", f"v_lshl_add_u32 v{VXO}, v{T+3}, 10, v{VDO}", f"v_lshlrev_b32 v{VOO}, 1, v{VXO}",
             f"v_lshlrev_b32 v{VSO}, 5, v{T+1}", f"v_add_u32 v{VDO}, {sCOL}, v{VDO}"]
    sloads = [(f"buffer_load_dwordx4 {vr(BST+4*k,4)}, v{VSO}, {SWS}, {sSTB} offen offset:{16*k} sc1", "b") for k in range(2)]
    bl = setup + [(f"global_load_dwordx2 {vr(BD,2)}, v{VDO}, s[{pDSK}:{pDSK+1}]", "b")] + sloads
    for it in range(4):
        bl += [f"s_add_u32 {sSO}, {sRB}, {it*4096}", (f"buffer_load_dwordx2 {vr(BX+2*it,2)}, v{VXO}, {SX}, {sSO} offen", "b")]
    post = [f"v_xor_b32 v{T+5}, v{T+1}, v{T+2}", f"v_lshlrev_b32 v{T+5}, 4, v{T+5}", f"v_lshl_add_u32 v{T+5}, v{T+1}, 7, v{T+5}"]
    for a in range(4):
        post += [f"s_xor_b32 {sT0}, {sWL}, {a*4096}", f"v_add_u32 v{ARD[a]}, {sT0}, v{T+5}"]
    post += [f"v_lshrrev_b32 v{T+6}, 5, v{VLANE}", f"v_xor_b32 v{T+6}, v{T+6}, v{T+2}", f"v_lshlrev_b32 v{T+6}, 4, v{T+6}",
             f"v_lshl_add_u32 v{T+7}, v{VC4}, 7, {sWL}"]
    for g in range(4):
        post += [f"v_xor_b32 v{AWR[g]}, {32*g}, v{T+6}", f"v_add_u32 v{AWR[g]}, v{T+7}, v{AWR[g]}"]
    base = list(post)
    base += [f"v_and_b32 v{BD+3}, 0xffff0000, v{BD+1}", f"v_lshlrev_b32 v{BD+2}, 16, v{BD+1}",
             f"v_and_b32 v{BD+1}, 0xffff0000, v{BD}", f"v_lshlrev_b32 v{BD}, 16, v{BD}"]
    for it in range(4):
        m_, d_, rc = BST + 2 * it, BST + 2 * it + 1, T + 8
        base += [f"v_rcp_f32 v{rc}, v{d_}"]
        for k in range(4):
            x, t0, t1 = BASE + 4 * it + k, T + 9, T + 10
            src = BX + 2 * it + (k >> 1)
            base += [f"v_and_b32 v{x}, 0xffff0000, v{src}" if k & 1 else f"v_lshlrev_b32 v{x}, 16, v{src}",
                     f"v_sub_f32 v{t0}, v{x}, v{m_}"] + bfr(t0, t0)
            base += [f"v_mul_f32 v{t1}, v{t0}, v{rc}", f"v_fma_f32 v{t0}, -v{t1}, v{d_}, v{t0}", f"v_fma_f32 v{t0}, v{t0}, v{rc}, v{t1}"] + bfr(t0, t0)
            base += [f"v_mul_f32 v{t0}, v{t0}, v{BD+k}"] + bfr(t0, t0) + [f"v_add_f32 v{x}, v{t0}, v{x}"]
    base += [f"s_lshl_b32 {sRB}, {sRB}, 1"]
    stream = [(s, k, (bl if k == "b" else g)) for (s, k, g) in stream]

    cpos = [0]
    def c_reads(s):
        jj, u = STEPS[s]
        cc, mat, sp = jj >> 1, u >> 1, 2 * (jj & 1) + (u & 1)
        regs = []
        for ntl in range(2):
            P(f"@waitvm C{CREG.index((cc, mat, ntl))}")
            sl = c_slot(cc, mat, ntl)
            r = ARING + 4 * (cpos[0] % NRING); cpos[0] += 1
            P(f"ds_read_b128 {ar(r,4)}, v{AX[sp] if sl < 4 else AXH[sp]} offset:{(sl&3)*16384}")
            regs.append(r)
        return regs
    creg = {}
    LA = OPT["la"]
    assert LA <= NH - 1
    q = []
    def top_up(s):
        while stream and stream[0][0] <= s + LA - 1 + (1 if stream[0][1] != "h" else 0):
            q.extend(stream.pop(0)[2])
    ldA, chkA = poll(T + 22, T + 20, sPH)
    ldB, chkB = poll(T + 22, T + 20, sPH)
    if True:
        stat = [it for it in stream if it[1] in "cw"]
        for it in stat: stream.remove(it)
        npa = min(OPT.get("npa", 8), len(stat))
        for it in stat[:len(stat) - npa]: P.emit(it[2])
        P.emit([ldA])
        for it in stat[len(stat) - npa:]: P.emit(it[2])
    if OPT["stamps"] in (1, 2):
        stamp(44)
        P(f"v_mov_b32 v{T+11}, v{T+22}")
        stamp(45)
        P("s_mov_b32 s101, 0")
    P.emit(chkA + [f"s_add_u32 {sPH}, {sPH}, 8192"])
    if OPT["stamps"] in (1, 2): P(f"v_writelane_b32 v{VSTMP}, s101, 46")
    stamp(14)
    top_up(0)
    P.emit(q); q.clear()
    first = [True] * 4
    SB = 16 - LA
    NL = OPT.get("nl", 3)
    for s, (jj, u) in enumerate(STEPS[:44 - NL]):
        if s == OPT.get("fb", 0):
            P("@waitvm pubB\ns_barrier")
            if True:
                P.emit([flag_store(2), (f"buffer_store_dword v{VNON}, v{VFLA}, {SWS}, {sROT} offen sc1", "ep")])
        if s == SB - OPT.get("pbl", 5):
            P.emit([ldB])
        if s == SB:
            if OPT["stamps"] in (1, 2):
                P(f"v_mov_b32 v{T+11}, v{T+22}")
                stamp(43)
                P("s_mov_b32 s101, 0")
            P.emit(chkB)
            if OPT["stamps"] in (1, 2): P(f"v_writelane_b32 v{VSTMP}, s101, 47")
            stamp(15)
        top_up(s + 1)
        pop_vm(q)
        if OPT.get("fine") and s % 4 == 0: stamp(32 + s // 4)
        for tl in range(2):
            for ntl in range(2):
                a = 2 * tl + ntl
                bw = ar(creg[s][ntl], 4) if u < 4 else ar(wreg(s, ntl)[0], 4)
                acc = vr(ACC2[a], 16)
                if OPT.get("fake16") and s > 0:
                    for z in range(2):
                        q4 = vr(ACC2[a] + 4 * ((2 * s + z) & 3), 4)
                        P(f"v_mfma_f32_16x16x32_bf16 {q4}, {bw}, {vr(hreg(s)+4*(tl^z),4)}, {q4}")
                else:
                    P(f"v_mfma_f32_32x32x16_bf16 {acc}, {bw}, {vr(hreg(s)+4*tl,4)}, {'0' if first[a] else acc}")
                first[a] = False
                if a < 3: pop_vm(q)
                if a == 2:
                    nx = s + 2
                    if nx < 44 and STEPS[nx][1] < 4:
                        creg[nx] = c_reads(nx)
                if s >= 12 and base:
                    for _ in range(3):
                        if base:
                            x = base.pop(0)
                            P.emit(x[1] if isinstance(x, tuple) and x[0] == "atomic" else [x])
        P.emit(q); q.clear()
    assert not base and not stream
    W = lambda a: [f"ds_write_b128 v{AWR[g]}, {vr(ACC2[a]+4*g,4)} offset:{a*16384}" for g in range(4)]
    M = lambda a, s: P(f"v_mfma_f32_32x32x16_bf16 {vr(ACC2[a],16)}, {ar(wreg(s, a & 1)[0], 4)}, {vr(hreg(s)+4*(a>>1),4)}, {vr(ACC2[a],16)}")
    RD = ACC2[2]
    def red(aa):
        for it in range(4):
            for z, a in enumerate(aa):
                P(f"ds_read_b128 {vr(RD+8*it+4*z,4)}, v{ARD[a]} offset:{a*16384+it*1024}")
        for it in range(4):
            b, r0 = BASE + 4 * it, RD + 8 * it
            for k in (0, 2):
                P(f"v_pk_add_f32 {vr(r0+k,2)}, {vr(r0+k,2)}, {vr(r0+4+k,2)}")
            for k in (0, 2):
                P(f"v_pk_add_f32 {vr(b+k,2)}, {vr(b+k,2)}, {vr(r0+k,2)}")
            if aa[0] == 0:
                P(f"s_add_u32 {sT0}, {sRB}, {it*8192}")
                P(f"buffer_store_dwordx4 {vr(b,4)}, v{VOO}, {SOUT}, {sT0} offen" + (" nt" if OPT.get("ont") else ""))
    for a in (3, 2):
        for s in range(44 - NL, 44): M(a, s)
    P.emit(W(3) + W(2))
    if OPT.get("early_red", 0):
        P("@waitlg0\ns_barrier")
        red((2, 3))
    for s in range(44 - NL, 44):
        M(1, s); M(0, s)
    P('Lmark3:')
    stamp(11)
    P.emit(W(1) + W(0))
    P("@waitlg0\ns_barrier")
    if not OPT.get("early_red", 0):
        red((2, 3))
    red((0, 1))
    if OPT["stamps"]:
        stamp(12)
        P("@waitall")
        stamp(13)
        P(f"s_lshl_b32 s100, s2, 2\ns_add_u32 s100, s100, {sW}\ns_lshl_b32 s100, s100, 8\ns_add_u32 s100, s100, {STAMP_OFF}")
        P(f"v_lshlrev_b32 v{T}, 2, v{VLANE}\nbuffer_store_dword v{VSTMP}, v{T}, {SWS}, s100 offen")


def main():
    from collections import Counter
    ref = open(f"cdna_kernels/{NAME}.s.ref").read().split("\n")
    out = [l for l in ref if l.startswith(";") and "@launch" not in l and "Override launch" not in l and "grid=ceil" not in l]
    k1 = NAME + "_kernel"
    out.append("; @launch grid=(256,1,1) block=(256,1,1) lds=163840")
    out.append('.amdgcn_target "amdgcn-amd-amdhsa--gfx950"\n.text')
    prologue()
    stream = passes(landing())
    phase2(stream)
    st = {}
    ab = OPT.get("ablate", 0)
    if ab:
        nl = []; inside = False
        reg = OPT.get("abreg", 0)
        for i in P.l:
            if i.kind == "label" and i.text == f"Lmark{reg}:": inside = True
            if i.kind == "label" and i.text == f"Lmark{reg+1}:": inside = False
            if inside:
                if ab & 1 and i.kind == "dma": continue
                if ab & 2 and i.kind == "valu" and any(x in i.text for x in ("dot2", "v_fma", "v_mul_f32", "v_exp", "v_rcp", "v_cvt_pk")): continue
                if ab & 4 and i.kind == "barrier": continue
                if ab & 8 and i.kind == "dsr": continue
                if ab & 16 and i.kind in ("vst", "vld") and i.tag not in ("flag", "poll", "el", "pubE", "ep"): continue
                if ab & 32 and i.kind == "mfma": continue
            nl.append(i)
        P.l = nl
    l = pad_hazards(auto_wait(P.l), st)
    defined = {"s0", "s1", "s2", "v0", "exec", "scc", "vcc", "m0"}
    for i in l:
        bad = [r for r in i.rd if r not in defined]
        assert ab or not bad, f"use before def: {i.text} {bad}"
        defined |= set(i.wr)
    unread = {}
    for i in l:
        for r in i.rd: unread.pop(r, None)
        for r in i.wr:
            assert ab or r not in unread or unread[r][1] in ("ct", "code", None) and r[0] == "a" and int(r[1:]) >= 240, f"load result overwritten unread: {r}: {unread[r][0]} <- {i.text}"
            unread.pop(r, None)
        if i.kind in ("vld", "dsr"):
            for r in i.wr: unread[r] = (i.text, i.tag)
    ool = pad_hazards([Ins(x) for x in P.ool])
    out.append(f".globl {k1}\n.p2align 8\n.type {k1},@function\n{k1}:\nk_start:")
    out.append(render(l))
    out.append("k_exit:\n    s_endpgm\nk_main_end:")
    out.append(render(ool))
    out.append("    s_endpgm\nk_all_end:")
    out.append(f""".section .rodata,"a"
.p2align 6
.amdhsa_kernel {k1}
  .amdhsa_next_free_vgpr 512
  .amdhsa_next_free_sgpr 102
  .amdhsa_accum_offset 256
  .amdhsa_group_segment_fixed_size 0
  .amdhsa_kernarg_size 128
  .amdhsa_user_sgpr_count 2
  .amdhsa_user_sgpr_kernarg_segment_ptr 1
  .amdhsa_system_sgpr_workgroup_id_x 1
.end_amdhsa_kernel""")
    open(sys.argv[1], "w").write("\n".join(out) + "\n")
    c = Counter(i.kind for i in l)
    print(dict(c), "slots", sum(i.cost for i in l), st)

main()
```

```python
import sys, struct, math
sys.path.insert(0, "work")
from asmlib import *

NAME = "parallel_sum__ssm_conv_s5__glu_gated_glu__prompt"
OPT = dict(to1=3, to2=1, look=4, dmagap=2, vgap=3, stamps=0, codepf=1, budget=6, ebudget=7, xlook=2,
           pa=40, pad=16, el=130, eld=24, pb=190, pbd=12, la=5, exbar=1, tailgap=16)
SOPT = {}
for a in sys.argv[2:]:
    k, v = a.split("=")
    if k in ("ord", "opP", "opQ"): SOPT[k] = v
    else: OPT[k] = int(v)

def f2u(x):
    return struct.unpack("<I", struct.pack("<f", x))[0]
LOG2E = f2u(1.4426950408889634)
INV2PI = f2u(0.15915494309189535)

W2_OFF = 12 << 20
E_OFF = 15 << 20
ST_OFF = E_OFF + 131072
FL_OFF = E_OFF + 196608
EP_OFF = E_OFF + 229376
STAMP_OFF = E_OFF + 262144
WS_WIN = 16 << 20
OOB = 0x40000000
SPIN_MAX = 0x40000

SCR = 131072
EXZ = SCR
CSB = SCR + 4096
CSG = SCR + 5120
RS = SCR + 7168
HT = SCR + 8192

SX, SBR, SBI, SW, SWD, SWS, SDB, SE, SCRE, SCIM, SOUT, SCD = [f"s[{4+4*i}:{7+4*i}]" for i in range(12)]
iSX, iSBR, iSBI, iSW, iSWD, iSWS, iSDB, iSE, iSCRE, iSCIM, iSOUT, iSCD = [4 + 4 * i for i in range(12)]
pLRE, pLIM, pLDT, pDSK, pWU = 52, 54, 56, 20, 60
sW, sM, sJ, sJ4, sROT = "s62", "s63", "s64", "s65", "s66"
sT0, sT1, sT2, sT3 = "s67", "s76", "s77", "s78"
KB = [f"s{68+i}" for i in range(8)]
sXB, sBB, sPB, sWL = "s79", "s80", "s81", "s82"
sONE, sHB = "s83", "s84"
sHT = [f"s{85+i}" for i in range(7)]
sSO = "s92"
sL2E, sI2P = "s93", "s94"
sFL = "s95"
TB = ["s96", "s97", "s98"]
sNON = "s99"
sWA = [["s52", "s28"], ["s53", "s29"]]; sHA = [["s54", "s30"], ["s55", "s31"]]; sCB = ["s56", "s57"]
sMU = "s58"
sRB, sSTB = "s60", "s61"
sCOL = "s48"
sWQ = [sL2E, sI2P]
sPW, sPH = "s49", "s3"

ACC_S = 0
ACC_G = [32 + 16 * t for t in range(7)]
CSBR, CSBI, CSGA = 144, 148, 152
SEL, XE, CE0, CE1 = 156, 160, 164, 168
AX = [172, 173, 174, 175]
AB = [176, 177, 178, 179]
ABC = 180
AP = [181, 182, 183, 184]
APH = [185, 186, 187, 188]
VX = [189, 190, 191, 192]
VB, VL16 = 193, 194
C1, SIG = 195, 196
L1R, L1I, L16R, L16I, L128R, L128I, LSR, LSI, KR, KI, PR, PI = range(197, 209)
S1, S2 = 209, 210
VEW, VER, AEXW, AEXR, ARS, AHW, AHR, ACSB_W, ACSB_R, ACSG_W, VST, VC4 = range(211, 223)
VLANE = 223
T = 224
L256R, L256I = T + 28, T + 29
PRW = CSBR
VSTMP = T + 31
AXF, ARING, NRING = 0, 128, 8
P0R = 208
VWD, VCT, VRS = ACC_G[5], ACC_G[5] + 4, ACC_G[5] + 8
RPW, RPT = ACC_G[4], ACC_G[5] + 12
VP = [ACC_G[6] + 8 + k for k in range(4)]
PK_SSW, PK_TRB, PK_VQ, ARPR = ACC_G[6] + 12, ACC_G[6] + 13, ACC_G[6] + 14, ACC_G[6] + 15
VFLA, VNON = T + 30, T + 23
HR, NH = 48, 6
ACC2 = [96, 112, 128, 144]
BX, BST, BD, BASE = 0, 8, 16, 20

def vr(a, n=1): return f"v{a}" if n == 1 else f"v[{a}:{a+n-1}]"
def ar(a, n=1): return f"a{a}" if n == 1 else f"a[{a}:{a+n-1}]"
def isvm(x): return isinstance(x, tuple) and x[0].startswith(("buffer_", "global_"))


class Prog:
    def __init__(self):
        self.l = []
        self.ool = []
    def __call__(self, text, tag=None):
        for t in text.split("\n"):
            t = t.strip()
            if t:
                self.l.append(Ins(t, tag))
    def emit(self, lst):
        for x in lst:
            if isinstance(x, tuple):
                self(x[0], tag=x[1])
            else:
                self(x)

P = Prog()

def stamp(idx):
    if not OPT["stamps"] or (OPT["stamps"] == 3 and idx != 13):
        return
    P("@opaque_begin")
    P(("s_memrealtime" if OPT["stamps"] >= 2 else "s_memtime") + " s[100:101]\ns_waitcnt lgkmcnt(0)")
    P("@opaque_end")
    P(f"v_writelane_b32 v{VSTMP}, s100, {idx}")

def bfr(dst, src):
    return [f"v_cvt_pk_bf16_f32 v{dst}, v{src}, v{src}", f"v_and_b32 v{dst}, 0xffff0000, v{dst}"]

def set_srd(i, nbytes):
    P(f"s_mov_b32 s{i+2}, {nbytes}\ns_mov_b32 s{i+3}, 0x20000")

def cpow(n_expr, dr, di, A, Bq, t0, t1):
    if n_expr is None:
        P(f"v_exp_f32 v{t0}, v{A}\nv_fract_f32 v{t1}, v{Bq}")
    else:
        P(f"v_mul_f32 v{t0}, {n_expr}, v{A}\nv_mul_f32 v{t1}, {n_expr}, v{Bq}\nv_exp_f32 v{t0}, v{t0}\nv_fract_f32 v{t1}, v{t1}")
    P(f"v_cos_f32 v{dr}, v{t1}\nv_sin_f32 v{di}, v{t1}\nv_mul_f32 v{dr}, v{t0}, v{dr}\nv_mul_f32 v{di}, v{t0}, v{di}")

def cstep(nx, L, cur, u):
    return [f"v_fma_f32 v{nx[0]}, v{L[0]}, v{cur[0]}, v{u[0]}", f"v_fma_f32 v{nx[1]}, v{L[0]}, v{cur[1]}, v{u[1]}",
            f"v_fma_f32 v{nx[0]}, -v{L[1]}, v{cur[1]}, v{nx[0]}", f"v_fma_f32 v{nx[1]}, v{L[1]}, v{cur[0]}, v{nx[1]}"]

retry_id = [0]
def retry_check(ev, reload, sleep=2):
    k = retry_id[0]; retry_id[0] += 1
    o = [f"Lretry{k}:", f"s_mov_b32 s101, 0", f"Lspin{k}:", f"s_sleep {sleep}", f"s_add_u32 s101, s101, 1",
         f"s_cmp_gt_u32 s101, {SPIN_MAX}", f"s_cbranch_scc1 Lback{k}"]
    o += [x[0] if isinstance(x, tuple) else x for x in reload]
    o += ["s_waitcnt vmcnt(0)"] + ev + ["s_nop 4", f"s_cbranch_vccnz Lspin{k}", f"s_branch Lback{k}"]
    P.ool += o
    return [f"s_cbranch_vccnz Lretry{k}", f"Lback{k}:"]

def poll(d, addr, so):
    ld = (f"buffer_load_dword v{d}, v{addr}, {SWS}, {so} offen sc1", "poll")
    ev = [f"v_cmp_ne_u32 vcc, {sNON}, v{d}"]
    return ld, ev + retry_check(ev, [ld], 4)

def flag_store(kind):
    return (f"buffer_store_dword v{VNON}, v{VFLA}, {SWS}, 0 offen offset:0 sc1" if kind == 0 else
            f"buffer_store_dword v{VNON}, v{VFLA}, {SWS}, {sK8 if kind == 1 else sK16} offen sc1", "flag")
sK8, sK16 = "s50", "s51"

PSET = lambda jj: [jj + t for t in range(4)]
QSET = lambda jj: [g for g in range(7) if g not in PSET(jj)]
STEPS = [(jj, 4 + g) for t in range(4) for jj in range(4) for g in [PSET(jj)[t]]] + \
        [(jj, u) for jj in range(4) for u in range(4)] + \
        [(jj, 4 + g) for t in range(3) for jj in range(4) for g in [QSET(jj)[t]]]
GSTEP = [s for s, (jj, u) in enumerate(STEPS) if u >= 4]
def wreg(s, ntl):
    wi = 2 * GSTEP.index(s) + ntl
    return ((160 + 4 * wi) if wi < 24 else 4 * (wi - 24)), wi
VO4 = [AEXW, AEXR, ARS, ACSB_R]
def adv(base, idx, last):
    r = []
    if idx % 4 == 0 and idx >= 8:
        b = base[(idx >> 2) & 1]
        if idx == last:
            r.append(f"s_sub_u32 {b}, {b}, {sMU}")
        r.append(f"s_add_u32 {b}, {b}, 8192")
    return r
def w_load(s, ntl):
    g = GSTEP.index(s)
    b = sWA[ntl][(g >> 2) & 1] if g < 24 else sWQ[ntl]
    off = (g >> 3) * 8192
    pre = [f"s_add_u32 {sSO}, {b}, {off}"] if off else []
    return pre + [(f"buffer_load_dwordx4 {ar(wreg(s, ntl)[0],4)}, v{VO4[g&3]}, {SWS}, {sSO if off else b} offen sc1", f"w{g}")]
HLEAD = {8: 160, 16: 36, 24: 160, 32: 36, 40: 160}
def is_lead(s): return OPT.get("hlead", 0) and s in HLEAD
RIDX = {}
for _s in range(44):
    if not is_lead(_s): RIDX[_s] = len(RIDX)
def hreg(s): return HLEAD[s] if is_lead(s) else HR + 8 * (RIDX[s] % NH)
def h_load(s, tl):
    b = sHA[tl][(s >> 2) & 1]
    off = (s >> 3) * 8192
    pre = [f"s_add_u32 {sSO}, {b}, {off}"] + ([f"s_sub_u32 {sSO}, {sSO}, {sMU}"] if s >= 40 else []) if off else []
    return pre + [(f"buffer_load_dwordx4 {vr(hreg(s)+4*tl,4)}, v{VO4[s&3]}, {SWS}, {sSO if off else b} offen sc1", "h")]
CREG = [(cc, mat, ntl) for cc in range(2) for mat in range(2) for ntl in range(2)]
def c_slot(cc, mat, ntl): return (CREG.index((cc, mat, ntl)) + 2) % 8
VC = [AB[0], AB[1], AB[2], AB[3]]
AXH = [ABC, VB, S1, S2]
def c_dma(r):
    cc, mat, ntl = CREG[r]
    g = [f"s_add_u32 m0, {sWL}, {c_slot(cc, mat, ntl)*16384}", f"s_add_u32 {sSO}, {sCB[ntl]}, {cc*128}"]
    return g + [(f"buffer_load_dwordx4 v{VC[sb]}, {SCIM if mat else SCRE}, {sSO} offen offset:{sb*1024} lds", f"C{r}") for sb in range(4)]


GRP = dict(
    x=lambda: dma_X(1) + dma_B(1),
    a=lambda: [(f"global_load_ushort v{T+8+k}, v{T+6}, s[{p}:{p+1}]", "par") for k, p in enumerate((pLRE, pLIM, pLDT))],
    p=lambda: [f"s_mul_i32 {sSO}, {KB[0]}, 1792", f"s_add_u32 {sSO}, {sSO}, {sPB}"] +
              [(f"buffer_load_dwordx4 {ar(P0R+4*ks,4)}, v{VP[ks]}, {SW}, {sSO} offen offset:{ks*1024}" + (" nt" if OPT.get("ntp", 0) else ""), "p0") for ks in range(4)],
    w=lambda: [(f"buffer_load_dwordx4 {vr(RPW+4*g,4)}, v{VWD+g}, {SWD}, 0 offen" + (" nt" if OPT.get("ntw", 0) else ""), "wd") for g in range(2)],
    c=lambda: [(f"buffer_load_dwordx4 {ar(240,4)}, v{VCT}, {SCRE}, 0 offen", "ct"), (f"buffer_load_dwordx4 {ar(244,4)}, v{VCT+1}, {SCIM}, 0 offen", "ct")],
)
ORDER = [list(x) for x in SOPT.get("ord", "ax_p_....wc").split("_")[:2]] + [SOPT.get("ord", "ax_p_....wc").split("_")[2].split(".")]
DEFER = []
LATE = []
def pop_defer(n):
    k = 0
    while DEFER and k < n:
        g = DEFER.pop(0); P.l.extend(g); k += sum(i.cost for i in g)

def p2scal():
    mp, nn, a, b = "s50", "s51", sT0, sT1
    if OPT.get("lp", 2) == 2:
        MAP2 = f"s_lshl_b32 {mp}, {a}, 2\ns_and_b32 {a}, {b}, 3\ns_add_u32 {mp}, {mp}, {a}\ns_lshr_b32 {nn}, {b}, 2"
    else:
        MAP2 = f"s_lshr_b32 {mp}, {a}, 1\ns_lshl_b32 {mp}, {mp}, 3\ns_and_b32 {nn}, {a}, 1\ns_lshl_b32 {nn}, {nn}, 2\ns_and_b32 {a}, {b}, 7\ns_add_u32 {mp}, {mp}, {a}\ns_lshr_b32 {a}, {b}, 3\ns_add_u32 {nn}, {nn}, {a}"
    P(f"""s_and_b32 {a}, s2, 7
          s_lshr_b32 {b}, s2, 3
          {MAP2}
          s_lshl_b32 {mp}, {mp}, 1
          s_lshr_b32 {a}, {sW}, 1
          s_add_u32 {mp}, {mp}, {a}
          s_lshl_b32 {nn}, {nn}, 1
          s_and_b32 {a}, {sW}, 1
          s_add_u32 {nn}, {nn}, {a}
          s_mul_i32 {sT2}, {sW}, 44
          s_lshl_b32 {sT3}, {sW}, 8""")
    P(f"""s_lshr_b32 {a}, {nn}, 1
          s_lshr_b32 {b}, {mp}, 1
          s_and_b32 {sMU}, {a if OPT.get("lp", 2) == 2 else b}, {4 if OPT.get("mu", 1) else 0}
          s_add_u32 {b}, {b}, {a}
          s_and_b32 s59, {b}, {3 if OPT.get("mu", 1) else 0}
          s_lshl_b32 {sMU}, {sMU}, 10
          s_xor_b32 {b}, {sMU}, 4096""")
    for k in range(2):
        P(f"""s_xor_b32 {a}, {mp}, {k}
              s_mul_i32 {a}, {a}, 176
              s_add_u32 {a}, {a}, {sT2}
              s_lshl_b32 {a}, {a}, 10
              s_add_u32 {sHA[k][0]}, {a}, {sMU}
              s_add_u32 {sHA[k][1]}, {a}, {b}
              s_xor_b32 {a}, {nn}, {k}
              s_lshl_b32 {sCB[k]}, {a}, 15
              s_add_u32 {sCB[k]}, {sCB[k]}, {sT3}
              s_lshl_b32 {a}, {a}, 2
              s_add_u32 {a}, {a}, {sW}
              s_mul_i32 {a}, {a}, {28*1024}
              s_add_u32 {a}, {a}, {W2_OFF}
              s_add_u32 {sWA[k][0]}, {a}, {sMU}
              s_add_u32 {sWA[k][1]}, {a}, {b}""")
    P(f"""s_bitcmp1_b32 s59, 1
          s_cselect_b64 s[100:101], s[{iSCIM}:{iSCIM+1}], s[{iSCRE}:{iSCRE+1}]
          s_cselect_b64 s[{iSCIM}:{iSCIM+1}], s[{iSCRE}:{iSCRE+1}], s[{iSCIM}:{iSCIM+1}]
          s_mov_b64 s[{iSCRE}:{iSCRE+1}], s[100:101]""")
    P(f"""s_lshl_b32 {sCOL}, {nn}, 6
          s_lshl_b32 {sRB}, {mp}, 15
          s_add_u32 {sRB}, {sRB}, {sCOL}
          s_lshl_b32 {sSTB}, {mp}, 8
          s_lshl_b32 {a}, {sW}, 14
          s_add_u32 {sSTB}, {sSTB}, {a}
          s_add_u32 {sSTB}, {sSTB}, {ST_OFF}
          s_lshl_b32 {a}, {sW}, 7
          s_add_u32 {a}, {a}, {FL_OFF}
          s_lshr_b32 {sPW}, {nn}, 1
          s_lshl_b32 {sPW}, {sPW}, 10
          s_add_u32 {sPW}, {sPW}, {a}
          s_lshr_b32 {sPH}, {mp}, 2
          s_lshl_b32 {sPH}, {sPH}, 9
          s_add_u32 {sPH}, {sPH}, {a}
          s_add_u32 {sPH}, {sPH}, 8192
          s_movk_i32 {sK8}, 8192
          s_movk_i32 {sK16}, 16384""")


def prologue():
    P("s_cmp_ge_u32 s2, 256\ns_cbranch_scc1 k_exit")
    if OPT["stamps"]:
        P(("s_memrealtime" if OPT["stamps"] >= 2 else "s_memtime") + " s[100:101]\ns_waitcnt lgkmcnt(0)")
        P(f"v_mov_b32 v{VSTMP}, 0\ns_nop 1\nv_writelane_b32 v{VSTMP}, s100, 0")
    for off, s in [(0, iSX), (24, iSBR), (32, iSBI)]:
        P(f"s_load_dwordx2 s[{s}:{s+1}], s[0:1], {off}")
    rr, p, q, t3 = T + 1, T + 2, T + 3, T + 4
    LM = OPT.get('lm', 2)
    P(f"""v_lshrrev_b32 v{T}, 6, v0
          v_and_b32 v{VLANE}, 63, v0
          v_readfirstlane_b32 {sW}, v{T}
          s_and_b32 {sT0}, s2, 7
          s_lshr_b32 {sT1}, s2, 3
          s_and_b32 {sM}, {sT0}, {(16 >> LM) - 1}
          s_lshl_b32 {sM}, {sM}, {LM}
          s_and_b32 {sT2}, {sT1}, {(1 << LM) - 1}
          s_add_u32 {sM}, {sM}, {sT2}
          s_lshr_b32 {sT1}, {sT1}, {LM}
          s_lshr_b32 {sJ}, {sT0}, {4 - LM}
          s_lshl_b32 {sJ}, {sJ}, {5 - LM}
          s_add_u32 {sJ}, {sJ}, {sT1}
          s_and_b32 {sJ4}, {sJ}, 3""")
    P({1: f"s_add_u32 {sROT}, {sJ}, {sM}", 2: f"s_lshl_b32 {sROT}, {sJ}, 1\ns_add_u32 {sROT}, {sROT}, {sM}",
       3: f"s_lshl_b32 {sROT}, {sM}, 1\ns_add_u32 {sROT}, {sROT}, {sJ}", 0: f"s_mov_b32 {sROT}, 0", 4: f"s_mov_b32 {sROT}, {sM}", 5: f"s_mov_b32 {sROT}, {sJ}"}[OPT.get("rot", 2)])
    P(f"""s_lshl_b32 {sROT}, {sROT}, 7
          s_and_b32 {KB[0]}, {sROT}, 0x380
          v_lshrrev_b32 v{rr}, 3, v{VLANE}
          v_and_b32 v{p}, 7, v{VLANE}
          v_lshrrev_b32 v{q}, 1, v{rr}
          v_xor_b32 v{q}, v{p}, v{q}
          v_lshlrev_b32 v{q}, 4, v{q}
          v_lshrrev_b32 v{t3}, 2, v{rr}
          v_lshlrev_b32 v{t3}, 4, v{t3}
          v_and_b32 v{T+5}, 3, v{rr}
          v_add_u32 v{t3}, v{t3}, v{T+5}
          v_lshl_add_u32 v{VX[0]}, v{t3}, 10, v{q}
          v_xor_b32 v{VX[1]}, 64, v{VX[0]}
          v_add_u32 v{VX[2]}, {2*3072}, v{VX[0]}
          v_add_u32 v{VX[3]}, {3*3072}, v{VX[1]}
          v_add_u32 v{VX[1]}, 3072, v{VX[1]}
          s_lshl_b32 {sWL}, {sW}, 12
          s_lshl_b32 {sXB}, {sM}, 17
          s_lshl_b32 {sT0}, {sW}, 15
          s_add_u32 {sXB}, {sXB}, {sT0}""")
    set_srd(iSX, 2048 * 1024)
    P.emit(dma_X(0))
    stamp(1)
    for off, s in [(8, pLRE), (16, pLIM), (56, pLDT), (96, iSWD), (80, iSW), (88, pWU),
                   (120, iSWS), (40, iSCRE), (48, iSCIM), (104, iSOUT)]:
        P(f"s_load_dwordx2 s[{s}:{s+1}], s[0:1], {off}")
    P(f"""s_lshl_b32 {sBB}, {sJ}, 15
          s_lshl_b32 {sT0}, {sW}, 13
          s_add_u32 {sBB}, {sBB}, {sT0}
          s_and_b32 {sT0}, {sW}, 1
          s_lshl_b32 {sT0}, {sT0}, 6
          v_xor_b32 v{VB}, {sT0}, v{q}
          v_lshl_add_u32 v{VB}, v{rr}, 10, v{VB}""")
    set_srd(iSBR, 524288); set_srd(iSBI, 524288)
    P.emit(dma_B(0))
    if OPT["codepf"]:
        P(f"""s_getpc_b64 s[{iSCD}:{iSCD+1}]
              Lpc0:
              s_sub_u32 s{iSCD}, s{iSCD}, Lpc0-k_start
              s_subb_u32 s{iSCD+1}, s{iSCD+1}, 0
              s_mov_b32 s{iSCD+2}, k_all_end-k_start
              s_mov_b32 s{iSCD+3}, 0x20000
              s_lshr_b32 {sT0}, s2, 3
              s_and_b32 {sT0}, {sT0}, 31
              s_lshl_b32 {sT0}, {sT0}, 10
              v_lshlrev_b32 v{T+7}, 2, v0
              buffer_load_dword a255, v{T+7}, {SCD}, {sT0} offen""")
    for n in range(1, 8):
        P(f"s_add_u32 {sT0}, {sROT}, {n*128}\ns_and_b32 {KB[n]}, {sT0}, 0x380")
    PLRE, PLIM, PLDT = T + 8, T + 9, T + 10
    hh, f, row = T + 11, T + 12, T + 13
    P(f"""v_and_b32 v{VC4}, 31, v{VLANE}
          v_lshlrev_b32 v{T+6}, 1, v{VC4}
          s_lshl_b32 {sT1}, {sJ}, 6
          v_add_u32 v{T+6}, {sT1}, v{T+6}
          s_add_u32 s{iSWS}, s{iSWS}, {OPT.get("wsoff", 0) << 20}
          s_addc_u32 s{iSWS+1}, s{iSWS+1}, 0
          s_add_u32 s100, s{iSWS}, {EP_OFF}
          s_addc_u32 s101, s{iSWS+1}, 0
          s_load_dword {sNON}, s[100:101], 0""")
    for g in ORDER[0]:
        P.emit(GRP[g]())
    set_srd(iSW, 1835008); set_srd(iSCRE, 524288); set_srd(iSCIM, 524288)
    P(f"""s_bitcmp1_b32 {sW}, 0
          s_cselect_b32 s{iSW}, s{pWU}, s{iSW}
          s_cselect_b32 s{iSW+1}, s{pWU+1}, s{iSW+1}""")
    if OPT.get("touch", 0):
        set_srd(iSWS, WS_WIN); set_srd(iSOUT, 4 << 20)
        P(f"""v_lshlrev_b32 v{T+7}, {OPT.get("tsh", 20)}, v{VLANE}
              buffer_load_dword a250, v{T+7}, {SW}, 0 offen
              buffer_load_dword a251, v{T+7}, {SWS}, 0 offen
              buffer_load_dword a252, v{T+7}, {SCRE}, 0 offen
              buffer_load_dword a253, v{T+7}, {SCIM}, 0 offen
              buffer_load_dword a254, v{T+7}, {SOUT}, 0 offen""")
    set_srd(iSWD, 1835008)
    P(f"""s_mul_i32 {sT0}, {sJ}, 112
          s_lshl_b32 {sT1}, {sW}, 4
          s_add_u32 {sT0}, {sT0}, {sT1}
          s_lshl_b32 {sT0}, {sT0}, 10
          s_lshl_b32 {sT1}, {sM}, 6
          s_add_u32 {sT0}, {sT0}, {sT1}
          v_lshrrev_b32 v{T+14}, 2, v{VLANE}
          v_and_b32 v{T+21}, 3, v{VLANE}
          v_lshlrev_b32 v{T+15}, 4, v{T+21}
          v_lshl_add_u32 v{T+14}, v{T+14}, 10, v{T+15}
          v_add_u32 v{VWD}, {sT0}, v{T+14}
          v_add_u32 v{VWD+1}, 0x10000, v{VWD}
          s_mov_b32 {sONE}, 0x3f803f80
          v_lshrrev_b32 v{hh}, 5, v{VLANE}
          v_bfe_u32 v{f}, v{VLANE}, 1, 3
          v_xor_b32 v{f}, v{f}, v{hh}
          v_lshlrev_b32 v{f}, 4, v{f}
          v_and_b32 v{row}, 7, v{VLANE}
          v_lshlrev_b32 v{row}, 7, v{row}
          v_bfe_u32 v{T+14}, v{VLANE}, 3, 2
          v_lshl_add_u32 v{T+15}, v{T+14}, 10, v{row}
          v_add_u32 v{T+15}, {sWL}, v{T+15}
          v_lshl_add_u32 v{T+16}, v{T+14}, 12, v{row}
          v_add_u32 v{T+16}, {SCR}, v{T+16}""")
    for s_ in range(4):
        P(f"v_xor_b32 v{T+17}, {32*s_}, v{f}\nv_add_u32 v{AX[s_]}, v{T+15}, v{T+17}\nv_add_u32 v{AB[s_]}, v{T+16}, v{T+17}")
    P(f"""s_lshl_b32 {sT0}, {sW}, 5
          v_xor_b32 v{T+17}, {sT0}, v{f}
          v_add_u32 v{ABC}, v{T+16}, v{T+17}
          v_bfe_u32 v{T+17}, v{VLANE}, 2, 1
          v_bfe_u32 v{T+22}, v{VLANE}, 4, 1
          v_xor_b32 v{T+17}, v{T+17}, v{T+22}
          v_or_b32 v{T+17}, v{T+17}, v{T+21}
          v_cmp_eq_u32 vcc, 0, v{T+17}
          v_mov_b32 v{T+18}, {sONE}
          v_mov_b32 v{S1}, 0
          v_cndmask_b32 v{SEL}, 0, v{T+18}, vcc
          v_mov_b32 v{S2}, 0
          v_mov_b32 v{SEL+1}, v{SEL}
          v_mov_b32 v{SEL+2}, v{SEL}
          v_mov_b32 v{SEL+3}, v{SEL}""")
    P(f"""v_lshlrev_b32 v{VL16}, 4, v{VLANE}
          v_mov_b32 v{T+24}, {OOB}
          s_and_b32 {sT0}, {sW}, 1
          s_lshl_b32 {sT0}, {sT0}, 1
          v_add_u32 v{T+26}, {sT0}, v{T+22}
          v_bfe_u32 v{T+27}, v{VLANE}, 1, 2
          v_xor_b32 v{T+26}, v{T+26}, v{T+27}
          v_and_b32 v{T+27}, 1, v{VLANE}
          v_lshlrev_b32 v{T+27}, 4, v{T+27}
          s_movk_i32 {sT1}, 3584
          v_mad_u32_u24 v{T+27}, v{rr}, {sT1}, v{T+27}
          v_add_u32 v{T+5}, {sJ4}, v{T+26}
          v_cmp_gt_u32 vcc, {sJ4}, v{T+26}
          v_lshl_add_u32 v{VP[0]}, v{T+5}, 5, v{T+27}
          v_add_u32 v{T+5}, 4, v{T+26}
          v_cndmask_b32 v{T+5}, v{T+5}, v{T+26}, vcc
          v_cmp_eq_u32 vcc, 3, v{T+26}
          v_lshl_add_u32 v{PK_VQ}, v{T+5}, 5, v{T+27}
          v_add_u32 v{VP[1]}, 56320, v{VP[0]}
          v_cndmask_b32 v{PK_VQ}, v{PK_VQ}, v{T+24}, vcc
          v_add_u32 v{VP[2]}, {2*56320}, v{VP[0]}
          v_add_u32 v{VP[3]}, {3*56320}, v{VP[0]}""")
    P(f"""s_mul_i32 {sPB}, {sJ}, 224
          s_lshr_b32 {sT0}, {sW}, 1
          s_mul_i32 {sT0}, {sT0}, {8*3584}
          s_add_u32 {sPB}, {sPB}, {sT0}""")
    if OPT.get("cfast", 0):
        P(f"""s_lshl_b32 {sT0}, {sM}, 3
              s_lshr_b32 {sT1}, {sJ}, 1
              s_add_u32 {sT0}, {sT0}, {sT1}
              s_lshl_b32 {sT0}, {sT0}, 2
              s_add_u32 {sT0}, {sT0}, {sW}
              s_lshl_b32 {sT0}, {sT0}, 10
              s_add_u32 {sT1}, {sJ4}, 1
              s_bitcmp1_b32 {sT1}, 1
              s_cselect_b32 {sT0}, {OOB}, {sT0}
              v_add_u32 v{VCT}, {sT0}, v{VL16}
              v_mov_b32 v{VCT+1}, v{VCT}""")
    else:
        P(f"""s_lshl_b32 {sT0}, s2, 1
              s_lshr_b32 {sT1}, {sW}, 1
              s_add_u32 {sT0}, {sT0}, {sT1}
              s_lshl_b32 {sT0}, {sT0}, 10
              s_bitcmp1_b32 {sW}, 0
              s_cselect_b32 {sT1}, {OOB}, {sT0}
              s_cselect_b32 {sT0}, {sT0}, {OOB}
              v_add_u32 v{VCT}, {sT0}, v{VL16}
              v_add_u32 v{VCT+1}, {sT1}, v{VL16}""")
    for g in ORDER[1]:
        P.emit(GRP[g]())
    if OPT["xlook"] >= 3:
        P.emit(dma_X(2) + dma_B(2))
    NPRE = OPT.get("npre", 200)
    mark0 = len(P.l)
    set_srd(iSWS, WS_WIN); set_srd(iSOUT, 4 << 20)
    P(f"""s_lshl_b32 {sFL}, {sM}, 9
          s_lshr_b32 {sT0}, {sJ}, 2
          s_lshl_b32 {sT0}, {sT0}, 7
          s_add_u32 {sFL}, {sFL}, {sT0}
          s_lshl_b32 {sT0}, {sJ4}, 2
          s_add_u32 {sFL}, {sFL}, {sT0}
          s_add_u32 {sFL}, {sFL}, {FL_OFF}
          s_add_u32 {sNON}, {sNON}, 1
          s_cmp_eq_u32 {sW}, 3
          s_cselect_b32 {sFL}, {sFL}, {OOB}
          v_mov_b32 v{VFLA}, {sFL}
          v_cmp_eq_u32 vcc, 0, v{VLANE}""")
    for r in (XE + 1, XE + 2, XE + 3, CE0 + 1, CE0 + 2, CE0 + 3, CE1 + 1, CE1 + 2, CE1 + 3):
        P(f"v_mov_b32 v{r}, 0")
    P(f"v_cndmask_b32 v{VFLA}, v{T+24}, v{VFLA}, vcc")
    P(f"""s_lshl_b32 {sT2}, {sM}, 2
          s_lshr_b32 {sT3}, {sJ}, 2
          s_add_u32 {sT2}, {sT2}, {sT3}
          s_mul_i32 {sT2}, {sT2}, {28*1024}
          s_add_u32 {sT2}, {sT2}, {W2_OFF}""")
    for pz in range(1):
        P(f"""s_xor_b32 {sROT}, {sJ4}, {pz}
              s_sub_u32 {sT3}, {sW}, {sROT}
              s_add_u32 {sT1}, {sW}, 4
              s_sub_u32 {sT0}, {sT1}, {sROT}
              s_cmp_lt_u32 {sW}, {sROT}
              s_cselect_b32 {sT3}, {sT1}, {sT3}
              s_cselect_b32 {sT0}, {sT0}, {sT1}
              s_lshl_b32 {sT3}, {sT3}, 2
              s_add_u32 {sT3}, {sT3}, {sROT}
              s_lshl_b32 {sT3}, {sT3}, 10
              s_add_u32 {sT3}, {sT3}, {sT2}
              v_add_u32 v{VRS+2*pz}, {sT3}, v{VL16}
              s_lshl_b32 {sT0}, {sT0}, 2
              s_add_u32 {sT0}, {sT0}, {sROT}
              s_lshl_b32 {sT0}, {sT0}, 10
              s_add_u32 {sT0}, {sT0}, {sT2}
              s_cmp_eq_u32 {sW}, 3
              s_cselect_b32 {sT0}, {OOB}, {sT0}
              v_add_u32 v{VRS+2*pz+1}, {sT0}, v{VL16}""")
    P(f"""s_mov_b32 {sL2E}, {LOG2E}
          s_mov_b32 {sI2P}, {INV2PI}
          s_lshl_b32 {sT0}, {sJ}, 13
          s_add_u32 {sT0}, {sT0}, {E_OFF}
          s_add_u32 s{iSE}, s{iSWS}, {sT0}
          s_addc_u32 s{iSE+1}, s{iSWS+1}, 0""")
    set_srd(iSE, 8192)
    P(f"""v_lshrrev_b32 v{T+17}, 4, v{VLANE}
          v_bfe_u32 v{T+20}, v{VLANE}, 2, 2
          v_lshlrev_b32 v{PK_TRB}, 7, v{T+20}
          v_lshl_add_u32 v{PK_TRB}, v{T+17}, 12, v{PK_TRB}
          v_lshl_add_u32 v{PK_TRB}, v{T+21}, 3, v{PK_TRB}
          v_bfe_u32 v{PK_SSW}, v{VLANE}, 3, 1
          v_lshl_add_u32 v{PK_SSW}, v{T+22}, 1, v{PK_SSW}
          v_lshlrev_b32 v{PK_SSW}, 5, v{PK_SSW}""")
    P.emit(set_ap("P", sT0))
    seg = T + 23
    P(f"""s_mul_i32 {sT0}, {sW}, 5120
          s_add_u32 {sT0}, {sT0}, {HT}
          v_mul_u32_u24 v{AHW}, 80, v{VC4}
          v_lshl_add_u32 v{AHW}, v{hh}, 5, v{AHW}
          v_add_u32 v{AHW}, {sT0}, v{AHW}
          v_lshl_add_u32 v{AHR}, v{hh}, 3, v{T+20}
          v_mul_u32_u24 v{AHR}, 80, v{AHR}
          v_and_b32 v{T+23}, 1, v{VLANE}
          v_lshl_add_u32 v{AHR}, v{T+23}, 5, v{AHR}
          v_lshl_add_u32 v{AHR}, v{T+22}, 4, v{AHR}
          v_bfe_u32 v{T+23}, v{VLANE}, 1, 1
          v_lshl_add_u32 v{AHR}, v{T+23}, 3, v{AHR}
          v_add_u32 v{AHR}, {sT0}, v{AHR}
          v_lshl_add_u32 v{ARPR}, v{hh}, 2, v{T+20}
          v_lshlrev_b32 v{ARPR}, 6, v{ARPR}
          v_lshl_add_u32 v{ARPR}, v{T+22}, 5, v{ARPR}
          v_lshl_add_u32 v{ARPR}, v{T+21}, 3, v{ARPR}
          v_add_u32 v{ARPR}, {sT0}, v{ARPR}
          v_add_u32 v{RPT}, {sT0}, v{VL16}
          s_lshl_b32 {sT0}, {sW}, 1
          v_add_u32 v{seg}, {sT0}, v{hh}
          v_lshlrev_b32 v{AEXR}, 8, v{seg}
          v_lshl_add_u32 v{AEXR}, v{VC4}, 3, v{AEXR}
          v_add_u32 v{AEXR}, {EXZ}, v{AEXR}
          v_add_u32 v{AEXW}, 1792, v{AEXR}
          s_sub_u32 {sT0}, 15, {sM}
          s_lshl_b32 {sT0}, {sT0}, 9
          v_lshlrev_b32 v{VEW}, 4, v{VC4}
          v_add_u32 v{VEW}, {sT0}, v{VEW}
          v_cmp_eq_u32 vcc, 7, v{seg}
          v_lshlrev_b32 v{T+25}, 9, v{hh}
          v_sub_u32 v{VER}, v{VEW}, v{T+25}
          s_lshl_b32 {sT0}, {sW}, 11
          s_sub_u32 {sT0}, {14*512}, {sT0}
          v_add_u32 v{VER}, {sT0}, v{VER}
          v_cndmask_b32 v{VEW}, v{T+24}, v{VEW}, vcc""")
    tau = T + 25
    P(f"""v_bfe_u32 v{tau}, v{VLANE}, 2, 1
          v_lshlrev_b32 v{tau}, 4, v{tau}
          v_lshl_add_u32 v{tau}, v{T+14}, 2, v{tau}
          v_add_u32 v{tau}, v{tau}, v{T+21}
          s_lshr_b32 {sT0}, {sXB}, 7
          s_lshl_b32 {sT1}, {sJ}, 12
          s_add_u32 {sT0}, {sT0}, {sT1}
          s_add_u32 {sT0}, {sT0}, {ST_OFF}
          s_cmp_eq_u32 {sJ4}, 0
          s_cselect_b32 {sT0}, {sT0}, {OOB}
          v_lshrrev_b32 v{VST}, 2, v{row}
          v_lshl_add_u32 v{VST}, v{T+14}, 3, v{VST}
          v_add_u32 v{VST}, {sT0}, v{VST}
          s_lshl_b32 {sT0}, {sW}, 7
          s_add_u32 {sT0}, {sT0}, {RS}
          v_lshlrev_b32 v{PR}, 2, v{tau}
          v_add_u32 v{PR}, {sT0}, v{PR}
          v_lshlrev_b32 v{ARS}, 6, v{hh}
          v_add_u32 v{ARS}, {sT0}, v{ARS}
          s_lshl_b32 {sT0}, {sW}, 2
          v_lshlrev_b32 v{ACSB_R}, 4, v{VC4}
          v_add_u32 v{ACSB_R}, {CSB}, v{ACSB_R}
          v_add_u32 v{ACSB_W}, {sT0}, v{ACSB_R}
          v_lshlrev_b32 v{ACSG_W}, 2, v{VC4}
          v_add_u32 v{ACSG_W}, {CSG}, v{ACSG_W}""")
    a_, b_, t0, t1 = T + 26, T + 27, T + 1, T + 2
    P(f"""v_lshlrev_b32 v{PLRE}, 16, v{PLRE}
          v_lshlrev_b32 v{PLIM}, 16, v{PLIM}
          v_lshlrev_b32 v{PLDT}, 16, v{PLDT}
          v_mul_f32 v{PLDT}, {sL2E}, v{PLDT}
          v_exp_f32 v{PLDT}, v{PLDT}
          v_cvt_f32_u32 v{T+3}, v{seg}""")
    P.emit(bfr(PLDT, PLDT))
    P(f"""v_mul_f32 v{a_}, v{PLDT}, v{PLRE}
          v_mul_f32 v{b_}, v{PLDT}, v{PLIM}
          v_mul_f32 v{a_}, {sL2E}, v{a_}
          v_mul_f32 v{b_}, {sI2P}, v{b_}
          v_mul_f32 v{T+3}, {hex(f2u(16.0))}, v{T+3}""")
    cpow(None, L1R, L1I, a_, b_, t0, t1)
    cpow(hex(f2u(16.0)), L16R, L16I, a_, b_, t0, t1)
    cpow(hex(f2u(128.0)), L128R, L128I, a_, b_, t0, t1)
    cpow(hex(f2u(256.0)), L256R, L256I, a_, b_, t0, t1)
    cpow(f"v{T+3}", LSR, LSI, a_, b_, t0, t1)
    P(f"""v_mul_f32 v{t1}, v{PLRE}, v{PLRE}
          v_fma_f32 v{t1}, v{PLIM}, v{PLIM}, v{t1}
          v_rcp_f32 v{t1}, v{t1}
          v_add_f32 v{t0}, -1.0, v{L1R}
          v_mul_f32 v{KR}, v{t0}, v{PLRE}
          v_fma_f32 v{KR}, v{L1I}, v{PLIM}, v{KR}
          v_mul_f32 v{KI}, v{L1I}, v{PLRE}
          v_fma_f32 v{KI}, -v{t0}, v{PLIM}, v{KI}
          v_add_f32 v{t1}, v{t1}, v{t1}
          v_mul_f32 v{KR}, v{KR}, v{t1}
          v_mul_f32 v{KI}, v{KI}, v{t1}
          v_mov_b32 v{VNON}, {sNON}""")
    if OPT.get('p2early', 1):
        p2scal()
    mark1 = len(P.l)
    P(f"""s_lshl_b32 {sT3}, {sM}, 2
          s_add_u32 {sT3}, {sT3}, {sW}
          s_mul_i32 {sT2}, {sT3}, 176
          s_lshr_b32 {sT0}, {sJ}, 2
          s_mul_i32 {sT0}, {sT0}, 44
          s_add_u32 {sT2}, {sT2}, {sT0}
          s_add_u32 {sT2}, {sT2}, {sJ4}
          s_lshl_b32 {sT2}, {sT2}, 10
          s_mul_i32 {sT0}, {sJ4}, 3072
          s_add_u32 {sHB}, {sT2}, {sT0}
          s_add_u32 {sHB}, {sHB}, 16384""")
    for t in range(4):
        P(f"s_add_u32 {sT0}, {sW}, {t}\ns_and_b32 {sT0}, {sT0}, 3\ns_lshl_b32 {sT0}, {sT0}, 12\ns_add_u32 {sHT[t]}, {sT2}, {sT0}")
    P(f"s_add_u32 {sT2}, {sT2}, 32768")
    for t in range(3):
        tab = sum((((w + t) % 3) << (4 * w)) for w in range(4))
        P(f"""s_lshl_b32 {sT0}, {sW}, 2
              s_lshr_b32 {sT0}, {tab}, {sT0}
              s_and_b32 {TB[t]}, {sT0}, 3
              s_lshl_b32 {sT0}, {TB[t]}, 12
              s_add_u32 {sHT[4+t]}, {sT2}, {sT0}""")

    if not OPT.get('p2early', 1):
        p2scal()
    nlate = len(P.l) - mark1
    rest = P.l[mark0:]
    del P.l[mark0:]
    groups, cur = [], []
    for k, ins in enumerate(rest):
        cur.append(ins)
        live = False
        for r in ("scc", "s100", "s101"):
            for nx in rest[k + 1:k + 8]:
                if r in nx.rd: live = True; break
                if r in nx.wr: break
        if not live:
            groups.append(cur); cur = []
    assert not cur
    k = 0
    while k < nlate:
        g = groups.pop(); LATE.insert(0, g); k += len(g)
    assert k == nlate
    n = 0
    while groups and n < NPRE:
        g = groups.pop(0); P.l.extend(g); n += len(g)
    DEFER.extend(groups)
    stamp(2)
    P('Lmark0:')


def dma_B(n):
    base = (SCR + (n >> 1) * 16384 if n < 4 else ((n - 4) >> 1) * 16384) + (n & 1) * 2048
    return [f"s_add_u32 m0, {sWL}, {base}", f"s_add_u32 {sSO}, {sBB}, {KB[n]}",
            (f"buffer_load_dwordx4 v{VB}, {SBR}, {sSO} offen" + (" nt" if n < OPT.get("ntb", 0) else "") + " lds", f"B{n}"),
            f"s_add_u32 m0, {sWL}, {base+1024}",
            (f"buffer_load_dwordx4 v{VB}, {SBI}, {sSO} offen" + (" nt" if n < OPT.get("ntb", 0) else "") + " lds", f"B{n}")]

def dma_X(n):
    return [f"s_add_u32 m0, {sWL}, {n*16384}", f"s_add_u32 {sSO}, {sXB}, {KB[n]}"] + \
           [(f"buffer_load_dwordx4 v{VX[sb]}, {SX}, {sSO} offen offset:{sb*1024}" + (" nt" if n < OPT.get("ntx", 0) else "") + " lds", f"X{n}") for sb in range(4)]

def dma_pass(ps, b):
    vp = VP if ps == "P" else VX
    r = [f"s_add_u32 m0, {sWL}, {((b+2)%8)*16384}", f"s_mul_i32 {sSO}, {KB[b]}, 1792", f"s_add_u32 {sSO}, {sSO}, {sPB}"]
    return r + [(f"buffer_load_dwordx4 v{vp[ks]}, {SW}, {sSO} offen offset:{ks*1024}" + (" nt" if (ps, b) == ("Q", 0) and OPT.get("ntq", 0) else "") + " lds", f"{ps}{b}") for ks in range(4)]

def set_ap(ps, tmp):
    r = []
    for t in range(4 if ps == "P" else 3):
        if ps == "P":
            r += [f"s_add_u32 {tmp}, {sW}, {t}", f"s_and_b32 {tmp}, {tmp}, 3", f"s_lshl_b32 {tmp}, {tmp}, 5"]
        else:
            r += [f"s_lshl_b32 {tmp}, {TB[t]}, 5"]
        r += [f"v_xor_b32 v{AP[t]}, {tmp}, v{PK_SSW}", f"v_add_u32 v{AP[t]}, v{PK_TRB}, v{AP[t]}", f"v_add_u32 v{APH[t]}, 0x10000, v{AP[t]}"]
    return r

ringpos = [0]
def ring():
    r = ARING + 4 * (ringpos[0] % NRING)
    ringpos[0] += 1
    return r

def pop_vm(q):
    n = 0
    while q:
        x = q.pop(0)
        P.emit([x]); n += 1
        if isvm(x):
            break
    return n


REPACK = [(f"buffer_store_dwordx4 {vr(RPW+4*g,4)}, v{VRS+g}, {SWS}, 0 offen sc1", "pub1") for g in range(2)]

def landing():
    XL = OPT["xlook"]
    npass = [1]
    XT = [ACC_G[1], ACC_G[0]]
    BF = [128, 168]
    def reads(n):
        off = (n & 3) * 16384 + (0x10000 if False else 0)
        boff = ((n & 3) >> 1) * 16384 + (n & 1) * 2048
        r = [(f"ds_read_b128 {vr(XT[n&1]+4*s_,4)}, v{AX[s_]} offset:{off}", f"r{n}") for s_ in range(4)]
        r += [(f"ds_read_b128 {ar(BF[n&1]+8*s_+4*mat,4)}, v{AB[s_]} offset:{boff+mat*1024}", f"r{n}") for s_ in range(4) for mat in range(2)]
        r += [(f"ds_read_b128 {ar(BF[n&1]+32+4*mat,4)}, v{ABC} offset:{boff+mat*1024}", f"r{n}") for mat in range(2)]
        return r
    def sync(n):
        if n == 4:
            for s_ in range(4):
                P(f"v_add_u32 v{AX[s_]}, 0x10000, v{AX[s_]}\nv_add_u32 v{AB[s_]}, {(-SCR) & 0xffffffff}, v{AB[s_]}")
            P(f"v_add_u32 v{ABC}, {(-SCR) & 0xffffffff}, v{ABC}")
        P(f"@waitvm X{n},B{n}\ns_barrier")
        if OPT.get("fine"): stamp(48 + n)
    def vmq(n):
        nn = n + 1 + XL
        q = []
        if nn < 8:
            q += dma_X(nn) + dma_B(nn)
        else:
            for _ in range(OPT.get("pper", 1)):
                if npass[0] < min(6, n - 1) and n < OPT.get('plast', 8):
                    q += dma_pass("P", npass[0]); npass[0] += 1
        if n < len(ORDER[2]):
            for g in ORDER[2][n]: q += GRP[g]()
        if n == OPT.get("rpn", 7) and not OPT.get("rpsp", 0):
            q += REPACK
        return q
    sync(0)
    P.emit(reads(0))
    P.emit(dma_X(XL) + dma_B(XL))
    for n in range(8):
        P(f"@waitlg r{n}")
        q = vmq(n)
        for kk in range(16):
            P(f"v_dot2_f32_bf16 v{S1}, v{XT[n&1]+kk}, {sONE}, v{S1}\nv_dot2_f32_bf16 v{S2}, v{XT[n&1]+kk}, v{XT[n&1]+kk}, v{S2}")
            if kk in (1, 9): pop_vm(q)
        rd = []
        if n < 7:
            sync(n + 1)
            rd = reads(n + 1)
        if n == OPT.get('p0w', 5):
            rd += [f"v_add_u32 v{T}, {sWL}, v{VL16}"] + [(f"ds_write_b128 v{T}, {ar(P0R+4*ks,4)} offset:{2*16384+ks*1024}", f"r{n+1}") for ks in range(4)]
        if n == OPT.get('rpn', 7) - 1:
            rd += [f"ds_write_b128 v{RPT}, {vr(RPW+4*g,4)} offset:{g*1024}" for g in range(2)]
            rd += [(f"ds_read_b64_tr_b16 {vr(RPW+4*g+2*a,2)}, v{ARPR} offset:{g*1024+a*512}", f"r{n+1}") for g in range(2) for a in range(2)]
        for k in range(8):
            s_, mat = k >> 1, k & 1
            acc = vr(ACC_S + 16 * mat, 16)
            P(f"v_mfma_f32_32x32x16_bf16 {acc}, {vr(XT[n&1]+4*s_,4)}, {ar(BF[n&1]+8*s_+4*mat,4)}, {'0' if (n == 0 and s_ == 0) else acc}")
            nr = 3 if (len(rd) > 2 * (8 - k) or k < OPT.get('lquiet', 0)) else 2
            P.emit(rd[:nr]); rd = rd[nr:]
            LQ = OPT.get("lquiet", 0) if n < 7 else 0
            if k >= LQ:
                per = 16 // (8 - LQ)
                for z in range(per * (k - LQ), per * (k - LQ + 1)):
                    P(f"v_accvgpr_write_b32 a{AXF+16*n+z}, v{XT[n&1]+z}")
            nb = pop_vm(q) if k >= 2 or len(q) > 12 else 0
            pop_defer((OPT.get('dfill', 2) if k >= OPT.get('lquiet', 0) else 0) - nb)
        for mat in range(2):
            d = vr(CSBR + 4 * mat, 4)
            P(f"v_mfma_f32_16x16x32_bf16 {d}, {vr(SEL,4)}, {ar(BF[n&1]+32+4*mat,4)}, {'0' if n == 0 else d}")
        P.emit(rd + q)
    print('deferred left after landing:', sum(len(g) for g in DEFER))
    pop_defer(9999)
    P('Lmark1:')
    stamp(3)
    return npass[0]


def split_cs(src, ce, t0, t1):
    return bfr(t0, src) + [f"v_sub_f32 v{t1}, v{src}, v{t0}", f"v_cvt_pk_bf16_f32 v{ce}, v{t0}, v{t1}"]


def passes(npass):
    NT = {"P": 4, "Q": 3}
    GI = lambda ps, t: t if ps == "P" else 4 + t
    def order(nt, nto):
        o = [(t, b, ks) for b in range(8 - nto) for ks in range(4) for t in range(nt)]
        return o + [(t, b, ks) for t in range(nt) for b in range(8 - nto, 8) for ks in range(4)]
    frs = [("P",) + x for x in order(4, OPT["to1"])] + [("Q",) + x for x in order(3, OPT["to2"])]
    last_use, tile_last = {}, {}
    for k, (ps, t, b, ks) in enumerate(frs):
        last_use[(ps, b)] = k
        tile_last[(ps, t)] = k
    NF = len(frs)
    last1 = 127
    st = dict(done=-1, bars=0, marks={}, gap=0, lastvm=-9, lastdma=-9, quiet=-1)
    released = {"free": True}
    pending = [("P", b) for b in range(npass, 8)] + [("Q", b) for b in range(8)]
    prev_occ = {}
    for b in range(8):
        prev_occ[("P", b)] = "free" if b < 6 else "S"
        prev_occ[("Q", b)] = ("P", b)
    dma_q, opened = [], set()
    early_w = [w_load(GSTEP[g], ntl) for g in sorted(range(12), key=lambda g: ((g & 3) if OPT.get('lead', 0) else 0, g)) for ntl in range(2)]
    early_c = list(range(8))
    late_w = [((2 * (g - 12) + ntl) >> 2, w_load(GSTEP[g], ntl)) for g in range(12, 28) for ntl in range(2)]
    alt = [False]
    h_done = [0]

    def barrier(tagwait=None):
        if tagwait:
            P(f"@waitvm {tagwait}")
        P("@waitlg xch")
        if OPT.get("fine"): stamp(16 + st["bars"])
        P("s_barrier")
        st["quiet"] = st["gap"] + OPT.get("quiet", 0)
        st["bars"] += 1
        released["S"] = True
        for key, lu in last_use.items():
            if lu <= st["done"]:
                released[key] = True

    gate_done = lambda k: ("gate", lambda: st["done"] >= k)
    gate_bar = lambda name: ("gate", lambda: name in st["marks"] and st["bars"] > st["marks"][name])
    mark = lambda name: ("mark", name)
    gate_mark = lambda name: ("gate", lambda: name in st["marks"])
    call = lambda f: ("call", f)

    P(f"v_mov_b32 v{T+8}, 0\nv_mov_b32 v{T+9}, 0\ns_lshl_b32 {sT2}, {sW}, 9\ns_add_u32 {sT2}, {sT2}, {EXZ}")
    P(f"v_lshrrev_b32 v{T+10}, 1, v{VL16}\nv_add_u32 v{T+10}, {sT2}, v{T+10}")
    P(f"ds_write_b64 v{T+10}, {vr(T+8,2)}", tag="xch")
    u0, u1, mean, mb, den = T, T + 1, T + 2, T + 4, T + 5
    P(f"v_mov_b32 v{u0}, v{S1}\nv_mov_b32 v{u1}, v{S2}")
    P(f"ds_write_b32 v{ACSB_W}, v{CSBR}\nds_write_b32 v{ACSB_W}, v{CSBI} offset:512", tag="xch")

    e1 = [f"ds_read_b128 {vr(T+12,4)}, v{ACSB_R}", f"ds_read_b128 {vr(T+16,4)}, v{ACSB_R} offset:512",
          f"v_permlane32_swap_b32 v{S1}, v{u0}", f"v_permlane32_swap_b32 v{S2}, v{u1}",
          f"v_add_f32 v{S1}, v{S1}, v{u0}", f"v_add_f32 v{S2}, v{S2}, v{u1}",
          f"v_mul_f32 v{mean}, {hex(f2u(1/512))}, v{S1}", f"v_mul_f32 v{S2}, {hex(f2u(1/512))}, v{S2}",
          f"v_fma_f32 v{S2}, -v{mean}, v{mean}, v{S2}", f"v_max_f32 v{S2}, 0, v{S2}"]
    e1 += bfr(S2, S2) + [f"v_add_f32 v{S2}, {hex(f2u(1e-5))}, v{S2}"] + bfr(S2, S2) + [f"v_sqrt_f32 v{S2}, v{S2}"]
    e1 += bfr(mb, mean) + bfr(den, S2)
    e1 += [f"v_rcp_f32 v{S1}, v{den}", f"v_xor_b32 v{u0}, 0x80000000, v{mb}", f"v_lshrrev_b32 v{u1}, 16, v{u0}",
           (f"ds_write_b32 v{PR}, v{S1}", "rsw"), f"v_or_b32 v{u0}, v{u0}, v{u1}",
           ("atomic", [f"v_cmp_gt_u32 vcc, 32, v{VLANE}", f"v_mov_b32 v{SIG}, v{den}", f"v_mul_f32 v{C1}, {sL2E}, v{S1}",
                       f"v_cndmask_b32 v{XE}, 0, v{u0}, vcc"])]
    for mat, b in ((0, T + 12), (1, T + 16)):
        e1 += [f"v_add_f32 v{b}, v{b}, v{b+1}", f"v_add_f32 v{b+2}, v{b+2}, v{b+3}", f"v_add_f32 v{b}, v{b}, v{b+2}"]
        e1 += split_cs(b, CE0 if mat == 0 else CE1, b + 1, b + 2)
    R16 = T + 6
    e1 += ["@waitlg rsw"] + [f"ds_read_b128 {vr(R16+4*k,4)}, v{ARS} offset:{16*k}" for k in range(4)]
    e1 += [f"v_mfma_f32_32x32x16_bf16 {vr(ACC_S,16)}, {vr(XE,4)}, {vr(CE0,4)}, {vr(ACC_S,16)}",
           f"v_mfma_f32_32x32x16_bf16 {vr(ACC_S+16,16)}, {vr(XE,4)}, {vr(CE1,4)}, {vr(ACC_S+16,16)}",
           f"v_sub_f32 v{C1}, 0, v{C1}",
           (f"buffer_store_dwordx2 {vr(mb,2)}, v{VST}, {SWS}, 0 offen sc1", "pubA")]
    e1 += [f"v_add_u32 v{AX[s_]}, 0xffff0000, v{AX[s_]}" for s_ in range(4)]
    e1 += [f"v_mov_b32 v{VX[0]}, v{PK_VQ}"] + [f"v_add_u32 v{VX[k]}, {k*56320}, v{PK_VQ}" for k in range(1, 4)] + [mark("vq")]
    for q in range(16):
        e1 += [f"v_mul_f32 v{ACC_S+q}, v{ACC_S+q}, v{R16+q}", f"v_mul_f32 v{ACC_S+16+q}, v{ACC_S+16+q}, v{R16+q}"]
    ea, eb = (T + 0, T + 1), (T + 2, T + 3)
    cur = (ACC_S, ACC_S + 16)
    for q in range(1, 16):
        nxt = ea if q % 2 else eb
        e1 += cstep(nxt, (L1R, L1I), cur, (ACC_S + q, ACC_S + 16 + q))
        cur = nxt
    assert cur == ea
    e1 += [(f"ds_write_b64 v{AEXW}, {vr(ea[0],2)}", "xch"), mark("ex")]
    e1 += [("delay", 1), call(barrier)] if OPT["exbar"] else [gate_bar("ex")]
    e1 += [f"ds_read_b64 {vr(T+8+2*k,2)}, v{AEXR} offset:{256*k}" for k in range(7)] + [("delay", 2)]
    cur = (T + 8, T + 9)
    for k in range(1, 7):
        u = (T + 8 + 2 * k, T + 9 + 2 * k)
        nx = (PR, PI) if k == 6 else u
        e1 += cstep(nx, (L16R, L16I), cur, u)
        cur = nx
    e1 += [f"v_mov_b32 v{T+5}, v{VNON}", f"v_mov_b32 v{T+7}, v{VNON}"] + cstep((T + 4, T + 6), (L16R, L16I), (PR, PI), ea)
    e1 += [(f"buffer_store_dwordx4 {vr(T+4,4)}, v{VEW}, {SE}, 0 offen sc1", "pubE"), call(lambda: stamp(4)), ("delay", 1), mark("e1")]

    cl = [gate_mark("epiP3"), ("delay", OPT.get("cld", 16)), "@waitvm pubA", mark("clr"), gate_bar("clr"), flag_store(1), call(lambda: stamp(5)), mark("flA")]
    lt = [("atomic", [i.text for i in g]) for g in LATE] + [mark("late")]
    ku = [gate_mark("e1"), gate_mark("late"), f"s_load_dwordx2 s[{pDSK}:{pDSK+1}], s[0:1], 64"]
    for q in list(range(16)) + [-1]:
        re_, im_ = (ACC_S + q, ACC_S + 16 + q) if q >= 0 else (PR, PI)
        t0, t1 = T + 4 + 2 * (q & 1), T + 5 + 2 * (q & 1)
        ku += [f"v_mul_f32 v{t0}, v{KI}, v{im_}", f"v_mul_f32 v{t1}, v{KI}, v{re_}",
               f"v_fma_f32 v{re_}, v{KR}, v{re_}, -v{t0}", f"v_fma_f32 v{im_}, v{KR}, v{im_}, v{t1}"]
    ku += [f"v_lshrrev_b32 v{T+4}, 3, v{VLANE}", f"v_and_b32 v{T+5}, 7, v{VLANE}", f"v_lshrrev_b32 v{T+6}, 1, v{T+4}",
           f"v_xor_b32 v{T+6}, v{T+5}, v{T+6}", f"v_lshlrev_b32 v{T+6}, 4, v{T+6}",
           f"v_lshl_add_u32 v{VC[0]}, v{T+4}, 10, v{T+6}", f"v_xor_b32 v{VC[1]}, 64, v{VC[0]}",
           f"v_add_u32 v{VC[2]}, {2*7168}, v{VC[0]}", f"v_add_u32 v{VC[3]}, {3*7168}, v{VC[1]}", f"v_add_u32 v{VC[1]}, 7168, v{VC[1]}"]
    ku += [("atomic", [f"s_and_b32 {sT2}, s59, 1", f"s_lshl_b32 {sT2}, {sT2}, 5", f"s_lshr_b32 {sT3}, {sMU}, 6", f"s_or_b32 {sT2}, {sT2}, {sT3}"] +
                      [f"v_xor_b32 v{AX[s_]}, {sT2}, v{AX[s_]}" for s_ in range(4)])]
    ku += [f"v_add_u32 v{AXH[s_]}, 0x10000, v{AX[s_]}" for s_ in range(4)]
    ku += [("atomic", [f"s_lshl_b32 {sT2}, {TB[0]}, 7", f"v_add_u32 v{ACSB_W}, {sT2}, v{ACSG_W}", f"s_lshl_b32 {sT2}, {sW}, 7", f"v_add_u32 v{ACSG_W}, {sT2}, v{ACSG_W}"]),
           ("atomic", [f"s_lshl_b32 {sT2}, {sW}, 2", f"s_add_u32 {sT2}, {sT2}, {sM}", f"v_lshrrev_b32 v{VEW}, 5, v{VLANE}",
                       f"v_add_u32 v{VEW}, {sT2}, v{VEW}"]),
           f"v_add_u32 v{VEW}, -12, v{VEW}", f"v_max_i32 v{VEW}, 0, v{VEW}", f"v_min_i32 v{VEW}, 5, v{VEW}", f"v_and_b32 v{VEW}, 6, v{VEW}",
           f"v_mul_lo_u32 v{VEW}, v{VEW}, {sNON}",
           f"v_mul_f32 v{L16R}, v{L256I}, v{L256I}", f"v_mul_f32 v{L16I}, v{L256R}, v{L256I}",
           f"v_fma_f32 v{L16R}, v{L256R}, v{L256R}, -v{L16R}", f"v_add_f32 v{L16I}, v{L16I}, v{L16I}",
           ("atomic", [f"s_lshl_b32 {sT2}, {sW}, 8", f"s_add_u32 {sT2}, {sT2}, {EXZ}", f"v_lshlrev_b32 v{VST}, 3, v{VC4}", f"v_add_u32 v{PRW}, {sT2}, v{VST}"]),
           f"v_add_u32 v{VST}, {EXZ}, v{VST}", mark("vc")]
    vo = [gate_mark("e1")] + ([] if OPT.get('p2early', 1) else [gate_mark("late")])
    vo += [("atomic", [f"s_lshl_b32 {sXB}, s59, 10", f"v_add_u32 v{VO4[0]}, {sXB}, v{VL16}"])]
    vo += [f"s_sub_u32 {sWQ[k]}, {sWA[k][0]}, {sMU}" for k in range(2)]
    vo += [f"v_xor_b32 v{VO4[k]}, {k*1024}, v{VO4[0]}" for k in range(1, 4)]
    vo += [f"v_and_b32 v{T+20}, 3, v{VLANE}", f"v_lshlrev_b32 v{T+20}, 2, v{T+20}", f"v_bfe_u32 v{T+21}, v{VLANE}, 2, 1",
           f"v_lshl_add_u32 v{T+21}, v{T+21}, 9, v{T+20}", mark("vo")]
    fw = (REPACK + [("delay", OPT.get("rpd", 12))] if OPT.get("rpsp", 0) else []) + [gate_done(OPT.get("fw", 8)), "@waitvm pub1", mark("p1"), gate_bar("p1"), flag_store(0)]
    ld, chk = poll(T + 22, T + 21, sPW)
    pl = [gate_mark("vo"), gate_done(OPT["pa"]), ld, ("delay", OPT["pad"]), ("atomic", chk), call(lambda: stamp(6)), mark("pollW")]
    lda = (f"buffer_load_dword v{T+22}, v{T+21}, {SWS}, {sXB} offen sc1", "poll")
    eva = [f"v_cmp_ne_u32 vcc, {sBB}, v{T+22}"]
    pl += [gate_done(OPT.get("pe", 150)), f"v_lshrrev_b32 v{T+21}, 2, v{VLANE}", f"v_lshl_add_u32 v{T+21}, v{T+21}, 7, v{T+20}",
           ("atomic", [f"s_lshl_b32 {sXB}, {sW}, 11", f"s_add_u32 {sXB}, {sXB}, {FL_OFF}", "s_cmp_eq_u32 s2, 0",
                       f"s_cselect_b32 {sXB}, {sXB}, {OOB}", f"s_cselect_b32 {sBB}, {sNON}, 0", f"s_cselect_b32 {sROT}, {EP_OFF - FL_OFF}, {OOB}"]),
           lda, ("delay", OPT["pad"]), ("atomic", eva + retry_check(eva, [lda], 8)), mark("epok")]

    ce_flip = [0]
    def glu_epi(ps, t):
        gi = GI(ps, t)
        acc = ACC_G[gi]
        pso = 0 if ps == "P" else 512
        r = [gate_done(tile_last[(ps, t)])]
        ce = CE0 if ce_flip[0] % 2 == 0 else CE1
        ce_flip[0] += 1
        tt = T + 24
        acs = ACSG_W if ps == "P" else ACSB_W
        pso = 0 if ps == "P" else 1024
        if t == 0:
            r += [("delay", 2), (f"ds_write_b32 v{acs}, v{CSGA} offset:{pso}", "xch"),
                  (f"ds_write_b32 v{acs}, v{CSGA} offset:{pso + 128*NT[ps]}", "xch"), mark(f"csg{ps}")]
            r += split_cs(CSGA, ce, tt + 1, tt + 2) + [mark(f"csgfree{ps}")]
        else:
            pre = ([call(barrier)] if t == 1 and OPT.get("csbar", 1) else []) + [gate_bar(f"csg{ps}"),
                   f"ds_read_b32 v{tt+3}, v{acs} offset:{pso + 128*t}", ("delay", 2)] + split_cs(tt + 3, ce, tt + 1, tt + 2)
            r = pre + r
        r += [f"v_mfma_f32_32x32x16_bf16 {vr(acc,16)}, {vr(ce,4)}, {vr(XE,4)}, {vr(acc,16)}", ("delay", 2)]
        for hf in range(2):
            es = range(4 * hf, 4 * hf + 4)
            r += [f"v_mul_f32 v{acc+e}, v{C1}, v{acc+e}" for e in es]
            r += [f"v_exp_f32 v{acc+e}, v{acc+e}" for e in es]
            r += [f"v_fma_f32 v{acc+e}, v{acc+e}, v{SIG}, v{SIG}" for e in es]
            r += [f"v_rcp_f32 v{acc+e}, v{acc+e}" for e in es]
            r += [f"v_mul_f32 v{acc+8+e}, v{acc+8+e}, v{acc+e}" for e in es]
        r += [f"v_cvt_pk_bf16_f32 v{acc+k}, v{acc+8+2*k}, v{acc+9+2*k}" for k in range(4)]
        r += [(f"buffer_store_dwordx4 {vr(acc,4)}, v{VL16}, {SWS}, {sHT[gi]} offen" + ("" if OPT.get("unsafe") else " sc1"), "pubA" if ps == "P" else "pubB"), mark(f"epi{ps}{t}")]
        return r
    epi = [gate_mark("vc")]
    for t in range(4):
        epi += glu_epi("P", t)
    epiq = [gate_mark("epiP3")]
    for t in range(3):
        epiq += glu_epi("Q", t)

    EL = ACC_G[0]
    eloads = [(f"buffer_load_dwordx4 {vr(EL+4*i,4)}, v{VER}, {SE}, 0 offen offset:{(1-i)*1024} sc1", "el") for i in range(2)]
    l1 = [gate_mark("epiP0"), gate_done(OPT["el"])] + eloads + [("delay", OPT["eld"])]
    ev = [f"v_add_u32 v{T+16}, v{EL+1}, v{EL+3}", f"v_add3_u32 v{T+16}, v{T+16}, v{EL+5}, v{EL+7}", f"v_cmp_ne_u32 vcc, v{VEW}, v{T+16}"]
    l1 += ev[:-1] + [("atomic", ev[-1:] + retry_check(ev, eloads)), call(lambda: stamp(7))]
    cur = (EL + 4, EL + 6)
    l1 += cstep(cur, (L256R, L256I), (EL, EL + 2), cur)
    sa, sb_ = (T + 16, T + 17), (T + 18, T + 19)
    l1 += [f"v_mov_b32 v{sa[0]}, v{cur[0]}", f"v_mov_b32 v{sa[1]}, v{cur[1]}", f"s_nop 0",
           f"v_permlane32_swap_b32 v{cur[0]}, v{sa[0]}", f"v_permlane32_swap_b32 v{cur[1]}, v{sa[1]}"]
    l1 += cstep(sa, (L128R, L128I), cur, sa)
    l1 += [(f"ds_write_b64 v{PRW}, {vr(sa[0],2)}", "xch"), mark("xw"), (gate_bar("xw") if not OPT.get("xbar", 0) else call(barrier))]
    l1 += [f"ds_read_b64 {vr(EL+8+2*k,2)}, v{VST} offset:{256*k}" for k in range(4)] + [("delay", 2)]
    cur = (EL + 8, EL + 9)
    for k in range(1, 4):
        u = (EL + 8 + 2 * k, EL + 9 + 2 * k)
        nx = sa if k == 3 else u
        l1 += cstep(nx, (L16R, L16I), cur, u)
        cur = nx
    l1 += [f"v_mul_f32 v{sb_[0]}, v{KI}, v{sa[1]}", f"v_mul_f32 v{sb_[1]}, v{KI}, v{sa[0]}",
           f"v_fma_f32 v{sa[0]}, v{KR}, v{sa[0]}, -v{sb_[0]}", f"v_fma_f32 v{sa[1]}, v{KR}, v{sa[1]}, v{sb_[1]}"]
    l1 += cstep((PR, PI), (LSR, LSI), sa, (PR, PI))
    cur = (PR, PI)
    for q in range(16):
        nxt = (ACC_S + q, ACC_S + 16 + q)
        l1 += cstep(nxt, (L1R, L1I), cur, nxt)
        cur = nxt
        if q % 2 == 1:
            l1 += [f"v_cvt_pk_bf16_f32 v{T+(q>>1)}, v{ACC_S+q-1}, v{ACC_S+q}",
                   f"v_cvt_pk_bf16_f32 v{T+8+(q>>1)}, -v{ACC_S+16+q-1}, -v{ACC_S+16+q}"]
    l1 += [(f"ds_write_b128 v{AHW}, {vr(T,4)}", "htw"), (f"ds_write_b128 v{AHW}, {vr(T+4,4)} offset:16", "htw"),
           (f"ds_write_b128 v{AHW}, {vr(T+8,4)} offset:{32*80}", "htw"), (f"ds_write_b128 v{AHW}, {vr(T+12,4)} offset:{32*80+16}", "htw"),
           ("delay", 2), "@waitlg htw"]
    l1 += [f"ds_read_b64_tr_b16 {vr(EL+4*u+2*a,2)}, v{AHR} offset:{(16*u+4*a)*80}" for u in range(4) for a in range(2)]
    l1 += [("delay", 2)]
    l1 += [(f"buffer_store_dwordx4 {vr(EL+4*u,4)}, v{VL16}, {SWS}, {sHB} offen offset:{u*1024}" + ("" if OPT.get("unsafe") else " sc1"), "pubB") for u in range(4)]
    l1 += [call(lambda: stamp(8)), mark("l1")]

    tasks = {0: [fw, e1, vo, pl, lt, cl, ku, epi, l1, epiq], 1: [fw, e1, vo, pl, lt, cl, ku, l1, epi, epiq], 2: [fw, e1, vo, pl, lt, cl, ku, epi, epiq, l1]}[OPT.get("prio", 0)]
    tpos = [0] * len(tasks)
    tdelay = [0] * len(tasks)

    def fill(budget, flush=False, maxn=10**9):
        progress = True
        cnt = 0
        while (budget > 0 or flush) and progress and cnt < maxn:
            progress = False
            for ti, tk in enumerate(tasks):
                while tpos[ti] < len(tk):
                    it = tk[tpos[ti]]
                    if isinstance(it, tuple) and it[0] == "gate":
                        if it[1]():
                            tpos[ti] += 1; continue
                        break
                    if isinstance(it, tuple) and it[0] == "mark":
                        st["marks"][it[1]] = st["bars"]; tpos[ti] += 1
                        if OPT.get("v"): print("  mark", it[1], "at frag", st["done"], "gap", st["gap"])
                        continue
                    if isinstance(it, tuple) and it[0] == "delay":
                        tdelay[ti] = st["gap"] + it[1]; tpos[ti] += 1; continue
                    break
                if tpos[ti] >= len(tk):
                    continue
                it = tk[tpos[ti]]
                if isinstance(it, tuple) and it[0] == "gate":
                    continue
                if tdelay[ti] > st["gap"] and not flush:
                    continue
                if st["gap"] <= st["quiet"] and not flush:
                    txt = it if isinstance(it, str) else (" ".join(it[1]) if it[0] == "atomic" else it[0] if isinstance(it[0], str) else "")
                    if any(w.startswith("v_") and not w.startswith("v_mfma") for w in txt.split()):
                        continue
                n0 = len(P.l)
                if isinstance(it, tuple) and it[0] == "call":
                    it[1]()
                elif isinstance(it, tuple) and it[0] == "atomic":
                    P.emit(it[1])
                elif isvm(it):
                    if (st["gap"] - st["lastvm"] < OPT["vgap"] or st["gap"] == st["lastdma"]) and not flush:
                        continue
                    P.emit([it]); st["lastvm"] = st["gap"]; budget -= OPT.get("vcost", 0)
                else:
                    P.emit([it])
                c = sum(i.cost for i in P.l[n0:])
                budget -= c; cnt += c
                if P.l[-1].kind == "mfma":
                    budget = OPT["budget"]; st["gap"] += 1
                tpos[ti] += 1
                progress = True
                break
        return progress if flush else budget

    OPENS = {ps: [[int(c) for c in g] for g in SOPT.get("op" + ps, d).split(".")] for ps, d in (("P", "0.1"), ("Q", "01.23.45.67"))}
    fr_ring = {}
    def issue_reads(k):
        ps, t, b, ks = frs[k]
        n = 0
        if k == last1 + 1:
            sa_ = set_ap("Q", sT1)
            P.emit(sa_); n += len(sa_)
        if (ps, b) not in opened:
            grp = [b]
            for g_ in OPENS[ps]:
                if g_[0] == b: grp = g_
            for bb in grp:
                assert (ps, bb) not in pending and not any(isinstance(x, tuple) and x[1] == f"{ps}{bb}" for x in dma_q), f"block {ps}{bb} not issued in time"
                opened.add((ps, bb))
            barrier(",".join(f"{ps}{bb}" for bb in grp))
            n += 2
        sl = (b + 2) % 8
        a = AP[t] if sl < 4 else APH[t]
        off = (sl & 3) * 16384 + ks * 1024
        r = ring()
        fr_ring[k] = r
        P(f"ds_read_b64_tr_b16 {ar(r,2)}, v{a} offset:{off}\nds_read_b64_tr_b16 {ar(r+2,2)}, v{a} offset:{off+512}", tag=f"f{k}")
        return n + 2

    LOOK = OPT["look"]
    for k in range(LOOK):
        issue_reads(k)
    seen = set()
    for k, (ps, t, b, ks) in enumerate(frs):
        acc = vr(ACC_G[GI(ps, t)], 16)
        budget = OPT["budget"] if "e1" in st["marks"] else OPT["ebudget"]
        if k % 2 == 0:
            P(f"@waitlg f{k},f{min(k+1, NF-1)}")
            budget -= 1
        if ps == "Q" and (ps, t) not in seen:
            assert all(m in st["marks"] for m in ("e1", "csgfreeP")), st["marks"]
        P(f"v_mfma_f32_32x32x16_bf16 {acc}, {ar(fr_ring[k],4)}, {ar(AXF+16*b+4*ks,4)}, {acc if (ps, t) in seen else '0'}")
        pend_cs = None
        if t == 0:
            d = vr(CSGA, 4)
            pend_cs = f"v_mfma_f32_16x16x32_bf16 {d}, {vr(SEL,4)}, {ar(fr_ring[k],4)}, {d if (ps, t) in seen else '0'}"
        else:
            st["done"] = k
        seen.add((ps, t))
        if not dma_q:
            if pending and released.get(prev_occ[pending[0]]) and (pending[0][0] == "P" or "vq" in st["marks"]):
                dma_q.extend(dma_pass(*pending.pop(0)))
            elif early_w and "pollW" in st["marks"] and not OPT.get("now"):
                dma_q.extend(early_w.pop(0))
            elif late_w and not early_w and OPT.get("latew", 1) and st["done"] >= last_use[("Q", late_w[0][0])] and not (alt[0] and early_c and not pending and released.get(("Q", early_c[0]))):
                dma_q.extend(late_w.pop(0)[1]); alt[0] = OPT.get("alt", 0) and len(late_w) % 4 == 0
            elif not pending and early_c and not OPT.get("noc") and "vc" in st["marks"] and released.get(("Q", early_c[0])):
                dma_q.extend(c_dma(early_c.pop(0))); alt[0] = False
        if dma_q and st["gap"] - st["lastdma"] >= OPT["dmagap"]:
            budget -= pop_vm(dma_q) + OPT.get("vcost", 0); st["lastdma"] = st["gap"]
        if k + LOOK < NF:
            budget -= issue_reads(k + LOOK)
        budget = fill(budget)
        st["gap"] += 1
        if pend_cs:
            P(pend_cs)
            st["done"] = k
            fill(2 + min(budget, 0))
    assert not pending
    P('Lmark2:')
    stamp(9)
    print("left after spine: early_w", len(early_w), "late_w", len(late_w), "early_c", len(early_c), "h", h_done[0], "tasks", [len(tasks[i]) - tpos[i] for i in range(len(tasks))])
    barrier()
    stream = p2_stream(early_w + [x[1] for x in late_w], early_c, h_done[0])
    if OPT.get("lead", 0):
        ws_ = sorted([it for it in stream if it[1] == "w"], key=lambda it: (int(it[2][-1][1][1:]) & 3, int(it[2][-1][1][1:])))
        lead = [it for it in ws_ if int(it[2][-1][1][1:]) & 3 == 0]
        stream = lead + [it for it in stream if it[1] == "c"] + [it for it in ws_ if it not in lead] + [it for it in stream if it[1] not in "cw"]
    while True:
        prog = fill(0, flush=True, maxn=OPT["tailgap"])
        if all(tpos[i] >= len(tasks[i]) for i in range(len(tasks))):
            break
        assert prog, [(tpos[i], len(tasks[i])) for i in range(len(tasks))]
        if not dma_q:
            for i, it in enumerate(stream):
                if it[1] in ("w" if OPT.get("cin") and not OPT.get("ctail") else "cw"):
                    dma_q.extend(stream.pop(i)[2]); break
        pop_vm(dma_q)
    P.emit(dma_q)
    stamp(10)
    return stream


def p2_stream(early_w, early_c, h_done):
    left_w = {x[-1][0] for x in early_w}
    items = []
    cneed = {}
    for s, (jj, u) in enumerate(STEPS):
        if u < 4:
            for ntl in range(2):
                cneed.setdefault(CREG.index((jj >> 1, u >> 1, ntl)), s)
    for s, (jj, u) in enumerate(STEPS):
        for r in early_c:
            pos = max(cneed[r] - 8, 0) if not OPT.get("cin") else min(cneed[r] - 3, 5 + (early_c.index(r) * OPT["cin"]))
            if pos == s:
                items.append((s, "c", c_dma(r)))
        if u >= 4:
            for ntl in range(2):
                g = w_load(s, ntl)
                if g[-1][0] in left_w:
                    items.append((s, "w", g))
        for tl in range(2):
            if not is_lead(s):
                items.append((s, "h", h_load(s, tl)))
        for sl in HLEAD:
            if is_lead(sl) and s == {8: 0, 16: 16, 24: 17, 32: 24, 40: 32}[sl]:
                items += [(s, "h", h_load(sl, tl)) for tl in range(2)]
        if s == 5:
            items.append((s, "b", None))
    if OPT.get("tlast", 1):
        NL = OPT.get("nl", 3)
        last = [it for it in items if it[1] == "h" and it[0] >= 44 - NL]
        items = [it for it in items if it not in last]
        items += last[1::2] + [(43, "h", it[2]) for it in last[0::2]]
    return items


def phase2(stream):
    VXO, VOO, VSO, VDO = AP[0], AP[1], AP[2], AP[3]
    AWR, ARD = APH, [T + 12, T + 13, T + 14, T + 15]
    setup = [f"v_lshrrev_b32 v{T+1}, 3, v{VLANE}", f"v_and_b32 v{T+2}, 7, v{VLANE}",
             f"v_lshrrev_b32 v{T+3}, 2, v{T+1}", f"v_and_b32 v{T+4}, 3, v{T+1}", f"v_lshl_add_u32 v{T+3}, v{T+3}, 4, v{T+4}",
             f"v_lshlrev_b32 v{VDO}, 3, v{T+2}", f"v_lshl_add_u32 v{VXO}, v{T+3}, 10, v{VDO}", f"v_lshlrev_b32 v{VOO}, 1, v{VXO}",
             f"v_lshlrev_b32 v{VSO}, 5, v{T+1}", f"v_add_u32 v{VDO}, {sCOL}, v{VDO}"]
    sloads = [(f"buffer_load_dwordx4 {vr(BST+4*k,4)}, v{VSO}, {SWS}, {sSTB} offen offset:{16*k} sc1", "b") for k in range(2)]
    bl = setup + [(f"global_load_dwordx2 {vr(BD,2)}, v{VDO}, s[{pDSK}:{pDSK+1}]", "b")] + sloads
    for it in range(4):
        bl += [f"s_add_u32 {sSO}, {sRB}, {it*4096}", (f"buffer_load_dwordx2 {vr(BX+2*it,2)}, v{VXO}, {SX}, {sSO} offen", "b")]
    post = [f"v_xor_b32 v{T+5}, v{T+1}, v{T+2}", f"v_lshlrev_b32 v{T+5}, 4, v{T+5}", f"v_lshl_add_u32 v{T+5}, v{T+1}, 7, v{T+5}"]
    for a in range(4):
        post += [f"s_xor_b32 {sT0}, {sWL}, {a*4096}", f"v_add_u32 v{ARD[a]}, {sT0}, v{T+5}"]
    post += [f"v_lshrrev_b32 v{T+6}, 5, v{VLANE}", f"v_xor_b32 v{T+6}, v{T+6}, v{T+2}", f"v_lshlrev_b32 v{T+6}, 4, v{T+6}",
             f"v_lshl_add_u32 v{T+7}, v{VC4}, 7, {sWL}"]
    for g in range(4):
        post += [f"v_xor_b32 v{AWR[g]}, {32*g}, v{T+6}", f"v_add_u32 v{AWR[g]}, v{T+7}, v{AWR[g]}"]
    base = list(post)
    base += [f"v_and_b32 v{BD+3}, 0xffff0000, v{BD+1}", f"v_lshlrev_b32 v{BD+2}, 16, v{BD+1}",
             f"v_and_b32 v{BD+1}, 0xffff0000, v{BD}", f"v_lshlrev_b32 v{BD}, 16, v{BD}"]
    for it in range(4):
        m_, d_, rc = BST + 2 * it, BST + 2 * it + 1, T + 8
        base += [f"v_rcp_f32 v{rc}, v{d_}"]
        for k in range(4):
            x, t0, t1 = BASE + 4 * it + k, T + 9, T + 10
            src = BX + 2 * it + (k >> 1)
            base += [f"v_and_b32 v{x}, 0xffff0000, v{src}" if k & 1 else f"v_lshlrev_b32 v{x}, 16, v{src}",
                     f"v_sub_f32 v{t0}, v{x}, v{m_}"] + bfr(t0, t0)
            base += [f"v_mul_f32 v{t1}, v{t0}, v{rc}", f"v_fma_f32 v{t0}, -v{t1}, v{d_}, v{t0}", f"v_fma_f32 v{t0}, v{t0}, v{rc}, v{t1}"] + bfr(t0, t0)
            base += [f"v_mul_f32 v{t0}, v{t0}, v{BD+k}"] + bfr(t0, t0) + [f"v_add_f32 v{x}, v{t0}, v{x}"]
    base += [f"s_lshl_b32 {sRB}, {sRB}, 1"]
    stream = [(s, k, (bl if k == "b" else g)) for (s, k, g) in stream]

    cpos = [0]
    def c_reads(s):
        jj, u = STEPS[s]
        cc, mat, sp = jj >> 1, u >> 1, 2 * (jj & 1) + (u & 1)
        regs = []
        for ntl in range(2):
            P(f"@waitvm C{CREG.index((cc, mat, ntl))}")
            sl = c_slot(cc, mat, ntl)
            r = ARING + 4 * (cpos[0] % NRING); cpos[0] += 1
            P(f"ds_read_b128 {ar(r,4)}, v{AX[sp] if sl < 4 else AXH[sp]} offset:{(sl&3)*16384}")
            regs.append(r)
        return regs
    creg = {}
    LA = OPT["la"]
    assert LA <= NH - 1
    q = []
    def top_up(s):
        while stream and stream[0][0] <= s + LA - 1 + (1 if stream[0][1] != "h" else 0):
            q.extend(stream.pop(0)[2])
    ldA, chkA = poll(T + 22, T + 20, sPH)
    ldB, chkB = poll(T + 22, T + 20, sPH)
    if True:
        stat = [it for it in stream if it[1] in ("w" if OPT.get("cin") else "cw")]
        for it in stat: stream.remove(it)
        npa = min(OPT.get("npa", 8), len(stat))
        for it in stat[:len(stat) - npa]: P.emit(it[2])
        P.emit([ldA])
        for it in stat[len(stat) - npa:]: P.emit(it[2])
    if OPT["stamps"] in (1, 2):
        stamp(44)
        P(f"v_mov_b32 v{T+11}, v{T+22}")
        stamp(45)
        P("s_mov_b32 s101, 0")
    P.emit(chkA + [f"s_add_u32 {sPH}, {sPH}, 8192"])
    if OPT["stamps"] in (1, 2): P(f"v_writelane_b32 v{VSTMP}, s101, 46")
    stamp(14)
    top_up(0)
    P.emit(q); q.clear()
    first = [True] * 4
    SB = 16 - LA
    NL = OPT.get("nl", 3)
    for s, (jj, u) in enumerate(STEPS[:44 - NL]):
        if s == OPT.get("fb", 0):
            P("@waitvm pubB\ns_barrier")
            if True:
                P.emit([flag_store(2), (f"buffer_store_dword v{VNON}, v{VFLA}, {SWS}, {sROT} offen sc1", "ep")])
        if s == SB - OPT.get("pbl", 5):
            P.emit([ldB])
        if s == SB:
            if OPT["stamps"] in (1, 2):
                P(f"v_mov_b32 v{T+11}, v{T+22}")
                stamp(43)
                P("s_mov_b32 s101, 0")
            P.emit(chkB)
            if OPT["stamps"] in (1, 2): P(f"v_writelane_b32 v{VSTMP}, s101, 47")
            stamp(15)
        top_up(s + 1)
        pop_vm(q)
        if OPT.get("fine") and s % 4 == 0: stamp(32 + s // 4)
        for z, a in enumerate((0, 1, 3, 2) if OPT.get("gray", 1) else (0, 1, 2, 3)):
            if True:
                tl, ntl = a >> 1, a & 1
                bw = ar(creg[s][ntl], 4) if u < 4 else ar(wreg(s, ntl)[0], 4)
                acc = vr(ACC2[a], 16)
                if OPT.get("fake16") and s > 0:
                    for z in range(2):
                        q4 = vr(ACC2[a] + 4 * ((2 * s + z) & 3), 4)
                        P(f"v_mfma_f32_16x16x32_bf16 {q4}, {bw}, {vr(hreg(s)+4*(tl^z),4)}, {q4}")
                else:
                    P(f"v_mfma_f32_32x32x16_bf16 {acc}, {bw}, {vr(hreg(s)+4*tl,4)}, {'0' if first[a] else acc}")
                first[a] = False
                if z < 3: pop_vm(q)
                if z == 2:
                    nx = s + 2
                    if nx < 44 and STEPS[nx][1] < 4:
                        creg[nx] = c_reads(nx)
                if s >= 12 and base:
                    for _ in range(3):
                        if base:
                            x = base.pop(0)
                            P.emit(x[1] if isinstance(x, tuple) and x[0] == "atomic" else [x])
        P.emit(q); q.clear()
    assert not base and not stream
    W = lambda a: [f"ds_write_b128 v{AWR[g]}, {vr(ACC2[a]+4*g,4)} offset:{a*16384}" for g in range(4)]
    M = lambda a, s: P(f"v_mfma_f32_32x32x16_bf16 {vr(ACC2[a],16)}, {ar(wreg(s, a & 1)[0], 4)}, {vr(hreg(s)+4*(a>>1),4)}, {vr(ACC2[a],16)}")
    RD = ACC2[2]
    def red(aa):
        for it in range(4):
            for z, a in enumerate(aa):
                P(f"ds_read_b128 {vr(RD+8*it+4*z,4)}, v{ARD[a]} offset:{a*16384+it*1024}")
        for it in range(4):
            b, r0 = BASE + 4 * it, RD + 8 * it
            for k in (0, 2):
                P(f"v_pk_add_f32 {vr(r0+k,2)}, {vr(r0+k,2)}, {vr(r0+4+k,2)}")
            for k in (0, 2):
                P(f"v_pk_add_f32 {vr(b+k,2)}, {vr(b+k,2)}, {vr(r0+k,2)}")
            if aa[0] == 0:
                P(f"s_add_u32 {sT0}, {sRB}, {it*8192}")
                P(f"buffer_store_dwordx4 {vr(b,4)}, v{VOO}, {SOUT}, {sT0} offen" + (" nt" if OPT.get("ont") else ""))
    for a in (3, 2):
        for s in range(44 - NL, 44): M(a, s)
    P.emit(W(3) + W(2))
    if OPT.get("early_red", 0):
        P("@waitlg0\ns_barrier")
        red((2, 3))
    for s in range(44 - NL, 44):
        M(1, s); M(0, s)
    P('Lmark3:')
    stamp(11)
    P.emit(W(1) + W(0))
    P("@waitlg0\ns_barrier")
    if not OPT.get("early_red", 0):
        red((2, 3))
    red((0, 1))
    if OPT["stamps"]:
        stamp(12)
        P("@waitall")
        stamp(13)
        P(f"s_lshl_b32 s100, s2, 2\ns_add_u32 s100, s100, {sW}\ns_lshl_b32 s100, s100, 8\ns_add_u32 s100, s100, {STAMP_OFF}")
        P(f"v_lshlrev_b32 v{T}, 2, v{VLANE}\nbuffer_store_dword v{VSTMP}, v{T}, {SWS}, s100 offen")


def main():
    from collections import Counter
    ref = open(f"cdna_kernels/{NAME}.s.ref").read().split("\n")
    out = [l for l in ref if l.startswith(";") and "@launch" not in l and "Override launch" not in l and "grid=ceil" not in l]
    k1 = NAME + "_kernel"
    out.append("; @launch grid=(256,1,1) block=(256,1,1) lds=163840")
    out.append("""; One persistent launch, 256 workgroups x 4 waves (one per CU, 512 registers per wave).  Generated by a hand-written scheduler script.
; Phase 1, workgroup (m, j): 128 tokens x [32 SSM channels + 112 GLU columns].  Raw x fragments live in AGPRs, weights stream through LDS
;   (LDS-DMA + transposing reads).  LayerNorm is applied around the GEMMs: the bf16 mean enters as one extra MFMA k-step
;   (-mean x column sums, hi/lo split), 1/std scales the results.  The S5 recurrence is an exact chunked scan: 16-token lane scans,
; Phase 2: 64 x 64 output tile per workgroup, K = 2816 split over the waves, LDS reduction, + x + xn * D.
; Hand-offs: write-through stores, then flag words / tagged records that carry this launch's tag (epoch word in d_ws + 1).""")
    out.append('.amdgcn_target "amdgcn-amd-amdhsa--gfx950"\n.text')
    prologue()
    stream = passes(landing())
    phase2(stream)
    st = {}
    ab = OPT.get("ablate", 0)
    if ab:
        nl = []; inside = False
        reg = OPT.get("abreg", 0)
        for i in P.l:
            if i.kind == "label" and i.text == f"Lmark{reg}:": inside = True
            if i.kind == "label" and i.text == f"Lmark{reg+1}:": inside = False
            if inside:
                if ab & 1 and i.kind == "dma": continue
                if ab & 2 and i.kind == "valu" and any(x in i.text for x in ("dot2", "v_fma", "v_mul_f32", "v_exp", "v_rcp", "v_cvt_pk")): continue
                if ab & 4 and i.kind == "barrier": continue
                if ab & 8 and i.kind == "dsr": continue
                if ab & 16 and i.kind in ("vst", "vld") and i.tag not in ("flag", "poll", "el", "pubE", "ep"): continue
                if ab & 32 and i.kind == "mfma": continue
            nl.append(i)
        P.l = nl
    l = pad_hazards(auto_wait(P.l), st)
    defined = {"s0", "s1", "s2", "v0", "exec", "scc", "vcc", "m0"}
    for i in l:
        bad = [r for r in i.rd if r not in defined]
        assert ab or not bad, f"use before def: {i.text} {bad}"
        defined |= set(i.wr)
    unread = {}
    for i in l:
        for r in i.rd: unread.pop(r, None)
        for r in i.wr:
            assert ab or r not in unread or unread[r][1] in ("ct", "code", None) and r[0] == "a" and int(r[1:]) >= 240, f"load result overwritten unread: {r}: {unread[r][0]} <- {i.text}"
            unread.pop(r, None)
        if i.kind in ("vld", "dsr"):
            for r in i.wr: unread[r] = (i.text, i.tag)
    ool = pad_hazards([Ins(x) for x in P.ool])
    out.append(f".globl {k1}\n.p2align 8\n.type {k1},@function\n{k1}:\nk_start:")
    out.append(render(l))
    out.append("k_exit:\n    s_endpgm\nk_main_end:")
    out.append(render(ool))
    out.append("    s_endpgm\nk_all_end:")
    out.append(f""".section .rodata,"a"
.p2align 6
.amdhsa_kernel {k1}
  .amdhsa_next_free_vgpr 512
  .amdhsa_next_free_sgpr 102
  .amdhsa_accum_offset 256
  .amdhsa_group_segment_fixed_size 0
  .amdhsa_kernarg_size 128
  .amdhsa_user_sgpr_count 2
  .amdhsa_user_sgpr_kernarg_segment_ptr 1
  .amdhsa_system_sgpr_workgroup_id_x 1
.end_amdhsa_kernel""")
    open(sys.argv[1], "w").write("\n".join(out) + "\n")
    c = Counter(i.kind for i in l)
    print(dict(c), "slots", sum(i.cost for i in l), st)

main()
```

```python
import sys, struct, math
sys.path.insert(0, "work")
from asmlib import *

NAME = "parallel_sum__ssm_conv_s5__glu_gated_glu__prompt"
OPT = dict(to1=3, to2=1, look=4, dmagap=2, vgap=3, stamps=0, codepf=1, budget=6, ebudget=7, xlook=2,
           pa=40, pad=16, el=130, eld=24, pb=190, pbd=12, la=5, exbar=1, tailgap=16)
SOPT = {}
for a in sys.argv[2:]:
    k, v = a.split("=")
    if k in ("ord", "opP", "opQ"): SOPT[k] = v
    else: OPT[k] = int(v)

def f2u(x):
    return struct.unpack("<I", struct.pack("<f", x))[0]
LOG2E = f2u(1.4426950408889634)
INV2PI = f2u(0.15915494309189535)

W2_OFF = 12 << 20
E_OFF = 15 << 20
ST_OFF = E_OFF + 131072
FL_OFF = E_OFF + 196608
EP_OFF = E_OFF + 229376
STAMP_OFF = E_OFF + 262144
WS_WIN = 16 << 20
OOB = 0x40000000
SPIN_MAX = 0x200000

SCR = 131072
EXZ = SCR
CSB = SCR + 4096
CSG = SCR + 5120
RS = SCR + 7168
HT = SCR + 8192

SX, SBR, SBI, SW, SWD, SWS, SDB, SE, SCRE, SCIM, SOUT, SCD = [f"s[{4+4*i}:{7+4*i}]" for i in range(12)]
iSX, iSBR, iSBI, iSW, iSWD, iSWS, iSDB, iSE, iSCRE, iSCIM, iSOUT, iSCD = [4 + 4 * i for i in range(12)]
pLRE, pLIM, pLDT, pDSK, pWU = 52, 54, 56, 20, 60
sW, sM, sJ, sJ4, sROT = "s62", "s63", "s64", "s65", "s66"
sT0, sT1, sT2, sT3 = "s67", "s76", "s77", "s78"
KB = [f"s{68+i}" for i in range(8)]
sXB, sBB, sPB, sWL = "s79", "s80", "s81", "s82"
sONE, sHB = "s83", "s84"
sHT = [f"s{85+i}" for i in range(7)]
sSO = "s92"
sL2E, sI2P = "s93", "s94"
sFL = "s95"
TB = ["s96", "s97", "s98"]
sNON = "s99"
sWA = [["s52", "s28"], ["s53", "s29"]]; sHA = [["s54", "s30"], ["s55", "s31"]]; sCB = ["s56", "s57"]
sMU = "s58"
sRB, sSTB = "s60", "s61"
sCOL = "s48"
sWQ = [sL2E, sI2P]
sPW, sPH = "s49", "s3"

ACC_S = 0
ACC_G = [32 + 16 * t for t in range(7)]
CSBR, CSBI, CSGA = 144, 148, 152
SEL, XE, CE0, CE1 = 156, 160, 164, 168
AX = [172, 173, 174, 175]
AB = [176, 177, 178, 179]
ABC = 180
AP = [181, 182, 183, 184]
APH = [185, 186, 187, 188]
VX = [189, 190, 191, 192]
VB, VL16 = 193, 194
C1, SIG = 195, 196
L1R, L1I, L16R, L16I, L128R, L128I, LSR, LSI, KR, KI, PR, PI = range(197, 209)
S1, S2 = 209, 210
VEW, VER, AEXW, AEXR, ARS, AHW, AHR, ACSB_W, ACSB_R, ACSG_W, VST, VC4 = range(211, 223)
VLANE = 223
T = 224
L256R, L256I = T + 28, T + 29
PRW = CSBR
VSTMP = T + 31
AXF, ARING, NRING = 0, 128, 8
P0R = 208
VWD, VCT, VRS = ACC_G[5], ACC_G[5] + 4, ACC_G[5] + 8
RPW, RPT = ACC_G[4], ACC_G[5] + 12
VP = [ACC_G[6] + 8 + k for k in range(4)]
PK_SSW, PK_TRB, PK_VQ, ARPR = ACC_G[6] + 12, ACC_G[6] + 13, ACC_G[6] + 14, ACC_G[6] + 15
VFLA, VNON = T + 30, T + 23
HR, NH = 48, 6
ACC2 = [96, 112, 128, 144]
BX, BST, BD, BASE = 0, 8, 16, 20

def vr(a, n=1): return f"v{a}" if n == 1 else f"v[{a}:{a+n-1}]"
def ar(a, n=1): return f"a{a}" if n == 1 else f"a[{a}:{a+n-1}]"
def isvm(x): return isinstance(x, tuple) and x[0].startswith(("buffer_", "global_"))


class Prog:
    def __init__(self):
        self.l = []
        self.ool = []
    def __call__(self, text, tag=None):
        for t in text.split("\n"):
            t = t.strip()
            if t:
                self.l.append(Ins(t, tag))
    def emit(self, lst):
        for x in lst:
            if isinstance(x, tuple):
                self(x[0], tag=x[1])
            else:
                self(x)

P = Prog()

def stamp(idx):
    if not OPT["stamps"] or (OPT["stamps"] == 3 and idx != 13):
        return
    P("@opaque_begin")
    P(("s_memrealtime" if OPT["stamps"] >= 2 else "s_memtime") + " s[100:101]\ns_waitcnt lgkmcnt(0)")
    P("@opaque_end")
    P(f"v_writelane_b32 v{VSTMP}, s100, {idx}")

def bfr(dst, src):
    return [f"v_cvt_pk_bf16_f32 v{dst}, v{src}, v{src}", f"v_and_b32 v{dst}, 0xffff0000, v{dst}"]

def set_srd(i, nbytes):
    P(f"s_mov_b32 s{i+2}, {nbytes}\ns_mov_b32 s{i+3}, 0x20000")

def cpow(n_expr, dr, di, A, Bq, t0, t1):
    if n_expr is None:
        P(f"v_exp_f32 v{t0}, v{A}\nv_fract_f32 v{t1}, v{Bq}")
    else:
        P(f"v_mul_f32 v{t0}, {n_expr}, v{A}\nv_mul_f32 v{t1}, {n_expr}, v{Bq}\nv_exp_f32 v{t0}, v{t0}\nv_fract_f32 v{t1}, v{t1}")
    P(f"v_cos_f32 v{dr}, v{t1}\nv_sin_f32 v{di}, v{t1}\nv_mul_f32 v{dr}, v{t0}, v{dr}\nv_mul_f32 v{di}, v{t0}, v{di}")

def cstep(nx, L, cur, u):
    return [f"v_fma_f32 v{nx[0]}, v{L[0]}, v{cur[0]}, v{u[0]}", f"v_fma_f32 v{nx[1]}, v{L[0]}, v{cur[1]}, v{u[1]}",
            f"v_fma_f32 v{nx[0]}, -v{L[1]}, v{cur[1]}, v{nx[0]}", f"v_fma_f32 v{nx[1]}, v{L[1]}, v{cur[0]}, v{nx[1]}"]

retry_id = [0]
def retry_check(ev, reload, sleep=2):
    k = retry_id[0]; retry_id[0] += 1
    o = [f"Lretry{k}:", f"s_mov_b32 s101, 0", f"Lspin{k}:", f"s_sleep {sleep}", f"s_add_u32 s101, s101, 1",
         f"s_cmp_gt_u32 s101, {SPIN_MAX}", f"s_cbranch_scc1 Lback{k}"]
    o += [x[0] if isinstance(x, tuple) else x for x in reload]
    o += ["s_waitcnt vmcnt(0)"] + ev + ["s_nop 4", f"s_cbranch_vccnz Lspin{k}", f"s_branch Lback{k}"]
    P.ool += o
    return [f"s_cbranch_vccnz Lretry{k}", f"Lback{k}:"]

def poll(d, addr, so):
    ld = (f"buffer_load_dword v{d}, v{addr}, {SWS}, {so} offen sc1", "poll")
    ev = [f"v_cmp_ne_u32 vcc, {sNON}, v{d}"]
    return ld, ev + retry_check(ev, [ld], 4)

def flag_store(kind):
    return (f"buffer_store_dword v{VNON}, v{VFLA}, {SWS}, 0 offen offset:0 sc1" if kind == 0 else
            f"buffer_store_dword v{VNON}, v{VFLA}, {SWS}, {sK8 if kind == 1 else sK16} offen sc1", "flag")
sK8, sK16 = "s50", "s51"

PSET = lambda jj: [jj + t for t in range(4)]
QSET = lambda jj: [g for g in range(7) if g not in PSET(jj)]
STEPS = [(jj, 4 + g) for t in range(4) for jj in range(4) for g in [PSET(jj)[t]]] + \
        [(jj, u) for jj in range(4) for u in range(4)] + \
        [(jj, 4 + g) for t in range(3) for jj in range(4) for g in [QSET(jj)[t]]]
GSTEP = [s for s, (jj, u) in enumerate(STEPS) if u >= 4]
def wreg(s, ntl):
    wi = 2 * GSTEP.index(s) + ntl
    return ((160 + 4 * wi) if wi < 24 else 4 * (wi - 24)), wi
VO4 = [AEXW, AEXR, ARS, ACSB_R]
def adv(base, idx, last):
    r = []
    if idx % 4 == 0 and idx >= 8:
        b = base[(idx >> 2) & 1]
        if idx == last:
            r.append(f"s_sub_u32 {b}, {b}, {sMU}")
        r.append(f"s_add_u32 {b}, {b}, 8192")
    return r
def w_load(s, ntl):
    g = GSTEP.index(s)
    b = sWA[ntl][(g >> 2) & 1] if g < 24 else sWQ[ntl]
    off = (g >> 3) * 8192
    pre = [f"s_add_u32 {sSO}, {b}, {off}"] if off else []
    return pre + [(f"buffer_load_dwordx4 {ar(wreg(s, ntl)[0],4)}, v{VO4[g&3]}, {SWS}, {sSO if off else b} offen sc1", f"w{g}")]
HLEAD = {8: 160, 16: 36, 24: 160, 32: 36, 40: 160}
def is_lead(s): return OPT.get("hlead", 0) and s in HLEAD
RIDX = {}
for _s in range(44):
    if not is_lead(_s): RIDX[_s] = len(RIDX)
def hreg(s): return HLEAD[s] if is_lead(s) else HR + 8 * (RIDX[s] % NH)
def h_load(s, tl):
    b = sHA[tl][(s >> 2) & 1]
    off = (s >> 3) * 8192
    pre = [f"s_add_u32 {sSO}, {b}, {off}"] + ([f"s_sub_u32 {sSO}, {sSO}, {sMU}"] if s >= 40 else []) if off else []
    return pre + [(f"buffer_load_dwordx4 {vr(hreg(s)+4*tl,4)}, v{VO4[s&3]}, {SWS}, {sSO if off else b} offen sc1", "h")]
CREG = [(cc, mat, ntl) for cc in range(2) for mat in range(2) for ntl in range(2)]
def c_slot(cc, mat, ntl): return (CREG.index((cc, mat, ntl)) + 2) % 8
VC = [AB[0], AB[1], AB[2], AB[3]]
AXH = [ABC, VB, S1, S2]
def c_dma(r):
    cc, mat, ntl = CREG[r]
    g = [f"s_add_u32 m0, {sWL}, {c_slot(cc, mat, ntl)*16384}", f"s_add_u32 {sSO}, {sCB[ntl]}, {cc*128}"]
    return g + [(f"buffer_load_dwordx4 v{VC[sb]}, {SCIM if mat else SCRE}, {sSO} offen offset:{sb*1024} lds", f"C{r}") for sb in range(4)]


GRP = dict(
    x=lambda: dma_X(1) + dma_B(1),
    a=lambda: [(f"global_load_ushort v{T+8+k}, v{T+6}, s[{p}:{p+1}]", "par") for k, p in enumerate((pLRE, pLIM, pLDT))],
    p=lambda: [f"s_mul_i32 {sSO}, {KB[0]}, 1792", f"s_add_u32 {sSO}, {sSO}, {sPB}"] +
              [(f"buffer_load_dwordx4 {ar(P0R+4*ks,4)}, v{VP[ks]}, {SW}, {sSO} offen offset:{ks*1024}" + (" nt" if OPT.get("ntp", 0) else ""), "p0") for ks in range(4)],
    w=lambda: [(f"buffer_load_dwordx4 {vr(RPW+4*g,4)}, v{VWD+g}, {SWD}, 0 offen" + (" nt" if OPT.get("ntw", 0) else ""), "wd") for g in range(2)],
    c=lambda: [(f"buffer_load_dwordx4 {ar(240,4)}, v{VCT}, {SCRE}, 0 offen", "ct"), (f"buffer_load_dwordx4 {ar(244,4)}, v{VCT+1}, {SCIM}, 0 offen", "ct")],
)
ORDER = [list(x) for x in SOPT.get("ord", "ax_p_....wc").split("_")[:2]] + [SOPT.get("ord", "ax_p_....wc").split("_")[2].split(".")]
DEFER = []
LATE = []
def pop_defer(n):
    k = 0
    while DEFER and k < n:
        g = DEFER.pop(0); P.l.extend(g); k += sum(i.cost for i in g)

def p2scal():
    mp, nn, a, b = "s50", "s51", sT0, sT1
    if OPT.get("lp", 2) == 2:
        MAP2 = f"s_lshl_b32 {mp}, {a}, 2\ns_and_b32 {a}, {b}, 3\ns_add_u32 {mp}, {mp}, {a}\ns_lshr_b32 {nn}, {b}, 2"
    else:
        MAP2 = f"s_lshr_b32 {mp}, {a}, 1\ns_lshl_b32 {mp}, {mp}, 3\ns_and_b32 {nn}, {a}, 1\ns_lshl_b32 {nn}, {nn}, 2\ns_and_b32 {a}, {b}, 7\ns_add_u32 {mp}, {mp}, {a}\ns_lshr_b32 {a}, {b}, 3\ns_add_u32 {nn}, {nn}, {a}"
    P(f"""s_and_b32 {a}, s2, 7
          s_lshr_b32 {b}, s2, 3
          {MAP2}
          s_lshl_b32 {mp}, {mp}, 1
          s_lshr_b32 {a}, {sW}, 1
          s_add_u32 {mp}, {mp}, {a}
          s_lshl_b32 {nn}, {nn}, 1
          s_and_b32 {a}, {sW}, 1
          s_add_u32 {nn}, {nn}, {a}
          s_mul_i32 {sT2}, {sW}, 44
          s_lshl_b32 {sT3}, {sW}, 8""")
    P(f"""s_lshr_b32 {a}, {nn}, 1
          s_lshr_b32 {b}, {mp}, 1
          s_and_b32 {sMU}, {a if OPT.get("lp", 2) == 2 else b}, {4 if OPT.get("mu", 1) else 0}
          s_add_u32 {b}, {b}, {a}
          s_and_b32 s59, {b}, {3 if OPT.get("mu", 1) else 0}
          s_lshl_b32 {sMU}, {sMU}, 10
          s_xor_b32 {b}, {sMU}, 4096""")
    for k in range(2):
        P(f"""s_xor_b32 {a}, {mp}, {k}
              s_mul_i32 {a}, {a}, 176
              s_add_u32 {a}, {a}, {sT2}
              s_lshl_b32 {a}, {a}, 10
              s_add_u32 {sHA[k][0]}, {a}, {sMU}
              s_add_u32 {sHA[k][1]}, {a}, {b}
              s_xor_b32 {a}, {nn}, {k}
              s_lshl_b32 {sCB[k]}, {a}, 15
              s_add_u32 {sCB[k]}, {sCB[k]}, {sT3}
              s_lshl_b32 {a}, {a}, 2
              s_add_u32 {a}, {a}, {sW}
              s_mul_i32 {a}, {a}, {28*1024}
              s_add_u32 {a}, {a}, {W2_OFF}
              s_add_u32 {sWA[k][0]}, {a}, {sMU}
              s_add_u32 {sWA[k][1]}, {a}, {b}""")
    P(f"""s_bitcmp1_b32 s59, 1
          s_cselect_b64 s[100:101], s[{iSCIM}:{iSCIM+1}], s[{iSCRE}:{iSCRE+1}]
          s_cselect_b64 s[{iSCIM}:{iSCIM+1}], s[{iSCRE}:{iSCRE+1}], s[{iSCIM}:{iSCIM+1}]
          s_mov_b64 s[{iSCRE}:{iSCRE+1}], s[100:101]""")
    P(f"""s_lshl_b32 {sCOL}, {nn}, 6
          s_lshl_b32 {sRB}, {mp}, 15
          s_add_u32 {sRB}, {sRB}, {sCOL}
          s_lshl_b32 {sSTB}, {mp}, 8
          s_lshl_b32 {a}, {sW}, 14
          s_add_u32 {sSTB}, {sSTB}, {a}
          s_add_u32 {sSTB}, {sSTB}, {ST_OFF}
          s_lshl_b32 {a}, {sW}, 7
          s_add_u32 {a}, {a}, {FL_OFF}
          s_lshr_b32 {sPW}, {nn}, 1
          s_lshl_b32 {sPW}, {sPW}, 10
          s_add_u32 {sPW}, {sPW}, {a}
          s_lshr_b32 {sPH}, {mp}, 2
          s_lshl_b32 {sPH}, {sPH}, 9
          s_add_u32 {sPH}, {sPH}, {a}
          s_add_u32 {sPH}, {sPH}, 8192
          s_movk_i32 {sK8}, 8192
          s_movk_i32 {sK16}, 16384""")


def prologue():
    P("s_cmp_ge_u32 s2, 256\ns_cbranch_scc1 k_exit")
    if OPT["stamps"]:
        P(("s_memrealtime" if OPT["stamps"] >= 2 else "s_memtime") + " s[100:101]\ns_waitcnt lgkmcnt(0)")
        P(f"v_mov_b32 v{VSTMP}, 0\ns_nop 1\nv_writelane_b32 v{VSTMP}, s100, 0")
    for off, s in [(0, iSX), (24, iSBR), (32, iSBI)]:
        P(f"s_load_dwordx2 s[{s}:{s+1}], s[0:1], {off}")
    rr, p, q, t3 = T + 1, T + 2, T + 3, T + 4
    LM = OPT.get('lm', 2)
    P(f"""v_lshrrev_b32 v{T}, 6, v0
          v_and_b32 v{VLANE}, 63, v0
          v_readfirstlane_b32 {sW}, v{T}
          s_and_b32 {sT0}, s2, 7
          s_lshr_b32 {sT1}, s2, 3
          s_and_b32 {sM}, {sT0}, {(16 >> LM) - 1}
          s_lshl_b32 {sM}, {sM}, {LM}
          s_and_b32 {sT2}, {sT1}, {(1 << LM) - 1}
          s_add_u32 {sM}, {sM}, {sT2}
          s_lshr_b32 {sT1}, {sT1}, {LM}
          s_lshr_b32 {sJ}, {sT0}, {4 - LM}
          s_lshl_b32 {sJ}, {sJ}, {5 - LM}
          s_add_u32 {sJ}, {sJ}, {sT1}
          s_and_b32 {sJ4}, {sJ}, 3""")
    P({1: f"s_add_u32 {sROT}, {sJ}, {sM}", 2: f"s_lshl_b32 {sROT}, {sJ}, 1\ns_add_u32 {sROT}, {sROT}, {sM}",
       3: f"s_lshl_b32 {sROT}, {sM}, 1\ns_add_u32 {sROT}, {sROT}, {sJ}", 0: f"s_mov_b32 {sROT}, 0", 4: f"s_mov_b32 {sROT}, {sM}", 5: f"s_mov_b32 {sROT}, {sJ}"}[OPT.get("rot", 2)])
    P(f"""s_lshl_b32 {sROT}, {sROT}, 7
          s_and_b32 {KB[0]}, {sROT}, 0x380
          v_lshrrev_b32 v{rr}, 3, v{VLANE}
          v_and_b32 v{p}, 7, v{VLANE}
          v_lshrrev_b32 v{q}, 1, v{rr}
          v_xor_b32 v{q}, v{p}, v{q}
          v_lshlrev_b32 v{q}, 4, v{q}
          v_lshrrev_b32 v{t3}, 2, v{rr}
          v_lshlrev_b32 v{t3}, 4, v{t3}
          v_and_b32 v{T+5}, 3, v{rr}
          v_add_u32 v{t3}, v{t3}, v{T+5}
          v_lshl_add_u32 v{VX[0]}, v{t3}, 10, v{q}
          v_xor_b32 v{VX[1]}, 64, v{VX[0]}
          v_add_u32 v{VX[2]}, {2*3072}, v{VX[0]}
          v_add_u32 v{VX[3]}, {3*3072}, v{VX[1]}
          v_add_u32 v{VX[1]}, 3072, v{VX[1]}
          s_lshl_b32 {sWL}, {sW}, 12
          s_lshl_b32 {sXB}, {sM}, 17
          s_lshl_b32 {sT0}, {sW}, 15
          s_add_u32 {sXB}, {sXB}, {sT0}""")
    set_srd(iSX, 2048 * 1024)
    P.emit(dma_X(0))
    stamp(1)
    for off, s in [(8, pLRE), (16, pLIM), (56, pLDT), (96, iSWD), (80, iSW), (88, pWU),
                   (120, iSWS), (40, iSCRE), (48, iSCIM), (104, iSOUT)]:
        P(f"s_load_dwordx2 s[{s}:{s+1}], s[0:1], {off}")
    P(f"""s_lshl_b32 {sBB}, {sJ}, 15
          s_lshl_b32 {sT0}, {sW}, 13
          s_add_u32 {sBB}, {sBB}, {sT0}
          s_and_b32 {sT0}, {sW}, 1
          s_lshl_b32 {sT0}, {sT0}, 6
          v_xor_b32 v{VB}, {sT0}, v{q}
          v_lshl_add_u32 v{VB}, v{rr}, 10, v{VB}""")
    set_srd(iSBR, 524288); set_srd(iSBI, 524288)
    P.emit(dma_B(0))
    if OPT["codepf"]:
        P(f"""s_getpc_b64 s[{iSCD}:{iSCD+1}]
              Lpc0:
              s_sub_u32 s{iSCD}, s{iSCD}, Lpc0-k_start
              s_subb_u32 s{iSCD+1}, s{iSCD+1}, 0
              s_mov_b32 s{iSCD+2}, k_all_end-k_start
              s_mov_b32 s{iSCD+3}, 0x20000
              s_lshr_b32 {sT0}, s2, 3
              s_and_b32 {sT0}, {sT0}, 31
              s_lshl_b32 {sT0}, {sT0}, 10
              v_lshlrev_b32 v{T+7}, 2, v0
              buffer_load_dword a255, v{T+7}, {SCD}, {sT0} offen""")
    for n in range(1, 8):
        P(f"s_add_u32 {sT0}, {sROT}, {n*128}\ns_and_b32 {KB[n]}, {sT0}, 0x380")
    PLRE, PLIM, PLDT = T + 8, T + 9, T + 10
    hh, f, row = T + 11, T + 12, T + 13
    P(f"""v_and_b32 v{VC4}, 31, v{VLANE}
          v_lshlrev_b32 v{T+6}, 1, v{VC4}
          s_lshl_b32 {sT1}, {sJ}, 6
          v_add_u32 v{T+6}, {sT1}, v{T+6}
          s_add_u32 s{iSWS}, s{iSWS}, {OPT.get("wsoff", 0) << 20}
          s_addc_u32 s{iSWS+1}, s{iSWS+1}, 0
          s_add_u32 s100, s{iSWS}, {EP_OFF}
          s_addc_u32 s101, s{iSWS+1}, 0
          s_load_dword {sNON}, s[100:101], 0""")
    for g in ORDER[0]:
        P.emit(GRP[g]())
    set_srd(iSW, 1835008); set_srd(iSCRE, 524288); set_srd(iSCIM, 524288)
    P(f"""s_bitcmp1_b32 {sW}, 0
          s_cselect_b32 s{iSW}, s{pWU}, s{iSW}
          s_cselect_b32 s{iSW+1}, s{pWU+1}, s{iSW+1}""")
    if OPT.get("touch", 0):
        set_srd(iSWS, WS_WIN); set_srd(iSOUT, 4 << 20)
        P(f"""v_lshlrev_b32 v{T+7}, {OPT.get("tsh", 20)}, v{VLANE}
              buffer_load_dword a250, v{T+7}, {SW}, 0 offen
              buffer_load_dword a251, v{T+7}, {SWS}, 0 offen
              buffer_load_dword a252, v{T+7}, {SCRE}, 0 offen
              buffer_load_dword a253, v{T+7}, {SCIM}, 0 offen
              buffer_load_dword a254, v{T+7}, {SOUT}, 0 offen""")
    set_srd(iSWD, 1835008)
    P(f"""s_mul_i32 {sT0}, {sJ}, 112
          s_lshl_b32 {sT1}, {sW}, 4
          s_add_u32 {sT0}, {sT0}, {sT1}
          s_lshl_b32 {sT0}, {sT0}, 10
          s_lshl_b32 {sT1}, {sM}, 6
          s_add_u32 {sT0}, {sT0}, {sT1}
          v_lshrrev_b32 v{T+14}, 2, v{VLANE}
          v_and_b32 v{T+21}, 3, v{VLANE}
          v_lshlrev_b32 v{T+15}, 4, v{T+21}
          v_lshl_add_u32 v{T+14}, v{T+14}, 10, v{T+15}
          v_add_u32 v{VWD}, {sT0}, v{T+14}
          v_add_u32 v{VWD+1}, 0x10000, v{VWD}
          s_mov_b32 {sONE}, 0x3f803f80
          v_lshrrev_b32 v{hh}, 5, v{VLANE}
          v_bfe_u32 v{f}, v{VLANE}, 1, 3
          v_xor_b32 v{f}, v{f}, v{hh}
          v_lshlrev_b32 v{f}, 4, v{f}
          v_and_b32 v{row}, 7, v{VLANE}
          v_lshlrev_b32 v{row}, 7, v{row}
          v_bfe_u32 v{T+14}, v{VLANE}, 3, 2
          v_lshl_add_u32 v{T+15}, v{T+14}, 10, v{row}
          v_add_u32 v{T+15}, {sWL}, v{T+15}
          v_lshl_add_u32 v{T+16}, v{T+14}, 12, v{row}
          v_add_u32 v{T+16}, {SCR}, v{T+16}""")
    for s_ in range(4):
        P(f"v_xor_b32 v{T+17}, {32*s_}, v{f}\nv_add_u32 v{AX[s_]}, v{T+15}, v{T+17}\nv_add_u32 v{AB[s_]}, v{T+16}, v{T+17}")
    P(f"""s_lshl_b32 {sT0}, {sW}, 5
          v_xor_b32 v{T+17}, {sT0}, v{f}
          v_add_u32 v{ABC}, v{T+16}, v{T+17}
          v_bfe_u32 v{T+17}, v{VLANE}, 2, 1
          v_bfe_u32 v{T+22}, v{VLANE}, 4, 1
          v_xor_b32 v{T+17}, v{T+17}, v{T+22}
          v_or_b32 v{T+17}, v{T+17}, v{T+21}
          v_cmp_eq_u32 vcc, 0, v{T+17}
          v_mov_b32 v{T+18}, {sONE}
          v_mov_b32 v{S1}, 0
          v_cndmask_b32 v{SEL}, 0, v{T+18}, vcc
          v_mov_b32 v{S2}, 0
          v_mov_b32 v{SEL+1}, v{SEL}
          v_mov_b32 v{SEL+2}, v{SEL}
          v_mov_b32 v{SEL+3}, v{SEL}""")
    P(f"""v_lshlrev_b32 v{VL16}, 4, v{VLANE}
          v_mov_b32 v{T+24}, {OOB}
          s_and_b32 {sT0}, {sW}, 1
          s_lshl_b32 {sT0}, {sT0}, 1
          v_add_u32 v{T+26}, {sT0}, v{T+22}
          v_bfe_u32 v{T+27}, v{VLANE}, 1, 2
          v_xor_b32 v{T+26}, v{T+26}, v{T+27}
          v_and_b32 v{T+27}, 1, v{VLANE}
          v_lshlrev_b32 v{T+27}, 4, v{T+27}
          s_movk_i32 {sT1}, 3584
          v_mad_u32_u24 v{T+27}, v{rr}, {sT1}, v{T+27}
          v_add_u32 v{T+5}, {sJ4}, v{T+26}
          v_cmp_gt_u32 vcc, {sJ4}, v{T+26}
          v_lshl_add_u32 v{VP[0]}, v{T+5}, 5, v{T+27}
          v_add_u32 v{T+5}, 4, v{T+26}
          v_cndmask_b32 v{T+5}, v{T+5}, v{T+26}, vcc
          v_cmp_eq_u32 vcc, 3, v{T+26}
          v_lshl_add_u32 v{PK_VQ}, v{T+5}, 5, v{T+27}
          v_add_u32 v{VP[1]}, 56320, v{VP[0]}
          v_cndmask_b32 v{PK_VQ}, v{PK_VQ}, v{T+24}, vcc
          v_add_u32 v{VP[2]}, {2*56320}, v{VP[0]}
          v_add_u32 v{VP[3]}, {3*56320}, v{VP[0]}""")
    P(f"""s_mul_i32 {sPB}, {sJ}, 224
          s_lshr_b32 {sT0}, {sW}, 1
          s_mul_i32 {sT0}, {sT0}, {8*3584}
          s_add_u32 {sPB}, {sPB}, {sT0}""")
    if OPT.get("cfast", 0):
        P(f"""s_lshl_b32 {sT0}, {sM}, 3
              s_lshr_b32 {sT1}, {sJ}, 1
              s_add_u32 {sT0}, {sT0}, {sT1}
              s_lshl_b32 {sT0}, {sT0}, 2
              s_add_u32 {sT0}, {sT0}, {sW}
              s_lshl_b32 {sT0}, {sT0}, 10
              s_add_u32 {sT1}, {sJ4}, 1
              s_bitcmp1_b32 {sT1}, 1
              s_cselect_b32 {sT0}, {OOB}, {sT0}
              v_add_u32 v{VCT}, {sT0}, v{VL16}
              v_mov_b32 v{VCT+1}, v{VCT}""")
    else:
        P(f"""s_lshl_b32 {sT0}, s2, 1
              s_lshr_b32 {sT1}, {sW}, 1
              s_add_u32 {sT0}, {sT0}, {sT1}
              s_lshl_b32 {sT0}, {sT0}, 10
              s_bitcmp1_b32 {sW}, 0
              s_cselect_b32 {sT1}, {OOB}, {sT0}
              s_cselect_b32 {sT0}, {sT0}, {OOB}
              v_add_u32 v{VCT}, {sT0}, v{VL16}
              v_add_u32 v{VCT+1}, {sT1}, v{VL16}""")
    for g in ORDER[1]:
        P.emit(GRP[g]())
    if OPT["xlook"] >= 3:
        P.emit(dma_X(2) + dma_B(2))
    NPRE = OPT.get("npre", 200)
    mark0 = len(P.l)
    set_srd(iSWS, WS_WIN); set_srd(iSOUT, 4 << 20)
    P(f"""s_lshl_b32 {sFL}, {sM}, 9
          s_lshr_b32 {sT0}, {sJ}, 2
          s_lshl_b32 {sT0}, {sT0}, 7
          s_add_u32 {sFL}, {sFL}, {sT0}
          s_lshl_b32 {sT0}, {sJ4}, 2
          s_add_u32 {sFL}, {sFL}, {sT0}
          s_add_u32 {sFL}, {sFL}, {FL_OFF}
          s_add_u32 {sNON}, {sNON}, 1
          s_cmp_eq_u32 {sW}, 3
          s_cselect_b32 {sFL}, {sFL}, {OOB}
          v_mov_b32 v{VFLA}, {sFL}
          v_cmp_eq_u32 vcc, 0, v{VLANE}""")
    for r in (XE + 1, XE + 2, XE + 3, CE0 + 1, CE0 + 2, CE0 + 3, CE1 + 1, CE1 + 2, CE1 + 3):
        P(f"v_mov_b32 v{r}, 0")
    P(f"v_cndmask_b32 v{VFLA}, v{T+24}, v{VFLA}, vcc")
    P(f"""s_lshl_b32 {sT2}, {sM}, 2
          s_lshr_b32 {sT3}, {sJ}, 2
          s_add_u32 {sT2}, {sT2}, {sT3}
          s_mul_i32 {sT2}, {sT2}, {28*1024}
          s_add_u32 {sT2}, {sT2}, {W2_OFF}""")
    for pz in range(1):
        P(f"""s_xor_b32 {sROT}, {sJ4}, {pz}
              s_sub_u32 {sT3}, {sW}, {sROT}
              s_add_u32 {sT1}, {sW}, 4
              s_sub_u32 {sT0}, {sT1}, {sROT}
              s_cmp_lt_u32 {sW}, {sROT}
              s_cselect_b32 {sT3}, {sT1}, {sT3}
              s_cselect_b32 {sT0}, {sT0}, {sT1}
              s_lshl_b32 {sT3}, {sT3}, 2
              s_add_u32 {sT3}, {sT3}, {sROT}
              s_lshl_b32 {sT3}, {sT3}, 10
              s_add_u32 {sT3}, {sT3}, {sT2}
              v_add_u32 v{VRS+2*pz}, {sT3}, v{VL16}
              s_lshl_b32 {sT0}, {sT0}, 2
              s_add_u32 {sT0}, {sT0}, {sROT}
              s_lshl_b32 {sT0}, {sT0}, 10
              s_add_u32 {sT0}, {sT0}, {sT2}
              s_cmp_eq_u32 {sW}, 3
              s_cselect_b32 {sT0}, {OOB}, {sT0}
              v_add_u32 v{VRS+2*pz+1}, {sT0}, v{VL16}""")
    P(f"""s_mov_b32 {sL2E}, {LOG2E}
          s_mov_b32 {sI2P}, {INV2PI}
          s_lshl_b32 {sT0}, {sJ}, 13
          s_add_u32 {sT0}, {sT0}, {E_OFF}
          s_add_u32 s{iSE}, s{iSWS}, {sT0}
          s_addc_u32 s{iSE+1}, s{iSWS+1}, 0""")
    set_srd(iSE, 8192)
    P(f"""v_lshrrev_b32 v{T+17}, 4, v{VLANE}
          v_bfe_u32 v{T+20}, v{VLANE}, 2, 2
          v_lshlrev_b32 v{PK_TRB}, 7, v{T+20}
          v_lshl_add_u32 v{PK_TRB}, v{T+17}, 12, v{PK_TRB}
          v_lshl_add_u32 v{PK_TRB}, v{T+21}, 3, v{PK_TRB}
          v_bfe_u32 v{PK_SSW}, v{VLANE}, 3, 1
          v_lshl_add_u32 v{PK_SSW}, v{T+22}, 1, v{PK_SSW}
          v_lshlrev_b32 v{PK_SSW}, 5, v{PK_SSW}""")
    P.emit(set_ap("P", sT0))
    seg = T + 23
    P(f"""s_mul_i32 {sT0}, {sW}, 5120
          s_add_u32 {sT0}, {sT0}, {HT}
          v_mul_u32_u24 v{AHW}, 80, v{VC4}
          v_lshl_add_u32 v{AHW}, v{hh}, 5, v{AHW}
          v_add_u32 v{AHW}, {sT0}, v{AHW}
          v_lshl_add_u32 v{AHR}, v{hh}, 3, v{T+20}
          v_mul_u32_u24 v{AHR}, 80, v{AHR}
          v_and_b32 v{T+23}, 1, v{VLANE}
          v_lshl_add_u32 v{AHR}, v{T+23}, 5, v{AHR}
          v_lshl_add_u32 v{AHR}, v{T+22}, 4, v{AHR}
          v_bfe_u32 v{T+23}, v{VLANE}, 1, 1
          v_lshl_add_u32 v{AHR}, v{T+23}, 3, v{AHR}
          v_add_u32 v{AHR}, {sT0}, v{AHR}
          v_lshl_add_u32 v{ARPR}, v{hh}, 2, v{T+20}
          v_lshlrev_b32 v{ARPR}, 6, v{ARPR}
          v_lshl_add_u32 v{ARPR}, v{T+22}, 5, v{ARPR}
          v_lshl_add_u32 v{ARPR}, v{T+21}, 3, v{ARPR}
          v_add_u32 v{ARPR}, {sT0}, v{ARPR}
          v_add_u32 v{RPT}, {sT0}, v{VL16}
          s_lshl_b32 {sT0}, {sW}, 1
          v_add_u32 v{seg}, {sT0}, v{hh}
          v_lshlrev_b32 v{AEXR}, 8, v{seg}
          v_lshl_add_u32 v{AEXR}, v{VC4}, 3, v{AEXR}
          v_add_u32 v{AEXR}, {EXZ}, v{AEXR}
          v_add_u32 v{AEXW}, 1792, v{AEXR}
          s_sub_u32 {sT0}, 15, {sM}
          s_lshl_b32 {sT0}, {sT0}, 9
          v_lshlrev_b32 v{VEW}, 4, v{VC4}
          v_add_u32 v{VEW}, {sT0}, v{VEW}
          v_cmp_eq_u32 vcc, 7, v{seg}
          v_lshlrev_b32 v{T+25}, 9, v{hh}
          v_sub_u32 v{VER}, v{VEW}, v{T+25}
          s_lshl_b32 {sT0}, {sW}, 11
          s_sub_u32 {sT0}, {14*512}, {sT0}
          v_add_u32 v{VER}, {sT0}, v{VER}
          v_cndmask_b32 v{VEW}, v{T+24}, v{VEW}, vcc""")
    tau = T + 25
    P(f"""v_bfe_u32 v{tau}, v{VLANE}, 2, 1
          v_lshlrev_b32 v{tau}, 4, v{tau}
          v_lshl_add_u32 v{tau}, v{T+14}, 2, v{tau}
          v_add_u32 v{tau}, v{tau}, v{T+21}
          s_lshr_b32 {sT0}, {sXB}, 7
          s_lshl_b32 {sT1}, {sJ}, 12
          s_add_u32 {sT0}, {sT0}, {sT1}
          s_add_u32 {sT0}, {sT0}, {ST_OFF}
          s_cmp_eq_u32 {sJ4}, 0
          s_cselect_b32 {sT0}, {sT0}, {OOB}
          v_lshrrev_b32 v{VST}, 2, v{row}
          v_lshl_add_u32 v{VST}, v{T+14}, 3, v{VST}
          v_add_u32 v{VST}, {sT0}, v{VST}
          s_lshl_b32 {sT0}, {sW}, 7
          s_add_u32 {sT0}, {sT0}, {RS}
          v_lshlrev_b32 v{PR}, 2, v{tau}
          v_add_u32 v{PR}, {sT0}, v{PR}
          v_lshlrev_b32 v{ARS}, 6, v{hh}
          v_add_u32 v{ARS}, {sT0}, v{ARS}
          s_lshl_b32 {sT0}, {sW}, 2
          v_lshlrev_b32 v{ACSB_R}, 4, v{VC4}
          v_add_u32 v{ACSB_R}, {CSB}, v{ACSB_R}
          v_add_u32 v{ACSB_W}, {sT0}, v{ACSB_R}
          v_lshlrev_b32 v{ACSG_W}, 2, v{VC4}
          v_add_u32 v{ACSG_W}, {CSG}, v{ACSG_W}""")
    a_, b_, t0, t1 = T + 26, T + 27, T + 1, T + 2
    P(f"""v_lshlrev_b32 v{PLRE}, 16, v{PLRE}
          v_lshlrev_b32 v{PLIM}, 16, v{PLIM}
          v_lshlrev_b32 v{PLDT}, 16, v{PLDT}
          v_mul_f32 v{PLDT}, {sL2E}, v{PLDT}
          v_exp_f32 v{PLDT}, v{PLDT}
          v_cvt_f32_u32 v{T+3}, v{seg}""")
    P.emit(bfr(PLDT, PLDT))
    P(f"""v_mul_f32 v{a_}, v{PLDT}, v{PLRE}
          v_mul_f32 v{b_}, v{PLDT}, v{PLIM}
          v_mul_f32 v{a_}, {sL2E}, v{a_}
          v_mul_f32 v{b_}, {sI2P}, v{b_}
          v_mul_f32 v{T+3}, {hex(f2u(16.0))}, v{T+3}""")
    cpow(None, L1R, L1I, a_, b_, t0, t1)
    cpow(hex(f2u(16.0)), L16R, L16I, a_, b_, t0, t1)
    cpow(hex(f2u(128.0)), L128R, L128I, a_, b_, t0, t1)
    cpow(hex(f2u(256.0)), L256R, L256I, a_, b_, t0, t1)
    cpow(f"v{T+3}", LSR, LSI, a_, b_, t0, t1)
    P(f"""v_mul_f32 v{t1}, v{PLRE}, v{PLRE}
          v_fma_f32 v{t1}, v{PLIM}, v{PLIM}, v{t1}
          v_rcp_f32 v{t1}, v{t1}
          v_add_f32 v{t0}, -1.0, v{L1R}
          v_mul_f32 v{KR}, v{t0}, v{PLRE}
          v_fma_f32 v{KR}, v{L1I}, v{PLIM}, v{KR}
          v_mul_f32 v{KI}, v{L1I}, v{PLRE}
          v_fma_f32 v{KI}, -v{t0}, v{PLIM}, v{KI}
          v_add_f32 v{t1}, v{t1}, v{t1}
          v_mul_f32 v{KR}, v{KR}, v{t1}
          v_mul_f32 v{KI}, v{KI}, v{t1}
          v_mov_b32 v{VNON}, {sNON}""")
    if OPT.get('p2early', 1):
        p2scal()
    mark1 = len(P.l)
    P(f"""s_lshl_b32 {sT3}, {sM}, 2
          s_add_u32 {sT3}, {sT3}, {sW}
          s_mul_i32 {sT2}, {sT3}, 176
          s_lshr_b32 {sT0}, {sJ}, 2
          s_mul_i32 {sT0}, {sT0}, 44
          s_add_u32 {sT2}, {sT2}, {sT0}
          s_add_u32 {sT2}, {sT2}, {sJ4}
          s_lshl_b32 {sT2}, {sT2}, 10
          s_mul_i32 {sT0}, {sJ4}, 3072
          s_add_u32 {sHB}, {sT2}, {sT0}
          s_add_u32 {sHB}, {sHB}, 16384""")
    for t in range(4):
        P(f"s_add_u32 {sT0}, {sW}, {t}\ns_and_b32 {sT0}, {sT0}, 3\ns_lshl_b32 {sT0}, {sT0}, 12\ns_add_u32 {sHT[t]}, {sT2}, {sT0}")
    P(f"s_add_u32 {sT2}, {sT2}, 32768")
    for t in range(3):
        tab = sum((((w + t) % 3) << (4 * w)) for w in range(4))
        P(f"""s_lshl_b32 {sT0}, {sW}, 2
              s_lshr_b32 {sT0}, {tab}, {sT0}
              s_and_b32 {TB[t]}, {sT0}, 3
              s_lshl_b32 {sT0}, {TB[t]}, 12
              s_add_u32 {sHT[4+t]}, {sT2}, {sT0}""")

    if not OPT.get('p2early', 1):
        p2scal()
    nlate = len(P.l) - mark1
    rest = P.l[mark0:]
    del P.l[mark0:]
    groups, cur = [], []
    for k, ins in enumerate(rest):
        cur.append(ins)
        live = False
        for r in ("scc", "s100", "s101"):
            for nx in rest[k + 1:k + 8]:
                if r in nx.rd: live = True; break
                if r in nx.wr: break
        if not live:
            groups.append(cur); cur = []
    assert not cur
    k = 0
    while k < nlate:
        g = groups.pop(); LATE.insert(0, g); k += len(g)
    assert k == nlate
    n = 0
    while groups and n < NPRE:
        g = groups.pop(0); P.l.extend(g); n += len(g)
    DEFER.extend(groups)
    stamp(2)
    P('Lmark0:')


def dma_B(n):
    base = (SCR + (n >> 1) * 16384 if n < 4 else ((n - 4) >> 1) * 16384) + (n & 1) * 2048
    return [f"s_add_u32 m0, {sWL}, {base}", f"s_add_u32 {sSO}, {sBB}, {KB[n]}",
            (f"buffer_load_dwordx4 v{VB}, {SBR}, {sSO} offen" + (" nt" if n < OPT.get("ntb", 0) else "") + " lds", f"B{n}"),
            f"s_add_u32 m0, {sWL}, {base+1024}",
            (f"buffer_load_dwordx4 v{VB}, {SBI}, {sSO} offen" + (" nt" if n < OPT.get("ntb", 0) else "") + " lds", f"B{n}")]

def dma_X(n):
    return [f"s_add_u32 m0, {sWL}, {n*16384}", f"s_add_u32 {sSO}, {sXB}, {KB[n]}"] + \
           [(f"buffer_load_dwordx4 v{VX[sb]}, {SX}, {sSO} offen offset:{sb*1024}" + (" nt" if n < OPT.get("ntx", 0) else "") + " lds", f"X{n}") for sb in range(4)]

def dma_pass(ps, b):
    vp = VP if ps == "P" else VX
    r = [f"s_add_u32 m0, {sWL}, {((b+2)%8)*16384}", f"s_mul_i32 {sSO}, {KB[b]}, 1792", f"s_add_u32 {sSO}, {sSO}, {sPB}"]
    return r + [(f"buffer_load_dwordx4 v{vp[ks]}, {SW}, {sSO} offen offset:{ks*1024}" + (" nt" if (ps, b) == ("Q", 0) and OPT.get("ntq", 0) else "") + " lds", f"{ps}{b}") for ks in range(4)]

def set_ap(ps, tmp):
    r = []
    for t in range(4 if ps == "P" else 3):
        if ps == "P":
            r += [f"s_add_u32 {tmp}, {sW}, {t}", f"s_and_b32 {tmp}, {tmp}, 3", f"s_lshl_b32 {tmp}, {tmp}, 5"]
        else:
            r += [f"s_lshl_b32 {tmp}, {TB[t]}, 5"]
        r += [f"v_xor_b32 v{AP[t]}, {tmp}, v{PK_SSW}", f"v_add_u32 v{AP[t]}, v{PK_TRB}, v{AP[t]}", f"v_add_u32 v{APH[t]}, 0x10000, v{AP[t]}"]
    return r

ringpos = [0]
def ring():
    r = ARING + 4 * (ringpos[0] % NRING)
    ringpos[0] += 1
    return r

def pop_vm(q):
    n = 0
    while q:
        x = q.pop(0)
        P.emit([x]); n += 1
        if isvm(x):
            break
    return n


REPACK = [(f"buffer_store_dwordx4 {vr(RPW+4*g,4)}, v{VRS+g}, {SWS}, 0 offen sc1", "pub1") for g in range(2)]

def landing():
    XL = OPT["xlook"]
    npass = [1]
    XT = [ACC_G[1], ACC_G[0]]
    BF = [128, 168]
    def reads(n):
        off = (n & 3) * 16384 + (0x10000 if False else 0)
        boff = ((n & 3) >> 1) * 16384 + (n & 1) * 2048
        r = [(f"ds_read_b128 {vr(XT[n&1]+4*s_,4)}, v{AX[s_]} offset:{off}", f"r{n}") for s_ in range(4)]
        r += [(f"ds_read_b128 {ar(BF[n&1]+8*s_+4*mat,4)}, v{AB[s_]} offset:{boff+mat*1024}", f"r{n}") for s_ in range(4) for mat in range(2)]
        r += [(f"ds_read_b128 {ar(BF[n&1]+32+4*mat,4)}, v{ABC} offset:{boff+mat*1024}", f"r{n}") for mat in range(2)]
        return r
    def sync(n):
        if n == 4:
            for s_ in range(4):
                P(f"v_add_u32 v{AX[s_]}, 0x10000, v{AX[s_]}\nv_add_u32 v{AB[s_]}, {(-SCR) & 0xffffffff}, v{AB[s_]}")
            P(f"v_add_u32 v{ABC}, {(-SCR) & 0xffffffff}, v{ABC}")
        P(f"@waitvm X{n},B{n}\ns_barrier")
        if OPT.get("fine"): stamp(48 + n)
    def vmq(n):
        nn = n + 1 + XL
        q = []
        if nn < 8:
            q += dma_X(nn) + dma_B(nn)
        else:
            for _ in range(OPT.get("pper", 1)):
                if npass[0] < min(6, n - 1) and n < OPT.get('plast', 8):
                    q += dma_pass("P", npass[0]); npass[0] += 1
        if n < len(ORDER[2]):
            for g in ORDER[2][n]: q += GRP[g]()
        if n == OPT.get("rpn", 7) and not OPT.get("rpsp", 0):
            q += REPACK
        return q
    sync(0)
    P.emit(reads(0))
    P.emit(dma_X(XL) + dma_B(XL))
    for n in range(8):
        P(f"@waitlg r{n}")
        q = vmq(n)
        for kk in range(16):
            P(f"v_dot2_f32_bf16 v{S1}, v{XT[n&1]+kk}, {sONE}, v{S1}\nv_dot2_f32_bf16 v{S2}, v{XT[n&1]+kk}, v{XT[n&1]+kk}, v{S2}")
            if kk in (1, 9): pop_vm(q)
        rd = []
        if n < 7:
            sync(n + 1)
            rd = reads(n + 1)
        if n == OPT.get('p0w', 5):
            rd += [f"v_add_u32 v{T}, {sWL}, v{VL16}"] + [(f"ds_write_b128 v{T}, {ar(P0R+4*ks,4)} offset:{2*16384+ks*1024}", f"r{n+1}") for ks in range(4)]
        if n == OPT.get('rpn', 7) - 1:
            rd += [f"ds_write_b128 v{RPT}, {vr(RPW+4*g,4)} offset:{g*1024}" for g in range(2)]
            rd += [(f"ds_read_b64_tr_b16 {vr(RPW+4*g+2*a,2)}, v{ARPR} offset:{g*1024+a*512}", f"r{n+1}") for g in range(2) for a in range(2)]
        for k in range(8):
            s_, mat = k >> 1, k & 1
            acc = vr(ACC_S + 16 * mat, 16)
            P(f"v_mfma_f32_32x32x16_bf16 {acc}, {vr(XT[n&1]+4*s_,4)}, {ar(BF[n&1]+8*s_+4*mat,4)}, {'0' if (n == 0 and s_ == 0) else acc}")
            nr = 3 if (len(rd) > 2 * (8 - k) or k < OPT.get('lquiet', 0)) else 2
            P.emit(rd[:nr]); rd = rd[nr:]
            LQ = OPT.get("lquiet", 0) if n < 7 else 0
            if k >= LQ:
                per = 16 // (8 - LQ)
                for z in range(per * (k - LQ), per * (k - LQ + 1)):
                    P(f"v_accvgpr_write_b32 a{AXF+16*n+z}, v{XT[n&1]+z}")
            nb = pop_vm(q) if k >= 2 or len(q) > 12 else 0
            pop_defer((OPT.get('dfill', 2) if k >= OPT.get('lquiet', 0) else 0) - nb)
        for mat in range(2):
            d = vr(CSBR + 4 * mat, 4)
            P(f"v_mfma_f32_16x16x32_bf16 {d}, {vr(SEL,4)}, {ar(BF[n&1]+32+4*mat,4)}, {'0' if n == 0 else d}")
        P.emit(rd + q)
    print('deferred left after landing:', sum(len(g) for g in DEFER))
    pop_defer(9999)
    P('Lmark1:')
    stamp(3)
    return npass[0]


def split_cs(src, ce, t0, t1):
    return bfr(t0, src) + [f"v_sub_f32 v{t1}, v{src}, v{t0}", f"v_cvt_pk_bf16_f32 v{ce}, v{t0}, v{t1}"]


def passes(npass):
    NT = {"P": 4, "Q": 3}
    GI = lambda ps, t: t if ps == "P" else 4 + t
    def order(nt, nto):
        o = [(t, b, ks) for b in range(8 - nto) for ks in range(4) for t in range(nt)]
        return o + [(t, b, ks) for t in range(nt) for b in range(8 - nto, 8) for ks in range(4)]
    frs = [("P",) + x for x in order(4, OPT["to1"])] + [("Q",) + x for x in order(3, OPT["to2"])]
    last_use, tile_last = {}, {}
    for k, (ps, t, b, ks) in enumerate(frs):
        last_use[(ps, b)] = k
        tile_last[(ps, t)] = k
    NF = len(frs)
    last1 = 127
    st = dict(done=-1, bars=0, marks={}, gap=0, lastvm=-9, lastdma=-9, quiet=-1)
    released = {"free": True}
    pending = [("P", b) for b in range(npass, 8)] + [("Q", b) for b in range(8)]
    prev_occ = {}
    for b in range(8):
        prev_occ[("P", b)] = "free" if b < 6 else "S"
        prev_occ[("Q", b)] = ("P", b)
    dma_q, opened = [], set()
    early_w = [w_load(GSTEP[g], ntl) for g in sorted(range(12), key=lambda g: ((g & 3) if OPT.get('lead', 0) else 0, g)) for ntl in range(2)]
    early_c = list(range(8))
    late_w = [((2 * (g - 12) + ntl) >> 2, w_load(GSTEP[g], ntl)) for g in range(12, 28) for ntl in range(2)]
    alt = [False]
    h_done = [0]

    def barrier(tagwait=None):
        if tagwait:
            P(f"@waitvm {tagwait}")
        P("@waitlg xch")
        if OPT.get("fine"): stamp(16 + st["bars"])
        P("s_barrier")
        st["quiet"] = st["gap"] + OPT.get("quiet", 0)
        st["bars"] += 1
        released["S"] = True
        for key, lu in last_use.items():
            if lu <= st["done"]:
                released[key] = True

    gate_done = lambda k: ("gate", lambda: st["done"] >= k)
    gate_bar = lambda name: ("gate", lambda: name in st["marks"] and st["bars"] > st["marks"][name])
    mark = lambda name: ("mark", name)
    gate_mark = lambda name: ("gate", lambda: name in st["marks"])
    call = lambda f: ("call", f)

    P(f"v_mov_b32 v{T+8}, 0\nv_mov_b32 v{T+9}, 0\ns_lshl_b32 {sT2}, {sW}, 9\ns_add_u32 {sT2}, {sT2}, {EXZ}")
    P(f"v_lshrrev_b32 v{T+10}, 1, v{VL16}\nv_add_u32 v{T+10}, {sT2}, v{T+10}")
    P(f"ds_write_b64 v{T+10}, {vr(T+8,2)}", tag="xch")
    u0, u1, mean, mb, den = T, T + 1, T + 2, T + 4, T + 5
    P(f"v_mov_b32 v{u0}, v{S1}\nv_mov_b32 v{u1}, v{S2}")
    P(f"ds_write_b32 v{ACSB_W}, v{CSBR}\nds_write_b32 v{ACSB_W}, v{CSBI} offset:512", tag="xch")

    e1 = [f"ds_read_b128 {vr(T+12,4)}, v{ACSB_R}", f"ds_read_b128 {vr(T+16,4)}, v{ACSB_R} offset:512",
          f"v_permlane32_swap_b32 v{S1}, v{u0}", f"v_permlane32_swap_b32 v{S2}, v{u1}",
          f"v_add_f32 v{S1}, v{S1}, v{u0}", f"v_add_f32 v{S2}, v{S2}, v{u1}",
          f"v_mul_f32 v{mean}, {hex(f2u(1/512))}, v{S1}", f"v_mul_f32 v{S2}, {hex(f2u(1/512))}, v{S2}",
          f"v_fma_f32 v{S2}, -v{mean}, v{mean}, v{S2}", f"v_max_f32 v{S2}, 0, v{S2}"]
    e1 += bfr(S2, S2) + [f"v_add_f32 v{S2}, {hex(f2u(1e-5))}, v{S2}"] + bfr(S2, S2) + [f"v_sqrt_f32 v{S2}, v{S2}"]
    e1 += bfr(mb, mean) + bfr(den, S2)
    e1 += [f"v_rcp_f32 v{S1}, v{den}", f"v_xor_b32 v{u0}, 0x80000000, v{mb}", f"v_lshrrev_b32 v{u1}, 16, v{u0}",
           (f"ds_write_b32 v{PR}, v{S1}", "rsw"), f"v_or_b32 v{u0}, v{u0}, v{u1}",
           ("atomic", [f"v_cmp_gt_u32 vcc, 32, v{VLANE}", f"v_mov_b32 v{SIG}, v{den}", f"v_mul_f32 v{C1}, {sL2E}, v{S1}",
                       f"v_cndmask_b32 v{XE}, 0, v{u0}, vcc"])]
    for mat, b in ((0, T + 12), (1, T + 16)):
        e1 += [f"v_add_f32 v{b}, v{b}, v{b+1}", f"v_add_f32 v{b+2}, v{b+2}, v{b+3}", f"v_add_f32 v{b}, v{b}, v{b+2}"]
        e1 += split_cs(b, CE0 if mat == 0 else CE1, b + 1, b + 2)
    R16 = T + 6
    e1 += ["@waitlg rsw"] + [f"ds_read_b128 {vr(R16+4*k,4)}, v{ARS} offset:{16*k}" for k in range(4)]
    e1 += [f"v_mfma_f32_32x32x16_bf16 {vr(ACC_S,16)}, {vr(XE,4)}, {vr(CE0,4)}, {vr(ACC_S,16)}",
           f"v_mfma_f32_32x32x16_bf16 {vr(ACC_S+16,16)}, {vr(XE,4)}, {vr(CE1,4)}, {vr(ACC_S+16,16)}",
           f"v_sub_f32 v{C1}, 0, v{C1}",
           (f"buffer_store_dwordx2 {vr(mb,2)}, v{VST}, {SWS}, 0 offen sc1", "pubA")]
    e1 += [f"v_add_u32 v{AX[s_]}, 0xffff0000, v{AX[s_]}" for s_ in range(4)]
    e1 += [f"v_mov_b32 v{VX[0]}, v{PK_VQ}"] + [f"v_add_u32 v{VX[k]}, {k*56320}, v{PK_VQ}" for k in range(1, 4)] + [mark("vq")]
    for q in range(16):
        e1 += [f"v_mul_f32 v{ACC_S+q}, v{ACC_S+q}, v{R16+q}", f"v_mul_f32 v{ACC_S+16+q}, v{ACC_S+16+q}, v{R16+q}"]
    ea, eb = (T + 0, T + 1), (T + 2, T + 3)
    cur = (ACC_S, ACC_S + 16)
    for q in range(1, 16):
        nxt = ea if q % 2 else eb
        e1 += cstep(nxt, (L1R, L1I), cur, (ACC_S + q, ACC_S + 16 + q))
        cur = nxt
    assert cur == ea
    e1 += [(f"ds_write_b64 v{AEXW}, {vr(ea[0],2)}", "xch"), mark("ex")]
    e1 += [("delay", 1), call(barrier)] if OPT["exbar"] else [gate_bar("ex")]
    e1 += [f"ds_read_b64 {vr(T+8+2*k,2)}, v{AEXR} offset:{256*k}" for k in range(7)] + [("delay", 2)]
    cur = (T + 8, T + 9)
    for k in range(1, 7):
        u = (T + 8 + 2 * k, T + 9 + 2 * k)
        nx = (PR, PI) if k == 6 else u
        e1 += cstep(nx, (L16R, L16I), cur, u)
        cur = nx
    e1 += [f"v_mov_b32 v{T+5}, v{VNON}", f"v_mov_b32 v{T+7}, v{VNON}"] + cstep((T + 4, T + 6), (L16R, L16I), (PR, PI), ea)
    e1 += [(f"buffer_store_dwordx4 {vr(T+4,4)}, v{VEW}, {SE}, 0 offen sc1", "pubE"), call(lambda: stamp(4)), ("delay", 1), mark("e1")]

    cl = [gate_mark("epiP3"), ("delay", OPT.get("cld", 16)), "@waitvm pubA", mark("clr"), gate_bar("clr"), flag_store(1), call(lambda: stamp(5)), mark("flA")]
    lt = [("atomic", [i.text for i in g]) for g in LATE] + [mark("late")]
    ku = [gate_mark("e1"), gate_mark("late"), f"s_load_dwordx2 s[{pDSK}:{pDSK+1}], s[0:1], 64"]
    for q in list(range(16)) + [-1]:
        re_, im_ = (ACC_S + q, ACC_S + 16 + q) if q >= 0 else (PR, PI)
        t0, t1 = T + 4 + 2 * (q & 1), T + 5 + 2 * (q & 1)
        ku += [f"v_mul_f32 v{t0}, v{KI}, v{im_}", f"v_mul_f32 v{t1}, v{KI}, v{re_}",
               f"v_fma_f32 v{re_}, v{KR}, v{re_}, -v{t0}", f"v_fma_f32 v{im_}, v{KR}, v{im_}, v{t1}"]
    ku += [f"v_lshrrev_b32 v{T+4}, 3, v{VLANE}", f"v_and_b32 v{T+5}, 7, v{VLANE}", f"v_lshrrev_b32 v{T+6}, 1, v{T+4}",
           f"v_xor_b32 v{T+6}, v{T+5}, v{T+6}", f"v_lshlrev_b32 v{T+6}, 4, v{T+6}",
           f"v_lshl_add_u32 v{VC[0]}, v{T+4}, 10, v{T+6}", f"v_xor_b32 v{VC[1]}, 64, v{VC[0]}",
           f"v_add_u32 v{VC[2]}, {2*7168}, v{VC[0]}", f"v_add_u32 v{VC[3]}, {3*7168}, v{VC[1]}", f"v_add_u32 v{VC[1]}, 7168, v{VC[1]}"]
    ku += [("atomic", [f"s_and_b32 {sT2}, s59, 1", f"s_lshl_b32 {sT2}, {sT2}, 5", f"s_lshr_b32 {sT3}, {sMU}, 6", f"s_or_b32 {sT2}, {sT2}, {sT3}"] +
                      [f"v_xor_b32 v{AX[s_]}, {sT2}, v{AX[s_]}" for s_ in range(4)])]
    ku += [f"v_add_u32 v{AXH[s_]}, 0x10000, v{AX[s_]}" for s_ in range(4)]
    ku += [("atomic", [f"s_lshl_b32 {sT2}, {TB[0]}, 7", f"v_add_u32 v{ACSB_W}, {sT2}, v{ACSG_W}", f"s_lshl_b32 {sT2}, {sW}, 7", f"v_add_u32 v{ACSG_W}, {sT2}, v{ACSG_W}"]),
           ("atomic", [f"s_lshl_b32 {sT2}, {sW}, 2", f"s_add_u32 {sT2}, {sT2}, {sM}", f"v_lshrrev_b32 v{VEW}, 5, v{VLANE}",
                       f"v_add_u32 v{VEW}, {sT2}, v{VEW}"]),
           f"v_add_u32 v{VEW}, -12, v{VEW}", f"v_max_i32 v{VEW}, 0, v{VEW}", f"v_min_i32 v{VEW}, 5, v{VEW}", f"v_and_b32 v{VEW}, 6, v{VEW}",
           f"v_mul_lo_u32 v{VEW}, v{VEW}, {sNON}",
           f"v_mul_f32 v{L16R}, v{L256I}, v{L256I}", f"v_mul_f32 v{L16I}, v{L256R}, v{L256I}",
           f"v_fma_f32 v{L16R}, v{L256R}, v{L256R}, -v{L16R}", f"v_add_f32 v{L16I}, v{L16I}, v{L16I}",
           ("atomic", [f"s_lshl_b32 {sT2}, {sW}, 8", f"s_add_u32 {sT2}, {sT2}, {EXZ}", f"v_lshlrev_b32 v{VST}, 3, v{VC4}", f"v_add_u32 v{PRW}, {sT2}, v{VST}"]),
           f"v_add_u32 v{VST}, {EXZ}, v{VST}", mark("vc")]
    vo = [gate_mark("e1")] + ([] if OPT.get('p2early', 1) else [gate_mark("late")])
    vo += [("atomic", [f"s_lshl_b32 {sXB}, s59, 10", f"v_add_u32 v{VO4[0]}, {sXB}, v{VL16}"])]
    vo += [f"s_sub_u32 {sWQ[k]}, {sWA[k][0]}, {sMU}" for k in range(2)]
    vo += [f"v_xor_b32 v{VO4[k]}, {k*1024}, v{VO4[0]}" for k in range(1, 4)]
    vo += [f"v_and_b32 v{T+20}, 3, v{VLANE}", f"v_lshlrev_b32 v{T+20}, 2, v{T+20}", f"v_bfe_u32 v{T+21}, v{VLANE}, 2, 1",
           f"v_lshl_add_u32 v{T+21}, v{T+21}, 9, v{T+20}", mark("vo")]
    fw = (REPACK + [("delay", OPT.get("rpd", 12))] if OPT.get("rpsp", 0) else []) + [gate_done(OPT.get("fw", 8)), "@waitvm pub1", mark("p1"), gate_bar("p1"), flag_store(0)]
    ld, chk = poll(T + 22, T + 21, sPW)
    pl = [gate_mark("vo"), gate_done(OPT["pa"]), ld, ("delay", OPT["pad"]), ("atomic", chk), call(lambda: stamp(6)), mark("pollW")]
    lda = (f"buffer_load_dword v{T+22}, v{T+21}, {SWS}, {sXB} offen sc1", "poll")
    eva = [f"v_cmp_ne_u32 vcc, {sBB}, v{T+22}"]
    pl += [gate_done(OPT.get("pe", 150)), f"v_lshrrev_b32 v{T+21}, 2, v{VLANE}", f"v_lshl_add_u32 v{T+21}, v{T+21}, 7, v{T+20}",
           ("atomic", [f"s_lshl_b32 {sXB}, {sW}, 11", f"s_add_u32 {sXB}, {sXB}, {FL_OFF}", "s_cmp_eq_u32 s2, 0",
                       f"s_cselect_b32 {sXB}, {sXB}, {OOB}", f"s_cselect_b32 {sBB}, {sNON}, 0", f"s_cselect_b32 {sROT}, {EP_OFF - FL_OFF}, {OOB}"]),
           lda, ("delay", OPT["pad"]), ("atomic", eva + retry_check(eva, [lda], 8)), mark("epok")]

    ce_flip = [0]
    def glu_epi(ps, t):
        gi = GI(ps, t)
        acc = ACC_G[gi]
        pso = 0 if ps == "P" else 512
        r = [gate_done(tile_last[(ps, t)])]
        ce = CE0 if ce_flip[0] % 2 == 0 else CE1
        ce_flip[0] += 1
        tt = T + 24
        acs = ACSG_W if ps == "P" else ACSB_W
        pso = 0 if ps == "P" else 1024
        if t == 0:
            r += [("delay", 2), (f"ds_write_b32 v{acs}, v{CSGA} offset:{pso}", "xch"),
                  (f"ds_write_b32 v{acs}, v{CSGA} offset:{pso + 128*NT[ps]}", "xch"), mark(f"csg{ps}")]
            r += split_cs(CSGA, ce, tt + 1, tt + 2) + [mark(f"csgfree{ps}")]
        else:
            pre = ([call(barrier)] if t == 1 and OPT.get("csbar", 1) else []) + [gate_bar(f"csg{ps}"),
                   f"ds_read_b32 v{tt+3}, v{acs} offset:{pso + 128*t}", ("delay", 2)] + split_cs(tt + 3, ce, tt + 1, tt + 2)
            r = pre + r
        r += [f"v_mfma_f32_32x32x16_bf16 {vr(acc,16)}, {vr(ce,4)}, {vr(XE,4)}, {vr(acc,16)}", ("delay", 2)]
        for hf in range(2):
            es = range(4 * hf, 4 * hf + 4)
            r += [f"v_mul_f32 v{acc+e}, v{C1}, v{acc+e}" for e in es]
            r += [f"v_exp_f32 v{acc+e}, v{acc+e}" for e in es]
            r += [f"v_fma_f32 v{acc+e}, v{acc+e}, v{SIG}, v{SIG}" for e in es]
            r += [f"v_rcp_f32 v{acc+e}, v{acc+e}" for e in es]
            r += [f"v_mul_f32 v{acc+8+e}, v{acc+8+e}, v{acc+e}" for e in es]
        r += [f"v_cvt_pk_bf16_f32 v{acc+k}, v{acc+8+2*k}, v{acc+9+2*k}" for k in range(4)]
        r += [(f"buffer_store_dwordx4 {vr(acc,4)}, v{VL16}, {SWS}, {sHT[gi]} offen" + ("" if OPT.get("unsafe") else " sc1"), "pubA" if ps == "P" else "pubB"), mark(f"epi{ps}{t}")]
        return r
    epi = [gate_mark("vc")]
    for t in range(4):
        epi += glu_epi("P", t)
    epiq = [gate_mark("epiP3")]
    for t in range(3):
        epiq += glu_epi("Q", t)

    EL = ACC_G[0]
    eloads = [(f"buffer_load_dwordx4 {vr(EL+4*i,4)}, v{VER}, {SE}, 0 offen offset:{(1-i)*1024} sc1", "el") for i in range(2)]
    l1 = [gate_mark("epiP0"), gate_done(OPT["el"])] + eloads + [("delay", OPT["eld"])]
    ev = [f"v_add_u32 v{T+16}, v{EL+1}, v{EL+3}", f"v_add3_u32 v{T+16}, v{T+16}, v{EL+5}, v{EL+7}", f"v_cmp_ne_u32 vcc, v{VEW}, v{T+16}"]
    l1 += ev[:-1] + [("atomic", ev[-1:] + retry_check(ev, eloads)), call(lambda: stamp(7))]
    cur = (EL + 4, EL + 6)
    l1 += cstep(cur, (L256R, L256I), (EL, EL + 2), cur)
    sa, sb_ = (T + 16, T + 17), (T + 18, T + 19)
    l1 += [f"v_mov_b32 v{sa[0]}, v{cur[0]}", f"v_mov_b32 v{sa[1]}, v{cur[1]}", f"s_nop 0",
           f"v_permlane32_swap_b32 v{cur[0]}, v{sa[0]}", f"v_permlane32_swap_b32 v{cur[1]}, v{sa[1]}"]
    l1 += cstep(sa, (L128R, L128I), cur, sa)
    l1 += [(f"ds_write_b64 v{PRW}, {vr(sa[0],2)}", "xch"), mark("xw"), (gate_bar("xw") if not OPT.get("xbar", 0) else call(barrier))]
    l1 += [f"ds_read_b64 {vr(EL+8+2*k,2)}, v{VST} offset:{256*k}" for k in range(4)] + [("delay", 2)]
    cur = (EL + 8, EL + 9)
    for k in range(1, 4):
        u = (EL + 8 + 2 * k, EL + 9 + 2 * k)
        nx = sa if k == 3 else u
        l1 += cstep(nx, (L16R, L16I), cur, u)
        cur = nx
    l1 += [f"v_mul_f32 v{sb_[0]}, v{KI}, v{sa[1]}", f"v_mul_f32 v{sb_[1]}, v{KI}, v{sa[0]}",
           f"v_fma_f32 v{sa[0]}, v{KR}, v{sa[0]}, -v{sb_[0]}", f"v_fma_f32 v{sa[1]}, v{KR}, v{sa[1]}, v{sb_[1]}"]
    l1 += cstep((PR, PI), (LSR, LSI), sa, (PR, PI))
    cur = (PR, PI)
    for q in range(16):
        nxt = (ACC_S + q, ACC_S + 16 + q)
        l1 += cstep(nxt, (L1R, L1I), cur, nxt)
        cur = nxt
        if q % 2 == 1:
            l1 += [f"v_cvt_pk_bf16_f32 v{T+(q>>1)}, v{ACC_S+q-1}, v{ACC_S+q}",
                   f"v_cvt_pk_bf16_f32 v{T+8+(q>>1)}, -v{ACC_S+16+q-1}, -v{ACC_S+16+q}"]
    l1 += [(f"ds_write_b128 v{AHW}, {vr(T,4)}", "htw"), (f"ds_write_b128 v{AHW}, {vr(T+4,4)} offset:16", "htw"),
           (f"ds_write_b128 v{AHW}, {vr(T+8,4)} offset:{32*80}", "htw"), (f"ds_write_b128 v{AHW}, {vr(T+12,4)} offset:{32*80+16}", "htw"),
           ("delay", 2), "@waitlg htw"]
    l1 += [f"ds_read_b64_tr_b16 {vr(EL+4*u+2*a,2)}, v{AHR} offset:{(16*u+4*a)*80}" for u in range(4) for a in range(2)]
    l1 += [("delay", 2)]
    l1 += [(f"buffer_store_dwordx4 {vr(EL+4*u,4)}, v{VL16}, {SWS}, {sHB} offen offset:{u*1024}" + ("" if OPT.get("unsafe") else " sc1"), "pubB") for u in range(4)]
    l1 += [call(lambda: stamp(8)), mark("l1")]

    tasks = {0: [fw, e1, vo, pl, lt, cl, ku, epi, l1, epiq], 1: [fw, e1, vo, pl, lt, cl, ku, l1, epi, epiq], 2: [fw, e1, vo, pl, lt, cl, ku, epi, epiq, l1]}[OPT.get("prio", 0)]
    tpos = [0] * len(tasks)
    tdelay = [0] * len(tasks)

    def fill(budget, flush=False, maxn=10**9):
        progress = True
        cnt = 0
        while (budget > 0 or flush) and progress and cnt < maxn:
            progress = False
            for ti, tk in enumerate(tasks):
                while tpos[ti] < len(tk):
                    it = tk[tpos[ti]]
                    if isinstance(it, tuple) and it[0] == "gate":
                        if it[1]():
                            tpos[ti] += 1; continue
                        break
                    if isinstance(it, tuple) and it[0] == "mark":
                        st["marks"][it[1]] = st["bars"]; tpos[ti] += 1
                        if OPT.get("v"): print("  mark", it[1], "at frag", st["done"], "gap", st["gap"])
                        continue
                    if isinstance(it, tuple) and it[0] == "delay":
                        tdelay[ti] = st["gap"] + it[1]; tpos[ti] += 1; continue
                    break
                if tpos[ti] >= len(tk):
                    continue
                it = tk[tpos[ti]]
                if isinstance(it, tuple) and it[0] == "gate":
                    continue
                if tdelay[ti] > st["gap"] and not flush:
                    continue
                if st["gap"] <= st["quiet"] and not flush:
                    txt = it if isinstance(it, str) else (" ".join(it[1]) if it[0] == "atomic" else it[0] if isinstance(it[0], str) else "")
                    if any(w.startswith("v_") and not w.startswith("v_mfma") for w in txt.split()):
                        continue
                n0 = len(P.l)
                if isinstance(it, tuple) and it[0] == "call":
                    it[1]()
                elif isinstance(it, tuple) and it[0] == "atomic":
                    P.emit(it[1])
                elif isvm(it):
                    if (st["gap"] - st["lastvm"] < OPT["vgap"] or st["gap"] == st["lastdma"]) and not flush:
                        continue
                    P.emit([it]); st["lastvm"] = st["gap"]; budget -= OPT.get("vcost", 0)
                else:
                    P.emit([it])
                c = sum(i.cost for i in P.l[n0:])
                budget -= c; cnt += c
                if P.l[-1].kind == "mfma":
                    budget = OPT["budget"]; st["gap"] += 1
                tpos[ti] += 1
                progress = True
                break
        return progress if flush else budget

    OPENS = {ps: [[int(c) for c in g] for g in SOPT.get("op" + ps, d).split(".")] for ps, d in (("P", "0.1"), ("Q", "01.23.45.67"))}
    fr_ring = {}
    def issue_reads(k):
        ps, t, b, ks = frs[k]
        n = 0
        if k == last1 + 1:
            sa_ = set_ap("Q", sT1)
            P.emit(sa_); n += len(sa_)
        if (ps, b) not in opened:
            grp = [b]
            for g_ in OPENS[ps]:
                if g_[0] == b: grp = g_
            for bb in grp:
                assert (ps, bb) not in pending and not any(isinstance(x, tuple) and x[1] == f"{ps}{bb}" for x in dma_q), f"block {ps}{bb} not issued in time"
                opened.add((ps, bb))
            barrier(",".join(f"{ps}{bb}" for bb in grp))
            n += 2
        sl = (b + 2) % 8
        a = AP[t] if sl < 4 else APH[t]
        off = (sl & 3) * 16384 + ks * 1024
        r = ring()
        fr_ring[k] = r
        P(f"ds_read_b64_tr_b16 {ar(r,2)}, v{a} offset:{off}\nds_read_b64_tr_b16 {ar(r+2,2)}, v{a} offset:{off+512}", tag=f"f{k}")
        return n + 2

    LOOK = OPT["look"]
    for k in range(LOOK):
        issue_reads(k)
    seen = set()
    for k, (ps, t, b, ks) in enumerate(frs):
        acc = vr(ACC_G[GI(ps, t)], 16)
        budget = OPT["budget"] if "e1" in st["marks"] else OPT["ebudget"]
        if k % 2 == 0:
            P(f"@waitlg f{k},f{min(k+1, NF-1)}")
            budget -= 1
        if ps == "Q" and (ps, t) not in seen:
            assert all(m in st["marks"] for m in ("e1", "csgfreeP")), st["marks"]
        P(f"v_mfma_f32_32x32x16_bf16 {acc}, {ar(fr_ring[k],4)}, {ar(AXF+16*b+4*ks,4)}, {acc if (ps, t) in seen else '0'}")
        pend_cs = None
        if t == 0:
            d = vr(CSGA, 4)
            pend_cs = f"v_mfma_f32_16x16x32_bf16 {d}, {vr(SEL,4)}, {ar(fr_ring[k],4)}, {d if (ps, t) in seen else '0'}"
        else:
            st["done"] = k
        seen.add((ps, t))
        if not dma_q:
            if pending and released.get(prev_occ[pending[0]]) and (pending[0][0] == "P" or "vq" in st["marks"]):
                dma_q.extend(dma_pass(*pending.pop(0)))
            elif early_w and "pollW" in st["marks"] and not OPT.get("now"):
                dma_q.extend(early_w.pop(0))
            elif late_w and not early_w and OPT.get("latew", 1) and st["done"] >= last_use[("Q", late_w[0][0])] and not (alt[0] and early_c and not pending and released.get(("Q", early_c[0]))):
                dma_q.extend(late_w.pop(0)[1]); alt[0] = OPT.get("alt", 0) and len(late_w) % 4 == 0
            elif not pending and early_c and not OPT.get("noc") and "vc" in st["marks"] and released.get(("Q", early_c[0])):
                dma_q.extend(c_dma(early_c.pop(0))); alt[0] = False
        if dma_q and st["gap"] - st["lastdma"] >= OPT["dmagap"]:
            budget -= pop_vm(dma_q) + OPT.get("vcost", 0); st["lastdma"] = st["gap"]
        if k + LOOK < NF:
            budget -= issue_reads(k + LOOK)
        budget = fill(budget)
        st["gap"] += 1
        if pend_cs:
            P(pend_cs)
            st["done"] = k
            fill(2 + min(budget, 0))
    assert not pending
    P('Lmark2:')
    stamp(9)
    print("left after spine: early_w", len(early_w), "late_w", len(late_w), "early_c", len(early_c), "h", h_done[0], "tasks", [len(tasks[i]) - tpos[i] for i in range(len(tasks))])
    barrier()
    stream = p2_stream(early_w + [x[1] for x in late_w], early_c, h_done[0])
    if OPT.get("lead", 0):
        ws_ = sorted([it for it in stream if it[1] == "w"], key=lambda it: (int(it[2][-1][1][1:]) & 3, int(it[2][-1][1][1:])))
        lead = [it for it in ws_ if int(it[2][-1][1][1:]) & 3 == 0]
        stream = lead + [it for it in stream if it[1] == "c"] + [it for it in ws_ if it not in lead] + [it for it in stream if it[1] not in "cw"]
    while True:
        prog = fill(0, flush=True, maxn=OPT["tailgap"])
        if all(tpos[i] >= len(tasks[i]) for i in range(len(tasks))):
            break
        assert prog, [(tpos[i], len(tasks[i])) for i in range(len(tasks))]
        if not dma_q:
            for i, it in enumerate(stream):
                if it[1] in ("w" if OPT.get("cin") and not OPT.get("ctail") else "cw"):
                    dma_q.extend(stream.pop(i)[2]); break
        pop_vm(dma_q)
    P.emit(dma_q)
    stamp(10)
    return stream


def p2_stream(early_w, early_c, h_done):
    left_w = {x[-1][0] for x in early_w}
    items = []
    cneed = {}
    for s, (jj, u) in enumerate(STEPS):
        if u < 4:
            for ntl in range(2):
                cneed.setdefault(CREG.index((jj >> 1, u >> 1, ntl)), s)
    for s, (jj, u) in enumerate(STEPS):
        for r in early_c:
            pos = max(cneed[r] - 8, 0) if not OPT.get("cin") else min(cneed[r] - 3, 5 + (early_c.index(r) * OPT["cin"]))
            if pos == s:
                items.append((s, "c", c_dma(r)))
        if u >= 4:
            for ntl in range(2):
                g = w_load(s, ntl)
                if g[-1][0] in left_w:
                    items.append((s, "w", g))
        for tl in range(2):
            if not is_lead(s):
                items.append((s, "h", h_load(s, tl)))
        for sl in HLEAD:
            if is_lead(sl) and s == {8: 0, 16: 16, 24: 17, 32: 24, 40: 32}[sl]:
                items += [(s, "h", h_load(sl, tl)) for tl in range(2)]
        if s == 5:
            items.append((s, "b", None))
    if OPT.get("tlast", 1):
        NL = OPT.get("nl", 3)
        last = [it for it in items if it[1] == "h" and it[0] >= 44 - NL]
        items = [it for it in items if it not in last]
        items += last[1::2] + [(43, "h", it[2]) for it in last[0::2]]
    return items


def phase2(stream):
    VXO, VOO, VSO, VDO = AP[0], AP[1], AP[2], AP[3]
    AWR, ARD = APH, [T + 12, T + 13, T + 14, T + 15]
    setup = [f"v_lshrrev_b32 v{T+1}, 3, v{VLANE}", f"v_and_b32 v{T+2}, 7, v{VLANE}",
             f"v_lshrrev_b32 v{T+3}, 2, v{T+1}", f"v_and_b32 v{T+4}, 3, v{T+1}", f"v_lshl_add_u32 v{T+3}, v{T+3}, 4, v{T+4}",
             f"v_lshlrev_b32 v{VDO}, 3, v{T+2}", f"v_lshl_add_u32 v{VXO}, v{T+3}, 10, v{VDO}", f"v_lshlrev_b32 v{VOO}, 1, v{VXO}",
             f"v_lshlrev_b32 v{VSO}, 5, v{T+1}", f"v_add_u32 v{VDO}, {sCOL}, v{VDO}"]
    sloads = [(f"buffer_load_dwordx4 {vr(BST+4*k,4)}, v{VSO}, {SWS}, {sSTB} offen offset:{16*k} sc1", "b") for k in range(2)]
    bl = setup + [(f"global_load_dwordx2 {vr(BD,2)}, v{VDO}, s[{pDSK}:{pDSK+1}]", "b")] + sloads
    for it in range(4):
        bl += [f"s_add_u32 {sSO}, {sRB}, {it*4096}", (f"buffer_load_dwordx2 {vr(BX+2*it,2)}, v{VXO}, {SX}, {sSO} offen", "b")]
    post = [f"v_xor_b32 v{T+5}, v{T+1}, v{T+2}", f"v_lshlrev_b32 v{T+5}, 4, v{T+5}", f"v_lshl_add_u32 v{T+5}, v{T+1}, 7, v{T+5}"]
    for a in range(4):
        post += [f"s_xor_b32 {sT0}, {sWL}, {a*4096}", f"v_add_u32 v{ARD[a]}, {sT0}, v{T+5}"]
    post += [f"v_lshrrev_b32 v{T+6}, 5, v{VLANE}", f"v_xor_b32 v{T+6}, v{T+6}, v{T+2}", f"v_lshlrev_b32 v{T+6}, 4, v{T+6}",
             f"v_lshl_add_u32 v{T+7}, v{VC4}, 7, {sWL}"]
    for g in range(4):
        post += [f"v_xor_b32 v{AWR[g]}, {32*g}, v{T+6}", f"v_add_u32 v{AWR[g]}, v{T+7}, v{AWR[g]}"]
    base = list(post)
    base += [f"v_and_b32 v{BD+3}, 0xffff0000, v{BD+1}", f"v_lshlrev_b32 v{BD+2}, 16, v{BD+1}",
             f"v_and_b32 v{BD+1}, 0xffff0000, v{BD}", f"v_lshlrev_b32 v{BD}, 16, v{BD}"]
    for it in range(4):
        m_, d_, rc = BST + 2 * it, BST + 2 * it + 1, T + 8
        base += [f"v_rcp_f32 v{rc}, v{d_}"]
        for k in range(4):
            x, t0, t1 = BASE + 4 * it + k, T + 9, T + 10
            src = BX + 2 * it + (k >> 1)
            base += [f"v_and_b32 v{x}, 0xffff0000, v{src}" if k & 1 else f"v_lshlrev_b32 v{x}, 16, v{src}",
                     f"v_sub_f32 v{t0}, v{x}, v{m_}"] + bfr(t0, t0)
            base += [f"v_mul_f32 v{t1}, v{t0}, v{rc}", f"v_fma_f32 v{t0}, -v{t1}, v{d_}, v{t0}", f"v_fma_f32 v{t0}, v{t0}, v{rc}, v{t1}"] + bfr(t0, t0)
            base += [f"v_mul_f32 v{t0}, v{t0}, v{BD+k}"] + bfr(t0, t0) + [f"v_add_f32 v{x}, v{t0}, v{x}"]
    base += [f"s_lshl_b32 {sRB}, {sRB}, 1"]
    stream = [(s, k, (bl if k == "b" else g)) for (s, k, g) in stream]

    cpos = [0]
    def c_reads(s):
        jj, u = STEPS[s]
        cc, mat, sp = jj >> 1, u >> 1, 2 * (jj & 1) + (u & 1)
        regs = []
        for ntl in range(2):
            P(f"@waitvm C{CREG.index((cc, mat, ntl))}")
            sl = c_slot(cc, mat, ntl)
            r = ARING + 4 * (cpos[0] % NRING); cpos[0] += 1
            P(f"ds_read_b128 {ar(r,4)}, v{AX[sp] if sl < 4 else AXH[sp]} offset:{(sl&3)*16384}")
            regs.append(r)
        return regs
    creg = {}
    LA = OPT["la"]
    assert LA <= NH - 1
    q = []
    def top_up(s):
        while stream and stream[0][0] <= s + LA - 1 + (1 if stream[0][1] != "h" else 0):
            q.extend(stream.pop(0)[2])
    ldA, chkA = poll(T + 22, T + 20, sPH)
    ldB, chkB = poll(T + 22, T + 20, sPH)
    if True:
        stat = [it for it in stream if it[1] in ("w" if OPT.get("cin") else "cw")]
        for it in stat: stream.remove(it)
        npa = min(OPT.get("npa", 8), len(stat))
        for it in stat[:len(stat) - npa]: P.emit(it[2])
        P.emit([ldA])
        for it in stat[len(stat) - npa:]: P.emit(it[2])
    if OPT["stamps"] in (1, 2):
        stamp(44)
        P(f"v_mov_b32 v{T+11}, v{T+22}")
        stamp(45)
        P("s_mov_b32 s101, 0")
    P.emit(chkA + [f"s_add_u32 {sPH}, {sPH}, 8192"])
    if OPT["stamps"] in (1, 2): P(f"v_writelane_b32 v{VSTMP}, s101, 46")
    stamp(14)
    top_up(0)
    P.emit(q); q.clear()
    first = [True] * 4
    SB = 16 - LA
    NL = OPT.get("nl", 3)
    for s, (jj, u) in enumerate(STEPS[:44 - NL]):
        if s == OPT.get("fb", 0):
            P("@waitvm pubB\ns_barrier")
            if True:
                P.emit([flag_store(2), (f"buffer_store_dword v{VNON}, v{VFLA}, {SWS}, {sROT} offen sc1", "ep")])
        if s == SB - OPT.get("pbl", 5):
            P.emit([ldB])
        if s == SB:
            if OPT["stamps"] in (1, 2):
                P(f"v_mov_b32 v{T+11}, v{T+22}")
                stamp(43)
                P("s_mov_b32 s101, 0")
            P.emit(chkB)
            if OPT["stamps"] in (1, 2): P(f"v_writelane_b32 v{VSTMP}, s101, 47")
            stamp(15)
        top_up(s + 1)
        pop_vm(q)
        if OPT.get("fine") and s % 4 == 0: stamp(32 + s // 4)
        for z, a in enumerate((0, 1, 3, 2) if OPT.get("gray", 1) else (0, 1, 2, 3)):
            if True:
                tl, ntl = a >> 1, a & 1
                bw = ar(creg[s][ntl], 4) if u < 4 else ar(wreg(s, ntl)[0], 4)
                acc = vr(ACC2[a], 16)
                if OPT.get("fake16") and s > 0:
                    for z in range(2):
                        q4 = vr(ACC2[a] + 4 * ((2 * s + z) & 3), 4)
                        P(f"v_mfma_f32_16x16x32_bf16 {q4}, {bw}, {vr(hreg(s)+4*(tl^z),4)}, {q4}")
                else:
                    P(f"v_mfma_f32_32x32x16_bf16 {acc}, {bw}, {vr(hreg(s)+4*tl,4)}, {'0' if first[a] else acc}")
                first[a] = False
                if z < 3: pop_vm(q)
                if z == 2:
                    nx = s + 2
                    if nx < 44 and STEPS[nx][1] < 4:
                        creg[nx] = c_reads(nx)
                if s >= 12 and base:
                    for _ in range(3):
                        if base:
                            x = base.pop(0)
                            P.emit(x[1] if isinstance(x, tuple) and x[0] == "atomic" else [x])
        P.emit(q); q.clear()
    assert not base and not stream
    W = lambda a: [f"ds_write_b128 v{AWR[g]}, {vr(ACC2[a]+4*g,4)} offset:{a*16384}" for g in range(4)]
    M = lambda a, s: P(f"v_mfma_f32_32x32x16_bf16 {vr(ACC2[a],16)}, {ar(wreg(s, a & 1)[0], 4)}, {vr(hreg(s)+4*(a>>1),4)}, {vr(ACC2[a],16)}")
    RD = ACC2[2]
    def red(aa):
        for it in range(4):
            for z, a in enumerate(aa):
                P(f"ds_read_b128 {vr(RD+8*it+4*z,4)}, v{ARD[a]} offset:{a*16384+it*1024}")
        for it in range(4):
            b, r0 = BASE + 4 * it, RD + 8 * it
            for k in (0, 2):
                P(f"v_pk_add_f32 {vr(r0+k,2)}, {vr(r0+k,2)}, {vr(r0+4+k,2)}")
            for k in (0, 2):
                P(f"v_pk_add_f32 {vr(b+k,2)}, {vr(b+k,2)}, {vr(r0+k,2)}")
            if aa[0] == 0:
                P(f"s_add_u32 {sT0}, {sRB}, {it*8192}")
                P(f"buffer_store_dwordx4 {vr(b,4)}, v{VOO}, {SOUT}, {sT0} offen" + (" nt" if OPT.get("ont") else ""))
    for a in (3, 2):
        for s in range(44 - NL, 44): M(a, s)
    P.emit(W(3) + W(2))
    if OPT.get("early_red", 0):
        P("@waitlg0\ns_barrier")
        red((2, 3))
    for s in range(44 - NL, 44):
        M(1, s); M(0, s)
    P('Lmark3:')
    stamp(11)
    P.emit(W(1) + W(0))
    P("@waitlg0\ns_barrier")
    if not OPT.get("early_red", 0):
        red((2, 3))
    red((0, 1))
    if OPT["stamps"]:
        stamp(12)
        P("@waitall")
        stamp(13)
        P(f"s_lshl_b32 s100, s2, 2\ns_add_u32 s100, s100, {sW}\ns_lshl_b32 s100, s100, 8\ns_add_u32 s100, s100, {STAMP_OFF}")
        P(f"v_lshlrev_b32 v{T}, 2, v{VLANE}\nbuffer_store_dword v{VSTMP}, v{T}, {SWS}, s100 offen")


def main():
    from collections import Counter
    ref = open(f"cdna_kernels/{NAME}.s.ref").read().split("\n")
    out = [l for l in ref if l.startswith(";") and "@launch" not in l and "Override launch" not in l and "grid=ceil" not in l]
    k1 = NAME + "_kernel"
    out.append("; @launch grid=(256,1,1) block=(256,1,1) lds=163840")
    out.append("""; One persistent launch, 256 workgroups x 4 waves (one per CU, 512 registers per wave).  Generated by a hand-written scheduler script.
; Phase 1, workgroup (m, j): 128 tokens x [32 SSM channels + 112 GLU columns].  Raw x fragments live in AGPRs, weights stream through LDS
;   (LDS-DMA + transposing reads).  LayerNorm is applied around the GEMMs: the bf16 mean enters as one extra MFMA k-step
;   (-mean x column sums, hi/lo split), 1/std scales the results.  The S5 recurrence is an exact chunked scan: 16-token lane scans,
; Phase 2: 64 x 64 output tile per workgroup, K = 2816 split over the waves, LDS reduction, + x + xn * D.
; Hand-offs: write-through stores, then flag words / tagged records that carry this launch's tag (epoch word in d_ws + 1).""")
    out.append('.amdgcn_target "amdgcn-amd-amdhsa--gfx950"\n.text')
    prologue()
    stream = passes(landing())
    phase2(stream)
    st = {}
    ab = OPT.get("ablate", 0)
    if ab:
        nl = []; inside = False
        reg = OPT.get("abreg", 0)
        for i in P.l:
            if i.kind == "label" and i.text == f"Lmark{reg}:": inside = True
            if i.kind == "label" and i.text == f"Lmark{reg+1}:": inside = False
            if inside:
                if ab & 1 and i.kind == "dma": continue
                if ab & 2 and i.kind == "valu" and any(x in i.text for x in ("dot2", "v_fma", "v_mul_f32", "v_exp", "v_rcp", "v_cvt_pk")): continue
                if ab & 4 and i.kind == "barrier": continue
                if ab & 8 and i.kind == "dsr": continue
                if ab & 16 and i.kind in ("vst", "vld") and i.tag not in ("flag", "poll", "el", "pubE", "ep"): continue
                if ab & 32 and i.kind == "mfma": continue
            nl.append(i)
        P.l = nl
    l = pad_hazards(auto_wait(P.l), st)
    defined = {"s0", "s1", "s2", "v0", "exec", "scc", "vcc", "m0"}
    for i in l:
        bad = [r for r in i.rd if r not in defined]
        assert ab or not bad, f"use before def: {i.text} {bad}"
        defined |= set(i.wr)
    unread = {}
    for i in l:
        for r in i.rd: unread.pop(r, None)
        for r in i.wr:
            assert ab or r not in unread or unread[r][1] in ("ct", "code", None) and r[0] == "a" and int(r[1:]) >= 240, f"load result overwritten unread: {r}: {unread[r][0]} <- {i.text}"
            unread.pop(r, None)
        if i.kind in ("vld", "dsr"):
            for r in i.wr: unread[r] = (i.text, i.tag)
    ool = pad_hazards([Ins(x) for x in P.ool])
    out.append(f".globl {k1}\n.p2align 8\n.type {k1},@function\n{k1}:\nk_start:")
    out.append(render(l))
    out.append("k_exit:\n    s_endpgm\nk_main_end:")
    out.append(render(ool))
    out.append("    s_endpgm\nk_all_end:")
    out.append(f""".section .rodata,"a"
.p2align 6
.amdhsa_kernel {k1}
  .amdhsa_next_free_vgpr 512
  .amdhsa_next_free_sgpr 102
  .amdhsa_accum_offset 256
  .amdhsa_group_segment_fixed_size 0
  .amdhsa_kernarg_size 128
  .amdhsa_user_sgpr_count 2
  .amdhsa_user_sgpr_kernarg_segment_ptr 1
  .amdhsa_system_sgpr_workgroup_id_x 1
.end_amdhsa_kernel""")
    open(sys.argv[1], "w").write("\n".join(out) + "\n")
    c = Counter(i.kind for i in l)
    print(dict(c), "slots", sum(i.cost for i in l), st)

main()
```
